```python
import torch

def _softmax(x, axis=-1):
    return torch.softmax(x, dim=axis)
def _gelu(x):
    return torch.nn.functional.gelu(x, approximate="tanh")
def _silu(x):
    return torch.nn.functional.silu(x)
def _sigmoid(x):
    return torch.sigmoid(x)
def _layernorm(x, axis=-1, eps=1e-5):
    m = x.mean(dim=axis, keepdim=True)
    v = x.var(dim=axis, keepdim=True, unbiased=False)
    return (x - m) / torch.sqrt(v + eps)
def _scatter_add(tgt, idx, src, axis=0):
    return tgt.clone().index_add_(axis, idx, src)
def _segment_sum(src, seg, n):
    out = torch.zeros((n,) + src.shape[1:], dtype=src.dtype)
    return out.index_add_(0, seg, src)
def _pad(x, pw):
    flat = tuple(v for pair in reversed(pw) for v in pair)
    return torch.nn.functional.pad(x, flat)

kernel_name = 'recurrent_scan__sliding_block_cached__dense_activation_squared_relu__prompt'

def setup_inputs():

    _w = (lambda a: (lambda t: t.to(torch.bfloat16) if t.is_floating_point() else t)(torch.as_tensor(a)))
    def _A_setup():
        B, Sq, D = 1, 2048, 1024
        Hq, Hkv, Sk, Dh = 32, 4, 2048, 128
        assert Hq % Hkv == 0, (Hq, Hkv)
        return {
            "x": _w((lambda *s: torch.randn(*s, dtype=torch.bfloat16) * 0.05)(B, Sq, D)),
            "k_cache": _w((lambda *s: torch.randn(*s, dtype=torch.bfloat16) * 0.8)(B, Hkv, Sk, Dh)),
            "v_cache": _w((lambda *s: torch.randn(*s, dtype=torch.bfloat16) * 0.2)(B, Hkv, Sk, Dh)),
            "wq": _w((lambda *s: torch.randn(*s, dtype=torch.bfloat16) * 0.8)(D, Hq * Dh) * (D ** -0.5)),
            "wo": _w((lambda *s: torch.randn(*s, dtype=torch.bfloat16) * 0.2)(Hq * Dh, D) * ((Hq * Dh) ** -0.5)),
        }
    _A_in = _A_setup()

    def _B_setup():
        B, S, D, F = 1, 2048, 1024, 3584
        return {
            "x": _w((lambda *s: torch.randn(*s, dtype=torch.bfloat16) * 0.05)(B, S, D)),
            "w1": _w((lambda *s: torch.randn(*s, dtype=torch.bfloat16) * 0.1)(D, F)),
            "b1": _w((lambda *s: torch.randn(*s, dtype=torch.bfloat16) * 0.1)(F)),
            "w2": _w((lambda *s: torch.randn(*s, dtype=torch.bfloat16) * 0.1)(F, D)),
            "b2": _w((lambda *s: torch.randn(*s, dtype=torch.bfloat16) * 0.1)(D)),
        }
    _B_in = _B_setup()

    return {
        "A_x": _A_in["x"],
        "A_k_cache": _A_in["k_cache"],
        "A_v_cache": _A_in["v_cache"],
        "A_wq": _A_in["wq"],
        "A_wo": _A_in["wo"],
        "B_x": _B_in["x"],
        "B_w1": _B_in["w1"],
        "B_b1": _B_in["b1"],
        "B_w2": _B_in["w2"],
        "B_b2": _B_in["b2"],
    }

def reference(A_x, A_k_cache, A_v_cache, A_wq, A_wo, B_x, B_w1, B_b1, B_w2, B_b2):
    def _A_ref(x, k_cache, v_cache, wq, wo):
        B, Sq, D = x.shape
        Hq, Dh = 32, 128
        Hkv, Sk = k_cache.shape[1], k_cache.shape[2]
        W = min(4096, max(256, Sk // 4))
        rep = Hq // Hkv
        q = (lambda x, *d: x.permute(*d))((x @ wq).reshape(B, Sq, Hq, Dh), 0, 2, 1, 3)
        k = (lambda x, n, axis: torch.repeat_interleave(x, n, dim=axis))(k_cache[:, :, Sk - W:, :], rep, axis=1)
        v = (lambda x, n, axis: torch.repeat_interleave(x, n, dim=axis))(v_cache[:, :, Sk - W:, :], rep, axis=1)
        scores = torch.einsum("bhqd,bhkd->bhqk", q, k) * (Dh ** -0.5)
        p = _softmax(scores, axis=-1)
        o = torch.einsum("bhqk,bhkd->bhqd", p, v)
        return (lambda x, *d: x.permute(*d))(o, 0, 2, 1, 3).reshape(B, Sq, Hq * Dh) @ wo

    def _B_ref(x, w1, b1, w2, b2):
        h = torch.einsum("bsd,df->bsf", x, w1) + b1
        zero = torch.zeros_like(h)
        r = torch.where(h > zero, h, zero)
        h = r * r
        out = torch.einsum("bsf,fd->bsd", h, w2) + b2
        return out

    x = A_x
    xn = _layernorm(x, axis=-1)
    s = _A_ref(xn, A_k_cache, A_v_cache, A_wq, A_wo)
    g = _silu(_B_ref(xn, B_w1, B_b1, B_w2, B_b2))
    return x + s * g
```

```python
import re

def regs_of(tok):
    tok = tok.strip()
    neg = tok.lstrip('-')
    m = re.fullmatch(r'abs\((.*)\)|\|(.*)\|', neg)
    if m: neg = (m.group(1) or m.group(2))
    m = re.fullmatch(r'([vas])(\d+)', neg)
    if m: return [(m.group(1), int(m.group(2)))]
    m = re.fullmatch(r'([vas])\[(\d+):(\d+)\]', neg)
    if m: return [(m.group(1), i) for i in range(int(m.group(2)), int(m.group(3))+1)]
    if neg == 'vcc': return [('x','vcc')]
    if neg in ('vcc_lo','vcc_hi'): return [('x','vcc')]
    if neg == 'exec': return [('x','exec')]
    if neg == 'm0': return [('x','m0')]
    if neg == 'scc': return [('x','scc')]
    return []

TRANS = ('v_exp_f32','v_log_f32','v_rcp_f32','v_rsq_f32','v_sqrt_f32','v_sin_f32','v_cos_f32','v_rcp_iflag_f32')
SALU_NODST = ('s_cmp_','s_cbranch','s_branch','s_waitcnt','s_barrier','s_nop','s_setprio','s_endpgm','s_sleep','s_bitcmp')
SCC_W = ('s_add_','s_addc_','s_sub_','s_subb_','s_cmp_','s_and_','s_or_','s_xor_','s_lshl_','s_lshr_','s_ashr_','s_andn2_','s_orn2_','s_not_','s_min_','s_max_','s_addk_','s_bitcmp','s_bfe_','s_and_saveexec','s_or_saveexec','s_mul_hi' )
SCC_R = ('s_addc_','s_subb_','s_cselect_','s_cbranch_scc','s_cmov')

class Ins:
    __slots__ = ('text','op','kind','reads','writes','tag','lds','nops','mfma_passes','srcC','srcAB','store_wide','store_data','note','loadregs')
    def __init__(self, text, tag=None):
        self.text = text.strip()
        self.tag = tag
        t = self.text.split(';')[0].strip()
        parts = t.split(None, 1)
        self.op = op = parts[0]
        rest = parts[1] if len(parts) > 1 else ''
        ops = [o.strip() for o in re.split(r',(?![^\[]*\])', rest)] if rest else []
        mods = []
        if ops:
            l = ops[-1].split()
            if l:
                ops[-1] = l[0]; mods = l[1:]
        self.reads = set(); self.writes = set(); self.lds = False; self.nops = 0
        self.mfma_passes = 0; self.srcC = set(); self.srcAB = set(); self.store_wide = False; self.store_data = set(); self.loadregs = set()
        R = lambda toks: set(r for tk in toks for r in regs_of(tk))
        if op.endswith(':') and not rest:
            self.kind = 'label'
        elif op.startswith('.'):
            self.kind = 'dir'
        elif op.startswith('v_mfma'):
            self.kind = 'mfma'
            self.writes = R(ops[:1]); self.srcAB = R(ops[1:3]); self.srcC = R(ops[3:4])
            self.reads = self.srcAB | self.srcC | {('x','exec')}
            self.mfma_passes = 4 if '16x16x32' in op else 8 if '32x32x16' in op else None
            assert self.mfma_passes
        elif op.startswith('v_'):
            self.kind = 'trans' if op.replace('_e32','').replace('_e64','') in TRANS else 'valu'
            if op.startswith('v_cmp'):
                self.writes = R(ops[:1]); self.reads = R(ops[1:])
                if op.startswith('v_cmpx'): self.writes.add(('x','exec'))
            elif op.startswith(('v_add_co','v_sub_co','v_addc_co','v_subb_co','v_subrev_co')):
                self.writes = R(ops[:2]); self.reads = R(ops[2:])
            elif op.startswith(('v_permlane16_swap','v_permlane32_swap','v_swap')):
                self.writes = R(ops[:2]); self.reads = R(ops[:2])
            else:
                self.writes = R(ops[:1]); self.reads = R(ops[1:])
                if op.startswith(('v_fmac','v_dot2c','v_pk_fmac','v_writelane','v_mac')): self.reads |= self.writes
                if op.startswith('v_cndmask') and len(ops) == 3: self.reads.add(('x','vcc'))
                if 'dpp' in op or any(m.startswith(('row_','quad_perm','wave_','bank_mask')) for m in mods):
                    self.kind = 'dpp'; self.reads |= self.writes
            self.reads.add(('x','exec'))
        elif op.startswith('s_load') or op.startswith('s_buffer_load') or op in ('s_memtime','s_memrealtime'):
            self.kind = 'smem'
            self.writes = R(ops[:1]); self.reads = R(ops[1:]); self.loadregs = set(self.writes)
        elif op == 's_waitcnt':
            self.kind = 'wait'
        elif op == 's_nop':
            self.kind = 'nop'; self.nops = int(ops[0], 0)
        elif op == 's_barrier':
            self.kind = 'barrier'
        elif op.startswith(('s_branch','s_cbranch','s_endpgm','s_setpc')):
            self.kind = 'branch'
            if op.startswith('s_cbranch_scc'): self.reads = {('x','scc')}
            if op.startswith('s_cbranch_vcc'): self.reads = {('x','vcc')}
            if op.startswith('s_cbranch_exec'): self.reads = {('x','exec')}
        elif op.startswith('s_'):
            self.kind = 'salu'
            if op.startswith(SALU_NODST): self.reads = R(ops)
            else:
                self.writes = R(ops[:1]); self.reads = R(ops[1:])
                if op.startswith(('s_addk','s_mulk','s_cmov')): self.reads |= self.writes
            if op.startswith(SCC_W): self.writes.add(('x','scc'))
            if op.startswith(SCC_R): self.reads.add(('x','scc'))
            if 'saveexec' in op: self.writes.add(('x','exec')); self.reads.add(('x','exec'))
            if op == 's_getreg_b32': self.reads = set()
        elif op.startswith(('buffer_load','global_load')):
            if 'lds' in mods or op.startswith('global_load_lds'):
                self.kind = 'dma'; self.reads = R(ops) | {('x','m0')}
            else:
                self.kind = 'vload'; self.writes = R(ops[:1]); self.reads = R(ops[1:]); self.loadregs = set(self.writes)
                if 'd16' in op: pass
            self.reads.add(('x','exec'))
        elif op.startswith(('buffer_store','global_store')):
            self.kind = 'vstore'; self.reads = R(ops) | {('x','exec')}
            data = ops[0] if op.startswith('buffer') else ops[1]
            self.store_data = R([data])
            self.store_wide = op.endswith(('x3','x4'))
        elif op.startswith(('buffer_atomic','global_atomic')):
            self.kind = 'vstore'; self.reads = R(ops) | {('x','exec')}
            if 'sc0' in mods:
                self.kind = 'vload'; self.writes = R(ops[:1]); self.loadregs = set(self.writes)
        elif op.startswith('buffer_inv') or op.startswith('buffer_wbl2'):
            self.kind = 'vstore'
        elif op.startswith('ds_read') or op.startswith('ds_bpermute') or op.startswith('ds_swizzle'):
            self.kind = 'dsread'; self.writes = R(ops[:1]); self.reads = R(ops[1:]) | {('x','exec')}; self.loadregs = set(self.writes)
        elif op.startswith('ds_write'):
            self.kind = 'dswrite'; self.reads = R(ops) | {('x','exec')}
        else:
            raise ValueError("unknown instruction: " + text)
    def states(self):
        if self.kind in ('label','dir'): return 0
        if self.kind == 'nop': return self.nops + 1
        return 1

class Loop:
    def __init__(self, label, body_items, tail):
        self.label = label; self.items = body_items; self.tail = tail

class Prog:
    def __init__(self):
        self.items = []
        self.stack = [self.items]
    def e(self, text, tag=None):
        for l in text.split('\n'):
            l = l.strip()
            if not l or l.startswith(';'): continue
            self.stack[-1].append(Ins(l, tag))
    def add(self, ins):
        self.stack[-1].append(ins)
    def waitvm(self, tag):
        i = Ins('s_waitcnt vmcnt(0)'); i.kind = 'waittag'; i.tag = tag; self.stack[-1].append(i)
    def drain(self):
        self.e('s_waitcnt vmcnt(0) lgkmcnt(0)')
    def loop_begin(self, label):
        l = Loop(label, [], None)
        self.stack[-1].append(l)
        self.stack.append(l.items)
        return l
    def loop_end(self):
        self.stack.pop()

VMK = ('vload','vstore','dma')
LGK = ('dsread','dswrite','smem')

def parse_wait(text):
    vm = re.search(r'vmcnt\((\d+)\)', text); lg = re.search(r'lgkmcnt\((\d+)\)', text)
    return (int(vm.group(1)) if vm else None, int(lg.group(1)) if lg else None)

class WState:
    def __init__(self):
        self.vm = []
        self.lg = []
    def copy(self):
        s = WState(); s.vm = list(self.vm); s.lg = list(self.lg); return s
    def apply_wait(self, vm, lg):
        if vm is not None and len(self.vm) > vm: self.vm = self.vm[len(self.vm)-vm:] if vm else []
        if lg is not None:
            if any(i.kind == 'smem' for i in self.lg):
                if lg == 0: self.lg = []
            elif len(self.lg) > lg: self.lg = self.lg[len(self.lg)-lg:] if lg else []
    def need(self, ins):
        vm = lg = None
        touch = ins.reads | ins.writes
        if ins.kind == 'waittag':
            for p, o in enumerate(self.vm):
                if o.tag == ins.tag:
                    n = len(self.vm) - 1 - p
                    vm = n if vm is None else min(vm, n)
            return vm, None
        for p, o in enumerate(self.vm):
            if o.loadregs & touch:
                if ins.kind == 'vload' and not (o.loadregs & ins.reads) and ins.tag == 'pf' and o.tag == 'pf':
                    continue
                n = len(self.vm) - 1 - p
                vm = n if vm is None else min(vm, n)
        for p, o in enumerate(self.lg):
            if o.loadregs & touch:
                n = len(self.lg) - 1 - p
                if any(x.kind == 'smem' for x in self.lg): n = 0
                lg = n if lg is None else min(lg, n)
        return vm, lg
    def issue(self, ins):
        if ins.kind in VMK: self.vm.append(ins)
        elif ins.kind in LGK: self.lg.append(ins)

def flatten(items):
    out = []
    for it in items:
        if isinstance(it, Loop): out += flatten(it.items)
        else: out.append(it)
    return out

def insert_waits(items, st):
    out = []
    for it in items:
        if isinstance(it, Loop):
            body = it.items
            assert not any(isinstance(b, Loop) for b in body), "nested loops: not supported in wait pass"
            req = [(None, None)]*len(body)
            def mn(a, b): return b if a is None else a if b is None else min(a, b)
            for rounds in range(4):
                s = st.copy(); changed = False
                for p in range(3):
                    for k, ins in enumerate(body):
                        if ins.kind == 'wait':
                            s.apply_wait(*parse_wait(ins.text)); continue
                        v, l = s.need(ins)
                        nv, nl = mn(req[k][0], v), mn(req[k][1], l)
                        if (nv, nl) != req[k]: req[k] = (nv, nl); changed = True
                        s.apply_wait(None if req[k][0] is None else min(req[k][0], 63), None if req[k][1] is None else min(req[k][1], 15))
                        s.issue(ins)
                if not changed: break
            nb = []
            for k, ins in enumerate(body):
                v, l = req[k]
                if ins.kind == 'waittag':
                    if v is not None: nb.append(Ins('s_waitcnt vmcnt(%d)' % min(v, 63)))
                    continue
                if v is not None or l is not None:
                    t = 's_waitcnt' + (' vmcnt(%d)' % min(v, 63) if v is not None else '') + (' lgkmcnt(%d)' % min(l, 15) if l is not None else '')
                    nb.append(Ins(t))
                nb.append(ins)
            nl_ = Loop(it.label, nb, None)
            out.append(nl_)
            st = s
        else:
            ins = it
            if ins.kind == 'wait':
                st.apply_wait(*parse_wait(ins.text)); out.append(ins); continue
            v, l = st.need(ins)
            if v is not None: v = min(v, 63)
            if l is not None: l = min(l, 15)
            if ins.kind == 'waittag':
                if v is not None:
                    out.append(Ins('s_waitcnt vmcnt(%d)' % v)); st.apply_wait(v, None)
                continue
            if v is not None or l is not None:
                t = 's_waitcnt' + (' vmcnt(%d)' % v if v is not None else '') + (' lgkmcnt(%d)' % l if l is not None else '')
                out.append(Ins(t)); st.apply_wait(v, l)
            out.append(ins); st.issue(ins)
    return out, st

def isv(r): return r[0] in ('v','a')

def hazard_need(prev, ins):
    n = 0
    VAL = ('valu','trans','dpp')
    pw = prev.writes
    if prev.kind in VAL:
        vw = set(r for r in pw if isv(r))
        sw = set(r for r in pw if r[0] == 's' or r == ('x','vcc'))
        if ins.kind == 'mfma' and (vw & ins.reads): n = max(n, 2)
        if ins.kind == 'mfma' and ('x','exec') in pw: n = max(n, 4)
        if ins.op.startswith(('v_readfirstlane','v_readlane')) and (vw & ins.reads): n = max(n, 1)
        if ins.op.startswith('v_permlane') and (vw & ins.reads): n = max(n, 2)
        if ins.kind == 'dpp' and (vw & ins.reads): n = max(n, 2)
        if ins.kind == 'dpp' and ('x','exec') in pw: n = max(n, 5)
        if prev.kind == 'trans' and ins.kind in ('valu','dpp','mfma') and (vw & ins.reads): n = max(n, 1)
        if sw & ins.reads:
            if ins.kind in ('vload','vstore','dma'): n = max(n, 5)
            elif ins.kind in VAL: n = max(n, 2)
            if ins.op.startswith(('v_readlane','v_writelane')): n = max(n, 4)
            if ins.kind in ('salu','branch','smem'): n = max(n, 4)
        if ('x','exec') in pw and ins.op.startswith(('v_readlane','v_readfirstlane','v_writelane','v_permlane')): n = max(n, 4)
    if prev.kind == 'salu':
        if ('x','m0') in pw and ins.kind == 'dma': n = max(n, 1)
    if prev.kind == 'mfma':
        P = prev.mfma_passes
        tab_valu = {4: 8, 8: 12}[P]; tab_ab = {4: 8, 8: 12}[P]; tab_ovl = {4: 6, 8: 10}[P]; war = {4: 3, 8: 7}[P]
        if ins.kind == 'mfma':
            if pw & ins.srcAB: n = max(n, tab_ab)
            if pw & ins.srcC:
                if ins.srcC == pw and ins.mfma_passes == P: pass
                else: n = max(n, tab_ovl)
            if (pw & ins.writes) and not (ins.srcC == pw and ins.writes == pw):
                n = max(n, tab_valu)
        else:
            if ins.kind in VAL + ('vload','vstore','dma','dsread','dswrite'):
                if pw & (ins.reads | ins.writes): n = max(n, tab_valu)
            if ins.kind in VAL and (prev.srcC & ins.writes): n = max(n, war)
    if prev.kind == 'vstore' and prev.store_wide:
        if prev.store_data & ins.writes:
            n = max(n, 2 if ins.kind in VAL else 1)
    return n

def fix_hazards(items, ctx=None):
    hist = list(ctx or [])
    out = []
    def place(ins, hist, outl):
        need = 0; dist = 0
        for p in reversed(hist):
            h = hazard_need(p, ins)
            if h > dist: need = max(need, h - dist)
            dist += p.states()
            if dist > 24: break
        while need > 0:
            k = min(need, 16)
            nop = Ins('s_nop %d' % (k-1)); outl.append(nop); hist.append(nop); need -= k
        outl.append(ins); hist.append(ins)
        if len(hist) > 64: del hist[:32]
    for it in items:
        if isinstance(it, Loop):
            body = it.items
            for rounds in range(3):
                nb = []; h = list(hist)
                for ins in body: place(ins, h, nb)
                nb2 = []; h2 = list(h)
                for ins in nb: place(ins, h2, nb2)
                body = nb2
                if len(nb2) == len(nb) : break
            out.append(Loop(it.label, body, None))
            hist = list(flatten(body))[-40:]
        else:
            place(it, hist, out)
    return out

def render(items):
    lines = []
    for it in items:
        if isinstance(it, Loop):
            lines += render(it.items)
        else:
            lines.append(('' if it.kind == 'label' else '    ') + it.text)
    return lines

def finish(prog, stats=False):
    items, st = insert_waits(prog.items, WState())
    items = fix_hazards(items)
    if stats:
        fl = flatten(items)
        from collections import Counter
        c = Counter(i.kind for i in fl)
        print(dict(c))
    return render(items)

def weave(mfmas, fillers, start=0, per_gap=1):
    n = len(mfmas)
    slots = [[] for _ in range(n)]
    for (pos, f) in fillers:
        slots[max(0, min(n-1, pos))].append(f)
    out = []
    for i in range(n):
        out.append(mfmas[i]); out += slots[i]
    return out
```

```python
import sys
from asmgen import *
from kern import *

STEP_LDS = 16896
IMG = 8448

def k1(name, U=8, D=None, dumpq=False, attn=True, stamps=False, fullunroll=False):
    p = Prog(); e = p.e
    if D is None: D = U - 1
    def accQ(nt, rt): return 16*nt + 4*rt
    def accH(nt, rt): return 128 + 16*nt + 4*rt
    V_TID, V_TR, V_DQ, V_D1, V_XO, V_T0, V_T1, V_T2, V_T3 = 240, 241, 242, 243, 244, 245, 246, 247, 248
    def wfrag(nt): return 4*nt
    def xfrag(step, rt): return 60 + 16*(step % U) + 4*rt
    S_WAVE = 3
    SRD_WQ, SRD_W1, SRD_WS, SRD_B1 = 8, 12, 16, 20
    S_XN, S_Q, S_1, S_MB, S_T0, S_T1, S_CG, S_RG, S_QMAX, S_1MAX, S_CNT = 24, 25, 26, 27, 28, 29, 30, 31, 32, 33, 34
    e("s_cmp_ge_u32 s2, 256")
    e("s_cbranch_scc1 %s_done" % name)
    st = Stamps(p, stamps)
    st.stamp(True); st.stamp()
    e("s_load_dwordx2 s[4:5], s[0:1], %d" % KA['wq'])
    e("s_load_dwordx4 s[36:39], s[0:1], %d" % KA['w1'])
    e("s_load_dwordx2 s[6:7], s[0:1], %d" % KA['ws'])
    e("v_mov_b32 v%d, v0" % V_TID)
    e("v_lshrrev_b32 v%d, 6, v0" % V_T0)
    e("v_and_b32 v%d, 63, v0" % V_TID)
    e("v_readfirstlane_b32 s%d, v%d" % (S_WAVE, V_T0))
    e("s_and_b32 s%d, s2, 7" % S_T0)
    e("s_lshr_b32 s%d, s2, 3" % S_T1)
    e("s_lshl_b32 s%d, s%d, 2" % (S_CG, S_T0))
    e("s_and_b32 s%d, s%d, 3" % (S_T0, S_T1))
    e("s_add_u32 s%d, s%d, s%d" % (S_CG, S_CG, S_T0))
    e("s_lshr_b32 s%d, s%d, 2" % (S_T1, S_T1))
    e("s_lshl_b32 s%d, s%d, 2" % (S_RG, S_T1))
    e("s_add_u32 s%d, s%d, s%d" % (S_RG, S_RG, S_WAVE))
    e("v_lshrrev_b32 v%d, 4, v%d" % (V_T0, V_TID))
    e("v_and_b32 v%d, 15, v%d" % (V_T1, V_TID))
    e("v_lshlrev_b32 v%d, 16, v%d" % (V_DQ, V_T0))
    e("v_lshl_add_u32 v%d, v%d, 4, v%d" % (V_DQ, V_T1, V_DQ))
    e("v_add_u32 v%d, 2, v%d" % (V_T2, V_T1))
    e("v_and_b32 v%d, 1, v%d" % (V_T3, V_T1))
    e("v_cmp_gt_u32 vcc, 12, v%d" % V_T1)
    e("v_cndmask_b32 v%d, v%d, v%d, vcc" % (V_T2, V_T3, V_T2))
    e("s_bitcmp1_b32 s%d, 0" % S_CG)
    e("s_cselect_b64 vcc, -1, 0")
    e("v_cndmask_b32 v%d, v%d, v%d, vcc" % (V_T2, V_T1, V_T2))
    e("v_mul_u32_u24 v%d, %d, v%d" % (V_D1, 8*7168, V_T0))
    e("v_lshl_add_u32 v%d, v%d, 4, v%d" % (V_D1, V_T2, V_D1))
    e("v_and_b32 v%d, 1, v%d" % (V_T2, V_T0))
    e("v_lshlrev_b32 v%d, 2, v%d" % (V_T2, V_T2))
    e("v_bfe_u32 v%d, v%d, 2, 2" % (V_T3, V_TID))
    e("v_add_u32 v%d, v%d, v%d" % (V_T2, V_T2, V_T3))
    e("v_mul_u32_u24 v%d, 1056, v%d" % (V_TR, V_T2))
    e("v_lshrrev_b32 v%d, 1, v%d" % (V_T2, V_T0))
    e("v_lshl_add_u32 v%d, v%d, 8, v%d" % (V_TR, V_T2, V_TR))
    e("v_and_b32 v%d, 3, v%d" % (V_T2, V_TID))
    e("v_lshl_add_u32 v%d, v%d, 3, v%d" % (V_TR, V_T2, V_TR))
    e("v_lshlrev_b32 v%d, 4, v%d" % (V_XO, V_TID))
    e("s_waitcnt lgkmcnt(0)")
    srd(p, SRD_WQ, 4, 8 << 20)
    srd(p, SRD_W1, 36, 7 << 20)
    srd(p, SRD_WS, 6, WS_SIZE)
    srd(p, SRD_B1, 38, 7168)
    e("s_lshl_b32 s%d, s%d, 17" % (S_XN, S_RG))
    e("s_lshl_b32 s%d, s%d, 8" % (S_Q, S_CG))
    e("s_lshl_b32 s%d, s%d, 14" % (S_T0, S_WAVE))
    e("s_add_u32 s%d, s%d, s%d" % (S_Q, S_Q, S_T0))
    e("s_add_u32 s%d, s%d, %d" % (S_QMAX, S_Q, 31*32*8192))
    e("s_mul_i32 s%d, s%d, 224" % (S_1, S_CG))
    e("s_mul_i32 s%d, s%d, %d" % (S_T0, S_WAVE, 2*7168))
    e("s_add_u32 s%d, s%d, s%d" % (S_1, S_1, S_T0))
    e("s_add_u32 s%d, s%d, %d" % (S_1MAX, S_1, 31*32*7168))
    e("s_mul_i32 s%d, s%d, %d" % (S_MB, S_WAVE, 2*1056))
    def dma_step(slot):
        b = slot*STEP_LDS
        return [
            ["s_add_u32 m0, s%d, %d" % (S_MB, b), "buffer_load_dwordx4 v%d, s[%d:%d], s%d offen lds" % (V_DQ, SRD_WQ, SRD_WQ+3, S_Q)],
            ["s_add_u32 m0, s%d, %d" % (S_MB, b+1056), "s_add_u32 s%d, s%d, 8192" % (S_T0, S_Q), "buffer_load_dwordx4 v%d, s[%d:%d], s%d offen lds" % (V_DQ, SRD_WQ, SRD_WQ+3, S_T0)],
            ["s_add_u32 m0, s%d, %d" % (S_MB, b+IMG), "buffer_load_dwordx4 v%d, s[%d:%d], s%d offen lds" % (V_D1, SRD_W1, SRD_W1+3, S_1)],
            ["s_add_u32 m0, s%d, %d" % (S_MB, b+IMG+1056), "s_add_u32 s%d, s%d, 7168" % (S_T1, S_1), "buffer_load_dwordx4 v%d, s[%d:%d], s%d offen lds" % (V_D1, SRD_W1, SRD_W1+3, S_T1)],
        ]
    adv_dma = ["s_add_u32 s%d, s%d, %d" % (S_Q, S_Q, 32*8192), "s_min_u32 s%d, s%d, s%d" % (S_Q, S_Q, S_QMAX),
               "s_add_u32 s%d, s%d, %d" % (S_1, S_1, 32*7168), "s_min_u32 s%d, s%d, s%d" % (S_1, S_1, S_1MAX)]
    def xn_loads(step):
        return ["buffer_load_dwordx4 a[%d:%d], v%d, s[%d:%d], s%d offen offset:%d" % (xfrag(step, rt), xfrag(step, rt)+3, V_XO, SRD_WS, SRD_WS+3, S_XN, rt*1024) for rt in range(4)]
    adv_xn = "s_add_u32 s%d, s%d, 4096" % (S_XN, S_XN)
    def tr_reads(step, nt):
        slot = step % U
        off = (slot % 4)*STEP_LDS + (IMG if nt >= 8 else 0) + ((nt - 8) if nt >= 8 else nt)*32
        return ["ds_read_b64_tr_b16 a[%d:%d], v%d offset:%d" % (wfrag(nt)+2*t, wfrag(nt)+2*t+1, V_TR, off + t*512) for t in range(2)]
    e("s_mul_i32 s%d, s%d, 224" % (S_T0, S_CG))
    e("v_lshrrev_b32 v%d, 4, v%d" % (V_T0, V_TID))
    e("v_lshlrev_b32 v%d, 3, v%d" % (V_T0, V_T0))
    e("s_and_b32 s%d, s%d, 1" % (S_T1, S_CG))
    e("s_lshl_b32 s%d, s%d, 5" % (S_T1, S_T1))
    e("s_add_u32 s%d, s%d, s%d" % (S_T1, S_T0, S_T1))
    for nt in range(6):
        e("buffer_load_dwordx2 v[%d:%d], v%d, s[%d:%d], s%d offen offset:%d" % (accH(nt, 3)+2, accH(nt, 3)+3, V_T0, SRD_B1, SRD_B1+3, S_T1, nt*32))
    e("s_bitcmp1_b32 s%d, 0" % S_CG)
    e("s_cselect_b32 s%d, 0, 192" % S_T1)
    e("s_add_u32 s%d, s%d, s%d" % (S_T1, S_T0, S_T1))
    e("buffer_load_dwordx2 v[%d:%d], v%d, s[%d:%d], s%d offen" % (accH(6, 3)+2, accH(6, 3)+3, V_T0, SRD_B1, SRD_B1+3, S_T1))
    st.stamp()
    for s in range(D):
        for grp in dma_step(s):
            for t in grp: e(t, tag=("dma", s % U) if t.startswith("buffer") else None)
        for t in adv_dma: e(t)
        for t in xn_loads(s): e(t)
        e(adv_xn)
    st.stamp()
    for i in range(128): e("v_mov_b32 v%d, 0" % i)
    for nt in range(7):
        b = accH(nt, 3)
        for rt in range(3):
            a = accH(nt, rt)
            e("v_lshlrev_b32 v%d, 16, v%d" % (a, b+2)); e("v_and_b32 v%d, 0xffff0000, v%d" % (a+1, b+2))
            e("v_lshlrev_b32 v%d, 16, v%d" % (a+2, b+3)); e("v_and_b32 v%d, 0xffff0000, v%d" % (a+3, b+3))
        e("v_lshlrev_b32 v%d, 16, v%d" % (b, b+2)); e("v_and_b32 v%d, 0xffff0000, v%d" % (b+1, b+2))
        e("v_lshlrev_b32 v%d, 16, v%d" % (b+2, b+3)); e("v_mov_b32 v%d, v%d" % (b+3, accH(nt, 2)+3))
    st.stamp()
    p.waitvm(("dma", 0))
    e("s_barrier")
    for nt in range(15):
        for t in tr_reads(0, nt): e(t)
    e("s_mov_b32 s%d, %d" % (S_CNT, 32//U))
    st.stamp()
    if not fullunroll:
        p.loop_begin("g1")
        e("%s_g1:" % name)
    for s in range(U if not fullunroll else 32):
        if fullunroll and s % 8 == 0 and s: st.stamp()
        p.waitvm(("dma", (s+1) % U))
        e("s_barrier")
        mf = []
        for nt in range(15):
            for rt in range(4):
                acc = accQ(nt, rt) if nt < 8 else accH(nt-8, rt)
                mf.append(Ins("v_mfma_f32_16x16x32_bf16 v[%d:%d], a[%d:%d], a[%d:%d], v[%d:%d]" % (acc, acc+3, wfrag(nt), wfrag(nt)+3, xfrag(s, rt), xfrag(s, rt)+3, acc, acc+3)))
        fill = []
        if (s+1) % 4 == 0:
            delta = 4*STEP_LDS if ((s+1) % U) // 4 == 1 else -(U-4)*STEP_LDS
            if U == 4: delta = 0
            if delta > 0: fill.append((0, Ins("v_add_u32 v%d, %d, v%d" % (V_TR, delta, V_TR))))
            elif delta < 0: fill.append((0, Ins("v_subrev_u32 v%d, %d, v%d" % (V_TR, -delta, V_TR))))
        for nt in range(15):
            r = tr_reads(s+1, nt)
            pos = 4*nt + 3
            fill.append((min(pos, 59), Ins(r[0])))
            fill.append((min(pos+1, 59), Ins(r[1])))
        dm = dma_step((s + D) % U)
        posd = [2, 10, 18, 26]
        for q, grp in enumerate(dm):
            for k_, t in enumerate(grp):
                fill.append((posd[q] - (len(grp)-1-k_), Ins(t, tag=("dma", (s+D) % U) if t.startswith("buffer") else None)))
        for q, t in enumerate(adv_dma): fill.append((30+q, Ins(t)))
        for q, t in enumerate(xn_loads(s + D)): fill.append((34+4*q, Ins(t)))
        fill.append((52, Ins(adv_xn)))
        fill.sort(key=lambda x: x[0])
        for ins in weave(mf, fill): p.add(ins)
    if not fullunroll:
        e("s_sub_u32 s%d, s%d, 1" % (S_CNT, S_CNT))
        e("s_cmp_lg_u32 s%d, 0" % S_CNT)
        e("s_cbranch_scc1 %s_g1" % name)
        p.loop_end()
    st.stamp()
    KV_SLOT = 16384
    S_KS, S_VS, S_MK = 41, 42, 43
    V_KV = V_TR
    def Oacc(dt, qt): return 16*dt + 4*qt
    def Sreg(par, kt2, qt): return 128 + 32*par + 16*kt2 + 4*qt
    def Preg(par, qt): return 192 + 16*par + 4*qt
    def negm(qt): return 224 + 4*qt
    def Qf(qt, u): return 16*qt + 4*u
    def Kf(kt2, u): return 64 + 16*kt2 + 4*u
    def Vf(dt): return 96 + 4*dt
    def Lacc(qt): return 128 + 4*qt
    ONES = 144
    S_RP = 45
    def kv_dma():
        return [["s_mov_b32 m0, s%d" % S_RP, "buffer_load_dwordx4 v%d, s[%d:%d], s%d offen lds" % (V_XO, SRD_WS, SRD_WS+3, S_KS)],
                ["buffer_load_dwordx4 v%d, s[%d:%d], s%d offen offset:1024 lds" % (V_XO, SRD_WS, SRD_WS+3, S_KS)],
                ["s_add_u32 m0, s%d, 8192" % S_RP, "buffer_load_dwordx4 v%d, s[%d:%d], s%d offen lds" % (V_XO, SRD_WS, SRD_WS+3, S_VS)],
                ["buffer_load_dwordx4 v%d, s[%d:%d], s%d offen offset:1024 lds" % (V_XO, SRD_WS, SRD_WS+3, S_VS)],
                ["s_add_u32 s%d, s%d, 8192" % (S_KS, S_KS), "s_add_u32 s%d, s%d, 8192" % (S_VS, S_VS)],
                ["s_add_u32 s%d, s%d, 16384" % (S_RP, S_RP), "s_and_b32 s%d, s%d, 0x1ffff" % (S_RP, S_RP)]]
    def tagkv(t, m): return ("kv", m) if t.startswith("buffer") else None
    if attn:
        e("s_barrier")
        e("s_lshr_b32 s%d, s%d, 3" % (S_T0, S_CG))
        e("s_lshl_b32 s%d, s%d, 17" % (S_T0, S_T0))
        e("s_lshl_b32 s%d, s%d, 11" % (S_RP, S_WAVE))
        e("s_add_u32 s%d, s%d, s%d" % (S_T0, S_T0, S_RP))
        e("s_add_u32 s%d, s%d, %d" % (S_KS, S_T0, WS_KP))
        e("s_add_u32 s%d, s%d, %d" % (S_VS, S_T0, WS_VP - 2*8192))
        for m in range(7):
            for grp in kv_dma():
                for t in grp: e(t, tag=tagkv(t, m))
        for qt in range(4):
            for u in range(4):
                a, b = accQ(2*u, qt), accQ(2*u+1, qt)
                e("v_cvt_pk_bf16_f32 v%d, v%d, v%d" % (a, a, a+1))
                e("v_cvt_pk_bf16_f32 v%d, v%d, v%d" % (a+1, a+2, a+3))
                e("v_cvt_pk_bf16_f32 v%d, v%d, v%d" % (a+2, b, b+1))
                e("v_cvt_pk_bf16_f32 v%d, v%d, v%d" % (a+3, b+2, b+3))
                for r in range(4): e("v_accvgpr_write_b32 a%d, v%d" % (Qf(qt, u)+r, a+r))
    S_H0, S_H6 = 35, 40
    e("s_lshr_b32 s%d, s%d, 1" % (S_T0, S_CG))
    e("s_mul_i32 s%d, s%d, 7" % (S_T0, S_T0))
    e("s_and_b32 s%d, s%d, 1" % (S_T1, S_CG))
    e("s_lshl_b32 s%d, s%d, 2" % (S_H0, S_T1))
    e("s_add_u32 s%d, s%d, s%d" % (S_H0, S_H0, S_T0))
    e("s_lshl_b32 s%d, s%d, 11" % (S_H0, S_H0))
    e("s_add_u32 s%d, s%d, 3" % (S_H6, S_T0))
    e("s_lshl_b32 s%d, s%d, 11" % (S_H6, S_H6))
    e("s_lshl_b32 s%d, s%d, 3" % (S_T1, S_T1))
    e("s_add_u32 s%d, s%d, s%d" % (S_H6, S_H6, S_T1))
    e("s_mul_i32 s%d, s%d, %d" % (S_T0, S_RG, 2*112*2048))
    e("s_add_u32 s%d, s%d, %d" % (S_T0, S_T0, WS_HF))
    e("s_add_u32 s%d, s%d, s%d" % (S_H0, S_H0, S_T0))
    e("s_add_u32 s%d, s%d, s%d" % (S_H6, S_H6, S_T0))
    for rt in range(4):
        for nt in range(7):
            a = accH(nt, rt)
            for r in range(4):
                e("v_max_f32 v%d, 0, v%d" % (a+r, a+r))
            for r in range(4):
                e("v_mul_f32 v%d, v%d, v%d" % (a+r, a+r, a+r))
        for u in range(3):
            a, b = accH(2*u, rt), accH(2*u+1, rt)
            e("v_cvt_pk_bf16_f32 v%d, v%d, v%d" % (a, a, a+1))
            e("v_cvt_pk_bf16_f32 v%d, v%d, v%d" % (a+1, a+2, a+3))
            e("v_cvt_pk_bf16_f32 v%d, v%d, v%d" % (a+2, b, b+1))
            e("v_cvt_pk_bf16_f32 v%d, v%d, v%d" % (a+3, b+2, b+3))
            off = (rt >> 1)*112*2048 + (rt & 1)*1024 + u*2048
            e("s_add_u32 s%d, s%d, %d" % (S_T0, S_H0, off))
            e("buffer_store_dwordx4 v[%d:%d], v%d, s[%d:%d], s%d offen" % (a, a+3, V_XO, SRD_WS, SRD_WS+3, S_T0))
        a = accH(6, rt)
        e("v_cvt_pk_bf16_f32 v%d, v%d, v%d" % (a, a, a+1))
        e("v_cvt_pk_bf16_f32 v%d, v%d, v%d" % (a+1, a+2, a+3))
        off = (rt >> 1)*112*2048 + (rt & 1)*1024
        e("s_add_u32 s%d, s%d, %d" % (S_T0, S_H6, off))
        e("buffer_store_dwordx2 v[%d:%d], v%d, s[%d:%d], s%d offen" % (a, a+1, V_XO, SRD_WS, SRD_WS+3, S_T0))
    S_OB = 44
    e("s_lshl_b32 s%d, s%d, 19" % (S_T0, S_RG))
    e("s_lshl_b32 s%d, s%d, 13" % (S_T1, S_CG))
    e("s_add_u32 s%d, s%d, s%d" % (S_T0, S_T0, S_T1))
    e("s_add_u32 s%d, s%d, %d" % (S_OB, S_T0, WS_OF))
    if dumpq and not attn:
        for rt in range(4):
            for u in range(4):
                a, b = accQ(2*u, rt), accQ(2*u+1, rt)
                e("v_cvt_pk_bf16_f32 v%d, v%d, v%d" % (a, a, a+1))
                e("v_cvt_pk_bf16_f32 v%d, v%d, v%d" % (a+1, a+2, a+3))
                e("v_cvt_pk_bf16_f32 v%d, v%d, v%d" % (a+2, b, b+1))
                e("v_cvt_pk_bf16_f32 v%d, v%d, v%d" % (a+3, b+2, b+3))
                off = (rt >> 1)*128*2048 + (rt & 1)*1024 + u*2048
                e("s_add_u32 s%d, s%d, %d" % (S_T0, S_OB, off))
                e("buffer_store_dwordx4 v[%d:%d], v%d, s[%d:%d], s%d offen" % (a, a+3, V_XO, SRD_WS, SRD_WS+3, S_T0))
    if attn:
        st.stamp()
        def kread(kt2, u, rel=0):
            return "ds_read_b128 a[%d:%d], v%d offset:%d" % (Kf(kt2, u), Kf(kt2, u)+3, V_KV, rel*KV_SLOT + (4*kt2+u)*1024)
        def vread(dt, rel=0):
            return "ds_read_b128 a[%d:%d], v%d offset:%d" % (Vf(dt), Vf(dt)+3, V_KV, rel*KV_SLOT + 8192 + dt*1024)
        def qk_mfmas(par, first):
            out = []
            for kt2 in range(2):
                for u in range(4):
                    for qt in range(4):
                        s_ = Sreg(par, kt2, qt)
                        if u == 0: c = "0" if first else "v[%d:%d]" % (negm(qt), negm(qt)+3)
                        else: c = "v[%d:%d]" % (s_, s_+3)
                        out.append(Ins("v_mfma_f32_16x16x32_bf16 v[%d:%d], a[%d:%d], a[%d:%d], %s" % (s_, s_+3, Kf(kt2, u), Kf(kt2, u)+3, Qf(qt, u), Qf(qt, u)+3, c)))
            return out
        def pv_mfmas(par, first):
            out = []
            for dt in range(8):
                for qt in range(4):
                    o = Oacc(dt, qt)
                    c = "0" if first else "v[%d:%d]" % (o, o+3)
                    out.append(Ins("v_mfma_f32_16x16x32_bf16 v[%d:%d], a[%d:%d], v[%d:%d], %s" % (o, o+3, Vf(dt), Vf(dt)+3, Preg(par, qt), Preg(par, qt)+3, c)))
            for qt in range(4):
                l = Lacc(qt)
                c = "0" if first else "a[%d:%d]" % (l, l+3)
                out.append(Ins("v_mfma_f32_16x16x32_bf16 a[%d:%d], a[%d:%d], v[%d:%d], %s" % (l, l+3, ONES, ONES+3, Preg(par, qt), Preg(par, qt)+3, c)))
            return out
        def softmax_ops(par):
            ops = []
            for qt in range(4):
                for kt2 in range(2):
                    s_ = Sreg(par, kt2, qt)
                    for h in range(2):
                        ops.append(("exp", "v_exp_f32 v%d, v%d" % (s_+2*h, s_+2*h)))
                        ops.append(("exp", "v_exp_f32 v%d, v%d" % (s_+2*h+1, s_+2*h+1)))
                        ops.append(("cvt", "v_cvt_pk_bf16_f32 v%d, v%d, v%d" % (Preg(par, qt)+2*kt2+h, s_+2*h, s_+2*h+1)))
            return ops
        def step(j, qk, pv, pvfirst, sm, dma, rd_k, rd_v, dmatag=None):
            par = j & 1
            mf = []; fill = []
            kpos = {}; vpos = {}
            if qk:
                mf += qk_mfmas(1-par, False)
                for f in range(8): kpos[f] = 4*f + 3
            n0 = len(mf)
            if pv:
                mf += pv_mfmas(1-par, pvfirst)
                for f in range(8): vpos[f] = n0 + 4*f + 3
            n = len(mf)
            if rd_k:
                for f in range(8): fill.append((kpos[f], 1, Ins(kread(f//4, f % 4))))
            if rd_v:
                for f in range(8): fill.append((vpos.get(f, min(n-1, 2*f+1)), 1, Ins(vread(f))))
            if sm:
                k_ = 0
                for kind, t in softmax_ops(par):
                    if kind == "exp":
                        pos = (k_*(n-2))//32
                        k_ += 1; last = pos
                        fill.append((pos, 0, Ins(t)))
                    else:
                        fill.append((min(n-1, last+1), 2, Ins(t)))
            if dma:
                pos = 5
                for grp in kv_dma():
                    for q, t in enumerate(grp):
                        fill.append((min(n-1, pos - (len(grp)-1-q)), 3, Ins(t, tag=tagkv(t, dmatag))))
                    pos += 4
            if rd_k or rd_v:
                fill.append((n-1, 9, Ins("v_add_u32 v%d, %d, v%d" % (V_KV, KV_SLOT, V_KV))))
                fill.append((n-1, 9, Ins("v_and_b32 v%d, 0x1ffff, v%d" % (V_KV, V_KV))))
            fill.sort(key=lambda x: (x[0], x[1]))
            for ins in weave(mf, [(a, c) for a, b, c in fill]): p.add(ins)
        e("v_mov_b32 v%d, v%d" % (V_KV, V_XO))
        e("v_mov_b32 v%d, 0x3f803f80" % V_T0)
        for r in range(4): e("v_accvgpr_write_b32 a%d, v%d" % (ONES+r, V_T0))
        p.waitvm(("kv", 2))
        p.waitvm(("kv", 1))
        p.waitvm(("kv", 0))
        e("s_barrier")
        for f in range(8): e(kread(f//4, f % 4, 0))
        for ins in qk_mfmas(0, True): p.add(ins)
        for f in range(8): e(kread(f//4, f % 4, 1))
        e("v_add_u32 v%d, %d, v%d" % (V_KV, 2*KV_SLOT, V_KV))
        for qt in range(4):
            t0, t1 = V_T0, V_T1
            a, b = Sreg(0, 0, qt), Sreg(0, 1, qt)
            e("v_max3_f32 v%d, v%d, v%d, v%d" % (t0, a, a+1, a+2))
            e("v_max3_f32 v%d, v%d, v%d, v%d" % (t1, a+3, b, b+1))
            e("v_max3_f32 v%d, v%d, v%d, v%d" % (t0, t0, b+2, b+3))
            e("v_max_f32 v%d, v%d, v%d" % (t0, t0, t1))
            e("v_mov_b32 v%d, v%d" % (t1, t0))
            e("v_permlane32_swap_b32 v%d, v%d" % (t0, t1))
            e("v_max_f32 v%d, v%d, v%d" % (t0, t0, t1))
            e("v_mov_b32 v%d, v%d" % (t1, t0))
            e("v_permlane16_swap_b32 v%d, v%d" % (t0, t1))
            e("v_max_f32 v%d, v%d, v%d" % (t0, t0, t1))
            for r in range(4): e("v_sub_f32 v%d, 0, v%d" % (negm(qt)+r, t0))
            for r in range(4):
                e("v_sub_f32 v%d, v%d, v%d" % (a+r, a+r, t0))
                e("v_sub_f32 v%d, v%d, v%d" % (b+r, b+r, t0))
        st.stamp()
        step(0, True, False, False, True, True, True, True, dmatag=7)
        p.waitvm(("kv", 4)); p.waitvm(("kv", 3))
        e("s_barrier")
        step(1, True, True, True, True, True, True, True, dmatag=8)
        e("s_mov_b32 s%d, 6" % S_CNT)
        p.loop_begin("at")
        e("%s_at:" % name)
        step(2, True, True, False, True, True, True, True)
        e("s_waitcnt vmcnt(12)")
        e("s_barrier")
        step(3, True, True, False, True, True, True, True)
        e("s_sub_u32 s%d, s%d, 1" % (S_CNT, S_CNT))
        e("s_cmp_lg_u32 s%d, 0" % S_CNT)
        e("s_cbranch_scc1 %s_at" % name)
        p.loop_end()
        step(14, True, True, False, True, False, False, True)
        e("s_waitcnt vmcnt(12)")
        e("s_barrier")
        step(15, False, True, False, True, False, False, True)
        step(16, False, True, False, False, False, False, False)
        st.stamp()
        for qt in range(4):
            e("v_accvgpr_read_b32 v%d, a%d" % (negm(qt), Lacc(qt)))
        for qt in range(4):
            e("v_rcp_f32 v%d, v%d" % (negm(qt)+1, negm(qt)))
        for qt in range(4):
            e("v_fma_f32 v%d, -v%d, v%d, 2.0" % (negm(qt)+2, negm(qt), negm(qt)+1))
            e("v_mul_f32 v%d, v%d, v%d" % (negm(qt)+1, negm(qt)+1, negm(qt)+2))
        for qt in range(4):
            for u in range(4):
                a, b = Oacc(2*u, qt), Oacc(2*u+1, qt)
                for r in range(4):
                    e("v_mul_f32 v%d, v%d, v%d" % (a+r, a+r, negm(qt)+1))
                    e("v_mul_f32 v%d, v%d, v%d" % (b+r, b+r, negm(qt)+1))
                e("v_cvt_pk_bf16_f32 v%d, v%d, v%d" % (a, a, a+1))
                e("v_cvt_pk_bf16_f32 v%d, v%d, v%d" % (a+1, a+2, a+3))
                e("v_cvt_pk_bf16_f32 v%d, v%d, v%d" % (a+2, b, b+1))
                e("v_cvt_pk_bf16_f32 v%d, v%d, v%d" % (a+3, b+2, b+3))
                off = (qt >> 1)*128*2048 + (qt & 1)*1024 + u*2048
                e("s_add_u32 s%d, s%d, %d" % (S_T0, S_OB, off))
                e("buffer_store_dwordx4 v[%d:%d], v%d, s[%d:%d], s%d offen" % (a, a+3, V_XO, SRD_WS, SRD_WS+3, S_T0))
    st.stamp()
    e("s_waitcnt vmcnt(0)")
    st.stamp(); st.stamp(True)
    st.dump(SRD_WS, V_T0, 1)
    e("%s_done:" % name)
    e("s_endpgm")
    return p

if __name__ == "__main__":
    ks = [("prep_kernel", k0("prep", stamps=True, prefetch=("nopf" not in sys.argv)), 96, 102, 96), ("pa_kernel", k1("pa", dumpq=True, attn=("noattn" not in sys.argv), stamps=True, fullunroll=("fu" in sys.argv), D=int([a for a in sys.argv if a.startswith("D=")][0][2:]) if any(a.startswith("D=") for a in sys.argv) else None), 512, 102, 256)]
    ls = [("prep_kernel", (256,1,1), (512,1,1), 4096), ("pa_kernel", (256,1,1), (256,1,1), 8*STEP_LDS)]
    open("t1.s", "w").write(assemble(ks, ls))
    import build
    print(build.build("t1.s"))
```

```python
import sys, math
from asmgen import *

WS_XN = 0
WS_KP = 4 << 20
WS_VP = (4 << 20) + (512 << 10)
WS_OF = 8 << 20
WS_HF = 24 << 20
WS_G  = 40 << 20
WS_DBG = 48 << 20
WS_SIZE = 256 << 20
KA = dict(x=0, k=8, v=16, wq=24, wo=32, bx=40, w1=48, b1=56, w2=64, b2=72, out=80, dbg=88, ws=96)
CSCALE = math.log2(math.e) / math.sqrt(128.0)

def f2u(x):
    import struct
    return struct.unpack('<I', struct.pack('<f', x))[0]

def srd(p, d, base, nbytes, add=0):
    if add:
        p.e("s_add_u32 s%d, s%d, 0x%x" % (d, base, add))
        p.e("s_addc_u32 s%d, s%d, 0" % (d+1, base+1))
    else:
        p.e("s_mov_b32 s%d, s%d" % (d, base))
        p.e("s_mov_b32 s%d, s%d" % (d+1, base+1))
    p.e("s_mov_b32 s%d, 0x%x" % (d+2, nbytes))
    p.e("s_mov_b32 s%d, 0x20000" % (d+3))

class Stamps:
    def __init__(self, p, on): self.p = p; self.on = on; self.n = 0
    def stamp(self, real=False):
        if not self.on: return
        r = 64 + 2*self.n; self.n += 1
        self.p.e("%s s[%d:%d]" % ("s_memrealtime" if real else "s_memtime", r, r+1))
        self.p.e("s_waitcnt lgkmcnt(0)")
    def dump(self, srd_ws, vtmp, kidx):
        if not self.on: return
        e = self.p.e
        e("s_mov_b64 exec, 1")
        e("s_lshl_b32 s62, s2, 9")
        e("s_lshl_b32 s63, s3, 6")
        e("s_add_u32 s62, s62, s63")
        e("s_add_u32 s62, s62, 0x%x" % (WS_DBG + kidx*(1 << 20)))
        e("v_mov_b32 v%d, 0" % vtmp)
        for i in range(self.n):
            e("v_mov_b32 v%d, s%d" % (vtmp+1, 64+2*i))
            e("buffer_store_dword v%d, v%d, s[%d:%d], s62 offen offset:%d" % (vtmp+1, vtmp, srd_ws, srd_ws+3, 4*i))
        e("s_waitcnt vmcnt(0)")

def k0(name, prefetch=True, stamps=False):
    p = Prog(); e = p.e
    st = Stamps(p, stamps)
    e("s_cmp_ge_u32 s2, 256")
    e("s_cbranch_scc1 %s_done" % name)
    st.stamp(True)
    e("s_load_dwordx2 s[4:5], s[0:1], %d" % KA['x'])
    e("s_load_dwordx2 s[6:7], s[0:1], %d" % KA['ws'])
    e("s_load_dwordx4 s[24:27], s[0:1], %d" % KA['k'])
    e("s_load_dwordx2 s[28:29], s[0:1], %d" % KA['wq'])
    e("s_load_dwordx2 s[30:31], s[0:1], %d" % KA['w1'])
    e("v_and_b32 v1, 63, v0")
    e("v_lshrrev_b32 v2, 6, v0")
    e("v_and_b32 v3, 15, v1")
    e("v_lshrrev_b32 v4, 4, v1")
    e("v_readfirstlane_b32 s3, v2")
    def pf():
        if not prefetch: return
        srd(p, 32, 28, 8 << 20)
        srd(p, 36, 30, 7 << 20)
        e("s_and_b32 s40, s2, 7\ns_lshr_b32 s41, s2, 3")
        e("s_lshl_b32 s41, s41, 5\ns_lshl_b32 s42, s3, 2\ns_add_u32 s41, s41, s42")
        e("s_lshl_b32 s42, s41, 13\ns_lshl_b32 s43, s40, 10\ns_add_u32 s42, s42, s43")
        e("s_mul_i32 s43, s41, 7168\ns_mul_i32 s44, s40, 896\ns_add_u32 s43, s43, s44")
        e("v_lshlrev_b32 v88, 4, v1")
        e("v_min_u32 v89, 55, v1\nv_lshlrev_b32 v89, 4, v89")
        for r in range(4):
            e("buffer_load_dwordx4 v[84:87], v88, s[32:35], s42 offen", tag="pf")
            e("buffer_load_dwordx4 v[84:87], v89, s[36:39], s43 offen", tag="pf")
            if r < 3: e("s_add_u32 s42, s42, 8192\ns_add_u32 s43, s43, 7168")
    e("s_cmp_ge_u32 s2, 128")
    e("s_cbranch_scc1 %s_kv" % name)
    e("s_waitcnt lgkmcnt(0)")
    srd(p, 8, 4, 4 << 20)
    srd(p, 12, 6, 4 << 20, WS_XN)
    e("s_lshl_b32 s16, s2, 15")
    e("s_lshl_b32 s17, s3, 8")
    e("s_add_u32 s16, s16, s17")
    e("v_lshlrev_b32 v5, 11, v3")
    e("v_lshl_add_u32 v5, v4, 3, v5")
    for q in range(4):
        e("buffer_load_dwordx2 v[%d:%d], v5, s[8:11], s16 offen offset:%d" % (16+4*q, 17+4*q, q*64))
        e("buffer_load_dwordx2 v[%d:%d], v5, s[8:11], s16 offen offset:%d" % (18+4*q, 19+4*q, q*64+32))
    pf()
    e("v_mul_u32_u24 v6, 48, v3")
    e("s_lshl_b32 s18, s3, 2")
    e("v_add_u32 v7, s18, v6")
    for r in range(16):
        e("v_lshlrev_b32 v%d, 16, v%d" % (32+2*r, 16+r))
        e("v_and_b32 v%d, 0xffff0000, v%d" % (33+2*r, 16+r))
    def reduce_all(src, lds_off):
        e("v_mov_b32 v9, v%d" % src)
        e("v_permlane32_swap_b32 v%d, v9" % src)
        e("v_add_f32 v%d, v%d, v9" % (src, src))
        e("v_mov_b32 v9, v%d" % src)
        e("v_permlane16_swap_b32 v%d, v9" % src)
        e("v_add_f32 v%d, v%d, v9" % (src, src))
        e("ds_write_b32 v7, v%d offset:%d" % (src, lds_off))
        e("s_waitcnt lgkmcnt(0)")
        e("s_barrier")
        e("ds_read_b128 v[64:67], v6 offset:%d" % lds_off)
        e("ds_read_b128 v[68:71], v6 offset:%d" % (lds_off+16))
        e("v_add_f32 v64, v64, v65\nv_add_f32 v66, v66, v67\nv_add_f32 v68, v68, v69\nv_add_f32 v70, v70, v71")
        e("v_add_f32 v64, v64, v66\nv_add_f32 v68, v68, v70\nv_add_f32 v8, v64, v68")
    for i in range(4):
        e("v_add_f32 v%d, v%d, v%d" % (72+i, 32+i, 36+i))
    for r in range(8, 32):
        e("v_add_f32 v%d, v%d, v%d" % (72+(r % 4), 72+(r % 4), 32+r))
    e("v_add_f32 v72, v72, v73\nv_add_f32 v74, v74, v75\nv_add_f32 v72, v72, v74")
    reduce_all(72, 0)
    e("v_mul_f32 v10, 0x%x, v8" % f2u(1.0/1024))
    for r in range(32):
        e("v_sub_f32 v%d, v%d, v10" % (80+(r % 4), 32+r))
        if r < 4: e("v_mul_f32 v%d, v%d, v%d" % (72+r, 80+(r % 4), 80+(r % 4)))
        else: e("v_fmac_f32 v%d, v%d, v%d" % (72+(r % 4), 80+(r % 4), 80+(r % 4)))
    e("v_add_f32 v72, v72, v73\nv_add_f32 v74, v74, v75\nv_add_f32 v72, v72, v74")
    reduce_all(72, 1024)
    e("v_mul_f32 v11, 0x%x, v8" % f2u(1.0/1024))
    e("v_cvt_pk_bf16_f32 v12, v10, v11")
    e("v_and_b32 v11, 0xffff0000, v12")
    e("v_lshlrev_b32 v10, 16, v12")
    e("v_add_f32 v11, 0x%x, v11" % f2u(1e-5))
    e("v_cvt_pk_bf16_f32 v12, v11, v11")
    e("v_and_b32 v11, 0xffff0000, v12")
    e("v_sqrt_f32 v11, v11")
    e("v_cvt_pk_bf16_f32 v12, v11, v11")
    e("v_and_b32 v11, 0xffff0000, v12")
    e("v_rcp_f32 v13, v11")
    for r in range(16):
        a, b = 32+2*r, 33+2*r
        e("v_sub_f32 v%d, v%d, v10" % (a, a))
        e("v_sub_f32 v%d, v%d, v10" % (b, b))
        e("v_cvt_pk_bf16_f32 v%d, v%d, v%d" % (16+r, a, b))
        e("v_lshlrev_b32 v%d, 16, v%d" % (a, 16+r))
        e("v_and_b32 v%d, 0xffff0000, v%d" % (b, 16+r))
        e("v_mul_f32 v80, v%d, v13" % a)
        e("v_mul_f32 v81, v%d, v13" % b)
        e("v_fma_f32 v%d, -v80, v11, v%d" % (a, a))
        e("v_fma_f32 v%d, -v81, v11, v%d" % (b, b))
        e("v_fmac_f32 v80, v%d, v13" % a)
        e("v_fmac_f32 v81, v%d, v13" % b)
        e("v_cvt_pk_bf16_f32 v%d, v80, v81" % (16+r))
    e("s_lshr_b32 s16, s2, 2\ns_lshl_b32 s16, s16, 17")
    e("s_and_b32 s17, s2, 3\ns_lshl_b32 s17, s17, 10")
    e("s_add_u32 s16, s16, s17")
    e("s_lshl_b32 s17, s3, 14")
    e("s_add_u32 s16, s16, s17")
    e("v_lshlrev_b32 v5, 4, v1")
    for q in range(4):
        e("s_add_u32 s17, s16, %d" % (q*4096))
        e("buffer_store_dwordx4 v[%d:%d], v5, s[12:15], s17 offen" % (16+4*q, 19+4*q))
    def fin():
        if stamps:
            e("s_waitcnt vmcnt(0)")
            e("s_memrealtime s[66:67]")
            e("s_waitcnt lgkmcnt(0)")
            srd(p, 48, 6, WS_SIZE)
            n0 = st.n; st.n = 2
            st.dump(48, 90, 0)
            st.n = n0
    fin()
    e("s_endpgm")
    e("%s_kv:" % name)
    e("s_waitcnt lgkmcnt(0)")
    e("s_sub_u32 s16, s2, 128")
    e("s_lshl_b32 s16, s16, 3")
    e("s_add_u32 s16, s16, s3")
    e("s_and_b32 s17, s16, 511")
    e("s_lshr_b32 s18, s17, 7")
    e("s_lshr_b32 s19, s17, 3\ns_and_b32 s19, s19, 15")
    e("s_lshl_b32 s20, s18, 19")
    e("s_lshl_b32 s21, s19, 13")
    e("s_add_u32 s20, s20, s21")
    e("s_add_u32 s20, s20, %d" % (1536*256))
    e("s_lshl_b32 s22, s17, 10")
    e("v_lshlrev_b32 v5, 4, v1")
    e("s_cmp_ge_u32 s16, 512")
    e("s_cbranch_scc1 %s_v" % name)
    srd(p, 8, 24, 2 << 20)
    srd(p, 12, 6, 512 << 10, WS_KP)
    e("s_lshr_b32 s21, s17, 2\ns_and_b32 s21, s21, 1\ns_lshl_b32 s21, s21, 12")
    e("s_add_u32 s20, s20, s21")
    e("s_and_b32 s21, s17, 3\ns_lshl_b32 s21, s21, 6")
    e("s_add_u32 s20, s20, s21")
    e("v_lshlrev_b32 v6, 8, v3")
    e("v_lshl_add_u32 v6, v4, 3, v6")
    e("buffer_load_dwordx2 v[16:17], v6, s[8:11], s20 offen")
    e("buffer_load_dwordx2 v[18:19], v6, s[8:11], s20 offen offset:32")
    pf()
    e("s_mov_b32 s23, 0x%x" % f2u(CSCALE))
    for r in range(4):
        e("v_lshlrev_b32 v20, 16, v%d" % (16+r))
        e("v_and_b32 v21, 0xffff0000, v%d" % (16+r))
        e("v_mul_f32 v20, s23, v20")
        e("v_mul_f32 v21, s23, v21")
        e("v_cvt_pk_bf16_f32 v%d, v20, v21" % (16+r))
    e("buffer_store_dwordx4 v[16:19], v5, s[12:15], s22 offen")
    fin()
    e("s_endpgm")
    e("%s_v:" % name)
    srd(p, 8, 26, 2 << 20)
    srd(p, 12, 6, 512 << 10, WS_VP)
    e("s_and_b32 s21, s17, 7\ns_lshl_b32 s21, s21, 5")
    e("s_add_u32 s20, s20, s21")
    e("s_add_u32 s21, s20, 4096")
    e("v_lshlrev_b32 v6, 1, v3")
    e("v_lshl_add_u32 v6, v4, 10, v6")
    for j in range(4):
        e("buffer_load_ushort v%d, v6, s[8:11], s20 offen offset:%d" % (24+j, j*256))
    for j in range(4):
        e("buffer_load_ushort v%d, v6, s[8:11], s21 offen offset:%d" % (28+j, j*256))
    pf()
    for r in range(4):
        e("v_lshl_or_b32 v%d, v%d, 16, v%d" % (16+r, 25+2*r, 24+2*r))
    e("buffer_store_dwordx4 v[16:19], v5, s[12:15], s22 offen")
    fin()
    e("%s_done:" % name)
    e("s_endpgm")
    return p

def assemble(kernels, launches, header=""):
    out = []
    if header: out.append(header.rstrip("\n"))
    for (n, g, b, l) in launches:
        out.append("; @launch kernel=%s grid=(%d,%d,%d) block=(%d,%d,%d) lds=%d" % (n, g[0], g[1], g[2], b[0], b[1], b[2], l))
    out.append('.amdgcn_target "amdgcn-amd-amdhsa--gfx950"')
    out.append(".text")
    for (n, prog, v, s, a) in kernels:
        out += [".globl %s" % n, ".p2align 8", ".type %s,@function" % n, "%s:" % n]
        out += finish(prog)
    out.append('.section .rodata,"a"')
    for (n, prog, v, s, a) in kernels:
        out += [".p2align 6", ".amdhsa_kernel %s" % n,
                "  .amdhsa_next_free_vgpr %d" % v, "  .amdhsa_next_free_sgpr %d" % s, "  .amdhsa_accum_offset %d" % a,
                "  .amdhsa_group_segment_fixed_size 0", "  .amdhsa_kernarg_size 104", "  .amdhsa_user_sgpr_count 2",
                "  .amdhsa_user_sgpr_kernarg_segment_ptr 1", "  .amdhsa_system_sgpr_workgroup_id_x 1",
                "  .amdhsa_float_denorm_mode_32 3", "  .amdhsa_float_denorm_mode_16_64 3",
                ".end_amdhsa_kernel"]
    return "\n".join(out) + "\n"

if __name__ == "__main__":
    ks = [("prep_kernel", k0("prep"), 96, 48, 96)]
    ls = [("prep_kernel", (256,1,1), (512,1,1), 4096)]
    open("t0.s", "w").write(assemble(ks, ls))
    import build
    print(build.build("t0.s"))
```

```python
import sys
from asmgen import *
from kern import *

IMG = 8448
def k2(name, DW=12, DA=12, BAR=4, stamps=False):
    p = Prog(); e = p.e
    st = Stamps(p, stamps)
    U = 16
    def acc(nt, rt): return 8*nt + 4*rt
    V_PRE = 64
    V_TID, V_TR0, V_TR1, V_TR2, V_DW, V_XO, V_T0, V_T1, V_T2, V_T3, V_OUT = 100, 101, 102, 103, 104, 105, 106, 107, 108, 109, 110
    def wfrag(nt): return 4*nt
    def afrag(step, rt): return 32 + 8*(step % U) + 4*rt
    S_WAVE = 3
    SRD_W, SRD_WS, SRD_X, SRD_OUT, SRD_DBG = 8, 12, 16, 20, 24
    S_A, S_W, S_MB, S_T0, S_T1, S_ROLE, S_RT, S_CT, S_CNT, S_WMAX, S_G, S_PAIR = 28, 29, 30, 31, 32, 33, 34, 35, 36, 37, 38, 39
    e("s_cmp_ge_u32 s2, 256")
    e("s_cbranch_scc1 %s_done" % name)
    st.stamp(True); st.stamp()
    e("s_load_dwordx2 s[4:5], s[0:1], %d" % KA['wo'])
    e("s_load_dwordx4 s[40:43], s[0:1], %d" % KA['w2'])
    e("s_load_dwordx4 s[44:47], s[0:1], %d" % KA['out'])
    e("s_load_dwordx2 s[6:7], s[0:1], %d" % KA['ws'])
    e("s_load_dwordx2 s[48:49], s[0:1], %d" % KA['x'])
    e("v_lshrrev_b32 v%d, 6, v0" % V_T0)
    e("v_and_b32 v%d, 63, v0" % V_TID)
    e("v_readfirstlane_b32 s%d, v%d" % (S_WAVE, V_T0))
    e("s_bfe_u32 s%d, s2, 0x10002" % S_ROLE)
    e("s_and_b32 s%d, s2, 3" % S_T0)
    e("s_lshr_b32 s%d, s2, 3" % S_T1)
    e("s_lshr_b32 s%d, s%d, 1" % (S_RT, S_T0))
    e("s_lshl_b32 s%d, s%d, 3" % (S_RT, S_RT))
    e("s_lshr_b32 s%d, s%d, 2" % (S_CT, S_T1))
    e("s_add_u32 s%d, s%d, s%d" % (S_RT, S_RT, S_CT))
    e("s_and_b32 s%d, s%d, 1" % (S_CT, S_T0))
    e("s_lshl_b32 s%d, s%d, 2" % (S_CT, S_CT))
    e("s_and_b32 s%d, s%d, 3" % (S_T1, S_T1))
    e("s_add_u32 s%d, s%d, s%d" % (S_CT, S_CT, S_T1))
    e("s_lshl_b32 s%d, s%d, 3" % (S_PAIR, S_RT))
    e("s_add_u32 s%d, s%d, s%d" % (S_PAIR, S_PAIR, S_CT))
    e("v_lshrrev_b32 v%d, 4, v%d" % (V_T0, V_TID))
    e("v_and_b32 v%d, 15, v%d" % (V_T1, V_TID))
    e("v_lshlrev_b32 v%d, 14, v%d" % (V_DW, V_T0))
    e("v_lshl_add_u32 v%d, v%d, 4, v%d" % (V_DW, V_T1, V_DW))
    e("v_and_b32 v%d, 1, v%d" % (V_T2, V_T0))
    e("v_lshlrev_b32 v%d, 2, v%d" % (V_T2, V_T2))
    e("v_bfe_u32 v%d, v%d, 2, 2" % (V_T3, V_TID))
    e("v_add_u32 v%d, v%d, v%d" % (V_T2, V_T2, V_T3))
    e("v_mul_u32_u24 v%d, 1056, v%d" % (V_TR0, V_T2))
    e("v_lshrrev_b32 v%d, 1, v%d" % (V_T2, V_T0))
    e("v_lshl_add_u32 v%d, v%d, 8, v%d" % (V_TR0, V_T2, V_TR0))
    e("v_and_b32 v%d, 3, v%d" % (V_T2, V_TID))
    e("v_lshl_add_u32 v%d, v%d, 3, v%d" % (V_TR0, V_T2, V_TR0))
    e("v_add_u32 v%d, %d, v%d" % (V_TR1, 7*IMG, V_TR0))
    e("v_add_u32 v%d, %d, v%d" % (V_TR2, 14*IMG, V_TR0))
    e("v_lshlrev_b32 v%d, 4, v%d" % (V_XO, V_TID))
    e("v_lshlrev_b32 v%d, 11, v%d" % (V_OUT, V_T1))
    e("v_lshl_add_u32 v%d, v%d, 3, v%d" % (V_OUT, V_T0, V_OUT))
    e("s_waitcnt lgkmcnt(0)")
    def sel(d, x, y):
        e("s_mov_b32 s%d, 0x%x" % (d, y))
        e("s_cselect_b32 s%d, 0x%x, s%d" % (d, x, d))
    S_NU, S_AB = 51, 55
    e("s_cmp_eq_u32 s%d, 1" % S_ROLE)
    e("s_cselect_b32 s%d, s4, s40" % SRD_W)
    e("s_cselect_b32 s%d, s5, s41" % (SRD_W+1))
    sel(SRD_W+2, 8 << 20, 7 << 20)
    e("s_mov_b32 s%d, 0x20000" % (SRD_W+3))
    sel(S_NU, 128*2048, 112*2048)
    sel(S_AB, WS_OF, WS_HF)
    e("s_cselect_b32 s%d, 8, 7" % S_CNT)
    sel(S_WMAX, 127*32*2048, 111*32*2048)
    srd(p, SRD_WS, 6, WS_SIZE)
    srd(p, SRD_OUT, 44, 4 << 20)
    srd(p, SRD_DBG, 46, 256)
    e("s_lshl_b32 s%d, s%d, 2" % (S_T0, S_RT))
    e("s_add_u32 s%d, s%d, s%d" % (S_T0, S_T0, S_WAVE))
    e("s_mul_i32 s%d, s%d, s%d" % (S_A, S_T0, S_NU))
    e("s_add_u32 s%d, s%d, s%d" % (S_A, S_A, S_AB))
    e("s_lshl_b32 s%d, s%d, 8" % (S_W, S_CT))
    e("s_lshl_b32 s%d, s%d, 12" % (S_T0, S_WAVE))
    e("s_add_u32 s%d, s%d, s%d" % (S_W, S_W, S_T0))
    e("s_add_u32 s%d, s%d, s%d" % (S_WMAX, S_WMAX, S_W))
    e("s_mul_i32 s%d, s%d, %d" % (S_MB, S_WAVE, 2*1056))
    e("s_lshl_b32 s%d, s%d, 15" % (S_G, S_PAIR))
    e("s_lshl_b32 s%d, s%d, 13" % (S_T0, S_WAVE))
    e("s_add_u32 s%d, s%d, s%d" % (S_G, S_G, S_T0))
    e("s_add_u32 s%d, s%d, 0x%x" % (S_G, S_G, WS_G))
    S_XB = 50
    e("s_cmp_eq_u32 s%d, 1" % S_ROLE)
    e("s_cbranch_scc0 %s_preg" % name)
    srd(p, SRD_X, 48, 4 << 20)
    e("s_lshl_b32 s%d, s%d, 18" % (S_XB, S_RT))
    e("s_lshl_b32 s%d, s%d, 16" % (S_T0, S_WAVE))
    e("s_add_u32 s%d, s%d, s%d" % (S_XB, S_XB, S_T0))
    e("s_lshl_b32 s%d, s%d, 8" % (S_T0, S_CT))
    e("s_add_u32 s%d, s%d, s%d" % (S_XB, S_XB, S_T0))
    e("s_add_u32 s%d, s%d, 32768" % (S_T0, S_XB))
    for nt in range(8):
        e("buffer_load_dwordx2 v[%d:%d], v%d, s[%d:%d], s%d offen offset:%d" % (V_PRE+4*nt, V_PRE+4*nt+1, V_OUT, SRD_X, SRD_X+3, S_XB, nt*32), tag="pre")
        e("buffer_load_dwordx2 v[%d:%d], v%d, s[%d:%d], s%d offen offset:%d" % (V_PRE+4*nt+2, V_PRE+4*nt+3, V_OUT, SRD_X, SRD_X+3, S_T0, nt*32), tag="pre")
    e("s_branch %s_prej" % name)
    e("%s_preg:" % name)
    srd(p, SRD_X, 42, 2048)
    e("s_lshl_b32 s%d, s%d, 8" % (S_XB, S_CT))
    e("v_lshrrev_b32 v%d, 4, v%d" % (V_T0, V_TID))
    e("v_lshlrev_b32 v%d, 3, v%d" % (V_T0, V_T0))
    for nt in range(8):
        e("buffer_load_dwordx2 v[%d:%d], v%d, s[%d:%d], s%d offen offset:%d" % (V_PRE+4*nt, V_PRE+4*nt+1, V_T0, SRD_X, SRD_X+3, S_XB, nt*32), tag="pre")
        e("buffer_load_dwordx2 v[%d:%d], v%d, s[%d:%d], s%d offen offset:%d" % (V_PRE+4*nt+2, V_PRE+4*nt+3, V_T0, SRD_X, SRD_X+3, S_XB, nt*32), tag="pre")
    e("%s_prej:" % name)
    def dma_step(slot):
        b = slot*IMG
        return [["s_add_u32 m0, s%d, %d" % (S_MB, b), "buffer_load_dwordx4 v%d, s[%d:%d], s%d offen lds" % (V_DW, SRD_W, SRD_W+3, S_W)],
                ["s_add_u32 m0, s%d, %d" % (S_MB, b+1056), "s_add_u32 s%d, s%d, 2048" % (S_T0, S_W), "buffer_load_dwordx4 v%d, s[%d:%d], s%d offen lds" % (V_DW, SRD_W, SRD_W+3, S_T0)]]
    adv_w = ["s_add_u32 s%d, s%d, %d" % (S_W, S_W, 32*2048), "s_min_u32 s%d, s%d, s%d" % (S_W, S_W, S_WMAX)]
    def a_loads(step):
        return ["buffer_load_dwordx4 a[%d:%d], v%d, s[%d:%d], s%d offen offset:%d" % (afrag(step, rt), afrag(step, rt)+3, V_XO, SRD_WS, SRD_WS+3, S_A, rt*1024) for rt in range(2)]
    adv_a = "s_add_u32 s%d, s%d, 2048" % (S_A, S_A)
    def tr_reads(step, nt):
        slot = step % U
        v, o = (V_TR0, slot) if slot < 7 else (V_TR1, slot-7) if slot < 14 else (V_TR2, slot-14)
        return ["ds_read_b64_tr_b16 a[%d:%d], v%d offset:%d" % (wfrag(nt)+2*t, wfrag(nt)+2*t+1, v, o*IMG + nt*32 + t*512) for t in range(2)]
    DM = max(DW, DA)
    for s in range(DM):
        if s < DW:
            for grp in dma_step(s):
                for t in grp: e(t, tag=("w", s) if t.startswith("buffer") else None)
            for t in adv_w: e(t)
        if s < DA:
            for t in a_loads(s): e(t)
            e(adv_a)
        if s == 1:
            for i in range(64): e("v_mov_b32 v%d, 0" % i)
    st.stamp()
    p.waitvm(("w", 0))
    e("s_barrier")
    for nt in range(8):
        for t in tr_reads(0, nt): e(t)
    st.stamp()
    p.loop_begin("g2")
    e("%s_g2:" % name)
    for s in range(U):
        if s % BAR == 0:
            p.waitvm(("w", (s+BAR) % U))
            e("s_barrier")
        mf = []
        for nt in range(8):
            for rt in range(2):
                a = acc(nt, rt)
                mf.append(Ins("v_mfma_f32_16x16x32_bf16 v[%d:%d], a[%d:%d], a[%d:%d], v[%d:%d]" % (a, a+3, wfrag(nt), wfrag(nt)+3, afrag(s, rt), afrag(s, rt)+3, a, a+3)))
        fill = []
        for nt in range(8):
            r = tr_reads(s+1, nt)
            fill.append((min(2*nt+1, 15), Ins(r[0])))
            fill.append((min(2*nt+2, 15), Ins(r[1])))
        dm = dma_step((s + DW) % U)
        posd = [2, 8]
        for q, grp in enumerate(dm):
            for k_, t in enumerate(grp):
                fill.append((posd[q] - (len(grp)-1-k_), Ins(t, tag=("w", (s+DW) % U) if t.startswith("buffer") else None)))
        for q, t in enumerate(adv_w): fill.append((10+q, Ins(t)))
        for q, t in enumerate(a_loads(s + DA)): fill.append((4+8*q, Ins(t)))
        fill.append((14, Ins(adv_a)))
        fill.sort(key=lambda x: x[0])
        for ins in weave(mf, fill): p.add(ins)
    e("s_sub_u32 s%d, s%d, 1" % (S_CNT, S_CNT))
    e("s_cmp_lg_u32 s%d, 0" % S_CNT)
    e("s_cbranch_scc1 %s_g2" % name)
    p.loop_end()
    st.stamp()
    e("s_waitcnt vmcnt(0) lgkmcnt(0)")
    e("s_cmp_eq_u32 s%d, 1" % S_ROLE)
    e("s_cbranch_scc1 %s_epis" % name)
    LOG2E = f2u(1.4426950408889634)
    def rnd(a, b, t):
        e("v_cvt_pk_bf16_f32 v%d, v%d, v%d" % (t, a, b))
        e("v_lshlrev_b32 v%d, 16, v%d" % (a, t))
        e("v_and_b32 v%d, 0xffff0000, v%d" % (b, t))
    e("s_mov_b32 s52, 0x%x" % LOG2E)
    for nt in range(8):
        b = V_PRE + 4*nt
        e("v_lshlrev_b32 v96, 16, v%d\nv_and_b32 v97, 0xffff0000, v%d\nv_lshlrev_b32 v98, 16, v%d\nv_and_b32 v99, 0xffff0000, v%d" % (b, b, b+1, b+1))
        for rt in range(2):
            a = acc(nt, rt)
            rnd(a, a+1, V_T0); rnd(a+2, a+3, V_T0)
            for r in range(4): e("v_add_f32 v%d, v%d, v%d" % (a+r, a+r, 96+r))
            rnd(a, a+1, V_T0); rnd(a+2, a+3, V_T0)
            for r in range(4): e("v_mul_f32 v%d, s52, v%d" % (112+r, a+r))
            for r in range(4): e("v_exp_f32 v%d, -v%d" % (112+r, 112+r))
            for r in range(4): e("v_add_f32 v%d, 1.0, v%d" % (112+r, 112+r))
            for r in range(4): e("v_rcp_f32 v%d, v%d" % (112+r, 112+r))
            for r in range(4): e("v_mul_f32 v%d, v%d, v%d" % (a+r, a+r, 112+r))
    for u in range(4):
        for rt in range(2):
            a, b = acc(2*u, rt), acc(2*u+1, rt)
            d = 116 + 4*((2*u+rt) % 4)
            e("v_cvt_pk_bf16_f32 v%d, v%d, v%d" % (d, a, a+1))
            e("v_cvt_pk_bf16_f32 v%d, v%d, v%d" % (d+1, a+2, a+3))
            e("v_cvt_pk_bf16_f32 v%d, v%d, v%d" % (d+2, b, b+1))
            e("v_cvt_pk_bf16_f32 v%d, v%d, v%d" % (d+3, b+2, b+3))
            e("s_add_u32 s%d, s%d, %d" % (S_T0, S_G, (2*u+rt)*1024))
            e("buffer_store_dwordx4 v[%d:%d], v%d, s[%d:%d], s%d offen sc1" % (d, d+3, V_XO, SRD_WS, SRD_WS+3, S_T0))
    e("s_waitcnt vmcnt(0)")
    e("s_barrier")
    e("s_cmp_lg_u32 s%d, 0" % S_WAVE)
    e("s_cbranch_scc1 %s_fin" % name)
    e("s_lshr_b32 s%d, s%d, 1" % (S_T0, S_PAIR))
    e("s_lshl_b32 s%d, s%d, 2" % (S_T0, S_T0))
    e("s_and_b32 s%d, s%d, 1" % (S_T1, S_PAIR))
    e("s_lshl_b32 s%d, s%d, 4" % (S_T1, S_T1))
    e("s_lshl_b32 s%d, 1, s%d" % (S_T1, S_T1))
    e("s_mov_b64 exec, 1")
    e("v_mov_b32 v%d, s%d" % (V_T0, S_T1))
    e("v_mov_b32 v%d, 0" % V_T1)
    e("buffer_atomic_add v%d, v%d, s[%d:%d], s%d offen sc1" % (V_T0, V_T1, SRD_DBG, SRD_DBG+3, S_T0))
    e("s_waitcnt vmcnt(0)")
    e("s_branch %s_fin" % name)
    e("%s_epis:" % name)
    e("s_cmp_lg_u32 s%d, 0" % S_WAVE)
    e("s_cbranch_scc1 %s_polled" % name)
    e("s_lshr_b32 s%d, s%d, 1" % (S_T0, S_PAIR))
    e("s_lshl_b32 s%d, s%d, 2" % (S_T0, S_T0))
    e("s_and_b32 s%d, s%d, 1" % (S_T1, S_PAIR))
    e("s_lshl_b32 s%d, s%d, 4" % (S_T1, S_T1))
    e("s_lshl_b32 s%d, 1, s%d" % (S_T1, S_T1))
    e("v_mov_b32 v%d, 0" % V_T1)
    e("s_mov_b32 s53, 0x400000")
    e("%s_poll:" % name)
    e("buffer_load_dword v%d, v%d, s[%d:%d], s%d offen sc1" % (V_T0, V_T1, SRD_DBG, SRD_DBG+3, S_T0))
    e("s_waitcnt vmcnt(0)")
    e("v_readfirstlane_b32 s54, v%d" % V_T0)
    e("s_and_b32 s54, s54, s%d" % S_T1)
    e("s_cbranch_scc1 %s_polled" % name)
    e("s_sleep 2")
    e("s_sub_u32 s53, s53, 1")
    e("s_cmp_lg_u32 s53, 0")
    e("s_cbranch_scc1 %s_poll" % name)
    e("%s_polled:" % name)
    e("s_barrier")
    st.stamp()
    for k_ in range(8):
        e("s_add_u32 s%d, s%d, %d" % (S_T0, S_G, k_*1024))
        e("buffer_load_dwordx4 v[%d:%d], v%d, s[%d:%d], s%d offen sc1" % (128+4*k_, 128+4*k_+3, V_XO, SRD_WS, SRD_WS+3, S_T0))
    e("s_add_u32 s%d, s%d, 32768" % (S_T1, S_XB))
    for u in range(4):
        for rt in range(2):
            gq = 128 + 4*(2*u+rt)
            for half in range(2):
                nt = 2*u + half
                a = acc(nt, rt)
                xr = V_PRE + 4*nt + 2*rt
                rnd(a, a+1, V_T0); rnd(a+2, a+3, V_T0)
                e("v_lshlrev_b32 v112, 16, v%d\nv_and_b32 v113, 0xffff0000, v%d\nv_lshlrev_b32 v114, 16, v%d\nv_and_b32 v115, 0xffff0000, v%d" % (gq+2*half, gq+2*half, gq+2*half+1, gq+2*half+1))
                for r in range(4): e("v_mul_f32 v%d, v%d, v%d" % (a+r, a+r, 112+r))
                rnd(a, a+1, V_T0); rnd(a+2, a+3, V_T0)
                e("v_lshlrev_b32 v112, 16, v%d\nv_and_b32 v113, 0xffff0000, v%d\nv_lshlrev_b32 v114, 16, v%d\nv_and_b32 v115, 0xffff0000, v%d" % (xr, xr, xr+1, xr+1))
                for r in range(4): e("v_add_f32 v%d, v%d, v%d" % (a+r, a+r, 112+r))
                e("v_cvt_pk_bf16_f32 v%d, v%d, v%d" % (a, a, a+1))
                e("v_cvt_pk_bf16_f32 v%d, v%d, v%d" % (a+1, a+2, a+3))
                e("buffer_store_dwordx2 v[%d:%d], v%d, s[%d:%d], s%d offen offset:%d" % (a, a+1, V_OUT, SRD_OUT, SRD_OUT+3, S_XB if rt == 0 else S_T1, nt*32))
    e("%s_fin:" % name)
    if stamps:
        e("s_waitcnt vmcnt(0)")
        e("s_mov_b64 exec, -1")
        st.n = 6
        st.stamp(); st.stamp(True)
        st.dump(SRD_WS, V_T0, 2)
    e("%s_done:" % name)
    e("s_endpgm")
    return p

if __name__ == "__main__":
    from k1 import k1, STEP_LDS
    stamps = "stamps" in sys.argv
    def arg(n, d):
        for a in sys.argv:
            if a.startswith(n + "="): return int(a[len(n)+1:])
        return d
    ks = [("prep_kernel", k0("prep", stamps=stamps), 96, 102, 96),
          ("pa_kernel", k1("pa", D=3, stamps=stamps), 512, 102, 256),
          ("pb_kernel", k2("pb", DW=arg("DW", 12), DA=arg("DA", 12), BAR=arg("BAR", 4), stamps=stamps), 512, 102, 256)]
    ls = [("prep_kernel", (256,1,1), (512,1,1), 4096), ("pa_kernel", (256,1,1), (256,1,1), 8*STEP_LDS), ("pb_kernel", (256,1,1), (256,1,1), 16*IMG)]
    out = arg("o", None)
    fn = "t2.s"
    hdr = open("recurrent_scan__sliding_block_cached__dense_activation_squared_relu__prompt.s.ref").read().split("; Override")[0]
    open(fn, "w").write(assemble(ks, ls, header=hdr))
    import build
    print(build.build(fn))
```

```python
import re

def regs_of(tok):
    tok = tok.strip()
    neg = tok.lstrip('-')
    m = re.fullmatch(r'abs\((.*)\)|\|(.*)\|', neg)
    if m: neg = (m.group(1) or m.group(2))
    m = re.fullmatch(r'([vas])(\d+)', neg)
    if m: return [(m.group(1), int(m.group(2)))]
    m = re.fullmatch(r'([vas])\[(\d+):(\d+)\]', neg)
    if m: return [(m.group(1), i) for i in range(int(m.group(2)), int(m.group(3))+1)]
    if neg == 'vcc': return [('x','vcc')]
    if neg in ('vcc_lo','vcc_hi'): return [('x','vcc')]
    if neg == 'exec': return [('x','exec')]
    if neg == 'm0': return [('x','m0')]
    if neg == 'scc': return [('x','scc')]
    return []

TRANS = ('v_exp_f32','v_log_f32','v_rcp_f32','v_rsq_f32','v_sqrt_f32','v_sin_f32','v_cos_f32','v_rcp_iflag_f32')
SALU_NODST = ('s_cmp_','s_cbranch','s_branch','s_waitcnt','s_barrier','s_nop','s_setprio','s_endpgm','s_sleep','s_bitcmp')
SCC_W = ('s_add_','s_addc_','s_sub_','s_subb_','s_cmp_','s_and_','s_or_','s_xor_','s_lshl_','s_lshr_','s_ashr_','s_andn2_','s_orn2_','s_not_','s_min_','s_max_','s_addk_','s_bitcmp','s_bfe_','s_and_saveexec','s_or_saveexec','s_mul_hi' )
SCC_R = ('s_addc_','s_subb_','s_cselect_','s_cbranch_scc','s_cmov')

class Ins:
    __slots__ = ('text','op','kind','reads','writes','tag','lds','nops','mfma_passes','srcC','srcAB','store_wide','store_data','note','loadregs')
    def __init__(self, text, tag=None):
        self.text = text.strip()
        self.tag = tag
        t = self.text.split(';')[0].strip()
        parts = t.split(None, 1)
        self.op = op = parts[0]
        rest = parts[1] if len(parts) > 1 else ''
        ops = [o.strip() for o in re.split(r',(?![^\[]*\])', rest)] if rest else []
        mods = []
        if ops:
            l = ops[-1].split()
            if l:
                ops[-1] = l[0]; mods = l[1:]
        self.reads = set(); self.writes = set(); self.lds = False; self.nops = 0
        self.mfma_passes = 0; self.srcC = set(); self.srcAB = set(); self.store_wide = False; self.store_data = set(); self.loadregs = set()
        R = lambda toks: set(r for tk in toks for r in regs_of(tk))
        if op.endswith(':') and not rest:
            self.kind = 'label'
        elif op.startswith('.'):
            self.kind = 'dir'
        elif op.startswith('v_mfma'):
            self.kind = 'mfma'
            self.writes = R(ops[:1]); self.srcAB = R(ops[1:3]); self.srcC = R(ops[3:4])
            self.reads = self.srcAB | self.srcC | {('x','exec')}
            self.mfma_passes = 4 if '16x16x32' in op else 8 if '32x32x16' in op else None
            assert self.mfma_passes
        elif op.startswith('v_'):
            self.kind = 'trans' if op.replace('_e32','').replace('_e64','') in TRANS else 'valu'
            if op.startswith('v_cmp'):
                self.writes = R(ops[:1]); self.reads = R(ops[1:])
                if op.startswith('v_cmpx'): self.writes.add(('x','exec'))
            elif op.startswith(('v_add_co','v_sub_co','v_addc_co','v_subb_co','v_subrev_co')):
                self.writes = R(ops[:2]); self.reads = R(ops[2:])
            elif op.startswith(('v_permlane16_swap','v_permlane32_swap','v_swap')):
                self.writes = R(ops[:2]); self.reads = R(ops[:2])
            else:
                self.writes = R(ops[:1]); self.reads = R(ops[1:])
                if op.startswith(('v_fmac','v_dot2c','v_pk_fmac','v_writelane','v_mac')): self.reads |= self.writes
                if op.startswith('v_cndmask') and len(ops) == 3: self.reads.add(('x','vcc'))
                if 'dpp' in op or any(m.startswith(('row_','quad_perm','wave_','bank_mask')) for m in mods):
                    self.kind = 'dpp'; self.reads |= self.writes
            self.reads.add(('x','exec'))
        elif op.startswith('s_load') or op.startswith('s_buffer_load') or op in ('s_memtime','s_memrealtime'):
            self.kind = 'smem'
            self.writes = R(ops[:1]); self.reads = R(ops[1:]); self.loadregs = set(self.writes)
        elif op == 's_waitcnt':
            self.kind = 'wait'
        elif op == 's_nop':
            self.kind = 'nop'; self.nops = int(ops[0], 0)
        elif op == 's_barrier':
            self.kind = 'barrier'
        elif op.startswith(('s_branch','s_cbranch','s_endpgm','s_setpc')):
            self.kind = 'branch'
            if op.startswith('s_cbranch_scc'): self.reads = {('x','scc')}
            if op.startswith('s_cbranch_vcc'): self.reads = {('x','vcc')}
            if op.startswith('s_cbranch_exec'): self.reads = {('x','exec')}
        elif op.startswith('s_'):
            self.kind = 'salu'
            if op.startswith(SALU_NODST): self.reads = R(ops)
            else:
                self.writes = R(ops[:1]); self.reads = R(ops[1:])
                if op.startswith(('s_addk','s_mulk','s_cmov')): self.reads |= self.writes
            if op.startswith(SCC_W): self.writes.add(('x','scc'))
            if op.startswith(SCC_R): self.reads.add(('x','scc'))
            if 'saveexec' in op: self.writes.add(('x','exec')); self.reads.add(('x','exec'))
            if op == 's_getreg_b32': self.reads = set()
        elif op.startswith(('buffer_load','global_load')):
            if 'lds' in mods or op.startswith('global_load_lds'):
                self.kind = 'dma'; self.reads = R(ops) | {('x','m0')}
            else:
                self.kind = 'vload'; self.writes = R(ops[:1]); self.reads = R(ops[1:]); self.loadregs = set(self.writes)
                if 'd16' in op: pass
            self.reads.add(('x','exec'))
        elif op.startswith(('buffer_store','global_store')):
            self.kind = 'vstore'; self.reads = R(ops) | {('x','exec')}
            data = ops[0] if op.startswith('buffer') else ops[1]
            self.store_data = R([data])
            self.store_wide = op.endswith(('x3','x4'))
        elif op.startswith(('buffer_atomic','global_atomic')):
            self.kind = 'vstore'; self.reads = R(ops) | {('x','exec')}
            if 'sc0' in mods:
                self.kind = 'vload'; self.writes = R(ops[:1]); self.loadregs = set(self.writes)
        elif op.startswith('buffer_inv') or op.startswith('buffer_wbl2'):
            self.kind = 'vstore'
        elif op.startswith('ds_read') or op.startswith('ds_bpermute') or op.startswith('ds_swizzle'):
            self.kind = 'dsread'; self.writes = R(ops[:1]); self.reads = R(ops[1:]) | {('x','exec')}; self.loadregs = set(self.writes)
        elif op.startswith('ds_write'):
            self.kind = 'dswrite'; self.reads = R(ops) | {('x','exec')}
        else:
            raise ValueError("unknown instruction: " + text)
    def states(self):
        if self.kind in ('label','dir'): return 0
        if self.kind == 'nop': return self.nops + 1
        return 1

class Loop:
    def __init__(self, label, body_items, tail):
        self.label = label; self.items = body_items; self.tail = tail

class Prog:
    def __init__(self):
        self.items = []
        self.stack = [self.items]
    def e(self, text, tag=None):
        for l in text.split('\n'):
            l = l.strip()
            if not l or l.startswith(';'): continue
            self.stack[-1].append(Ins(l, tag))
    def add(self, ins):
        self.stack[-1].append(ins)
    def waitvm(self, tag):
        i = Ins('s_waitcnt vmcnt(0)'); i.kind = 'waittag'; i.tag = tag; self.stack[-1].append(i)
    def drain(self):
        self.e('s_waitcnt vmcnt(0) lgkmcnt(0)')
    def loop_begin(self, label):
        l = Loop(label, [], None)
        self.stack[-1].append(l)
        self.stack.append(l.items)
        return l
    def loop_end(self):
        self.stack.pop()

VMK = ('vload','vstore','dma')
LGK = ('dsread','dswrite','smem')

def parse_wait(text):
    vm = re.search(r'vmcnt\((\d+)\)', text); lg = re.search(r'lgkmcnt\((\d+)\)', text)
    return (int(vm.group(1)) if vm else None, int(lg.group(1)) if lg else None)

LG_SLACK = [0]
class WState:
    def __init__(self):
        self.vm = []
        self.lg = []
    def copy(self):
        s = WState(); s.vm = list(self.vm); s.lg = list(self.lg); return s
    def apply_wait(self, vm, lg):
        if vm is not None and len(self.vm) > vm: self.vm = self.vm[len(self.vm)-vm:] if vm else []
        if lg is not None:
            if any(i.kind == 'smem' for i in self.lg):
                if lg == 0: self.lg = []
            elif len(self.lg) > lg: self.lg = self.lg[len(self.lg)-lg:] if lg else []
    def need(self, ins):
        vm = lg = None
        touch = ins.reads | ins.writes
        if ins.kind == 'waittag':
            for p, o in enumerate(self.vm):
                if o.tag == ins.tag:
                    n = len(self.vm) - 1 - p
                    vm = n if vm is None else min(vm, n)
            return vm, None
        for p, o in enumerate(self.vm):
            if o.loadregs & touch:
                if ins.kind == 'vload' and not (o.loadregs & ins.reads) and ins.tag == 'pf' and o.tag == 'pf':
                    continue
                n = len(self.vm) - 1 - p
                vm = n if vm is None else min(vm, n)
        for p, o in enumerate(self.lg):
            if o.loadregs & touch:
                n = len(self.lg) - 1 - p
                if any(x.kind == 'smem' for x in self.lg): n = 0
                if n > 0 and ins.kind == 'mfma': n = max(0, min(n, 15) - LG_SLACK[0])
                lg = n if lg is None else min(lg, n)
        return vm, lg
    def issue(self, ins):
        if ins.tag == 'optional': return
        if ins.kind in VMK: self.vm.append(ins)
        elif ins.kind in LGK: self.lg.append(ins)

def flatten(items):
    out = []
    for it in items:
        if isinstance(it, Loop): out += flatten(it.items)
        else: out.append(it)
    return out

def insert_waits(items, st):
    out = []
    for it in items:
        if isinstance(it, Loop):
            body = it.items
            assert not any(isinstance(b, Loop) for b in body), "nested loops: not supported in wait pass"
            req = [(None, None)]*len(body)
            def mn(a, b): return b if a is None else a if b is None else min(a, b)
            for rounds in range(4):
                s = st.copy(); changed = False
                for p in range(3):
                    for k, ins in enumerate(body):
                        if ins.kind == 'wait':
                            s.apply_wait(*parse_wait(ins.text)); continue
                        v, l = s.need(ins)
                        nv, nl = mn(req[k][0], v), mn(req[k][1], l)
                        if (nv, nl) != req[k]: req[k] = (nv, nl); changed = True
                        s.apply_wait(None if req[k][0] is None else min(req[k][0], 63), None if req[k][1] is None else min(req[k][1], 15))
                        s.issue(ins)
                if not changed: break
            nb = []
            for k, ins in enumerate(body):
                v, l = req[k]
                if ins.kind == 'waittag':
                    if v is not None: nb.append(Ins('s_waitcnt vmcnt(%d)' % min(v, 63)))
                    continue
                if v is not None or l is not None:
                    t = 's_waitcnt' + (' vmcnt(%d)' % min(v, 63) if v is not None else '') + (' lgkmcnt(%d)' % min(l, 15) if l is not None else '')
                    nb.append(Ins(t))
                nb.append(ins)
            nl_ = Loop(it.label, nb, None)
            out.append(nl_)
            st = s
        else:
            ins = it
            if ins.kind == 'wait':
                st.apply_wait(*parse_wait(ins.text)); out.append(ins); continue
            v, l = st.need(ins)
            if v is not None: v = min(v, 63)
            if l is not None: l = min(l, 15)
            if ins.kind == 'waittag':
                if v is not None:
                    out.append(Ins('s_waitcnt vmcnt(%d)' % v)); st.apply_wait(v, None)
                continue
            if v is not None or l is not None:
                t = 's_waitcnt' + (' vmcnt(%d)' % v if v is not None else '') + (' lgkmcnt(%d)' % l if l is not None else '')
                out.append(Ins(t)); st.apply_wait(v, l)
            out.append(ins); st.issue(ins)
    return out, st

def isv(r): return r[0] in ('v','a')

def hazard_need(prev, ins):
    n = 0
    VAL = ('valu','trans','dpp')
    pw = prev.writes
    if prev.kind in VAL:
        vw = set(r for r in pw if isv(r))
        sw = set(r for r in pw if r[0] == 's' or r == ('x','vcc'))
        if ins.kind == 'mfma' and (vw & ins.reads): n = max(n, 2)
        if ins.kind == 'mfma' and ('x','exec') in pw: n = max(n, 4)
        if ins.op.startswith(('v_readfirstlane','v_readlane')) and (vw & ins.reads): n = max(n, 1)
        if ins.op.startswith('v_permlane') and (vw & ins.reads): n = max(n, 2)
        if ins.kind == 'dpp' and (vw & ins.reads): n = max(n, 2)
        if ins.kind == 'dpp' and ('x','exec') in pw: n = max(n, 5)
        if prev.kind == 'trans' and ins.kind in ('valu','dpp','mfma') and (vw & ins.reads): n = max(n, 1)
        if sw & ins.reads:
            if ins.kind in ('vload','vstore','dma'): n = max(n, 5)
            elif ins.kind in VAL: n = max(n, 2)
            if ins.op.startswith(('v_readlane','v_writelane')): n = max(n, 4)
            if ins.kind in ('salu','branch','smem'): n = max(n, 4)
        if ('x','exec') in pw and ins.op.startswith(('v_readlane','v_readfirstlane','v_writelane','v_permlane')): n = max(n, 4)
    if prev.kind == 'salu':
        if ('x','m0') in pw and ins.kind == 'dma': n = max(n, 1)
    if prev.kind == 'mfma':
        P = prev.mfma_passes
        tab_valu = {4: 8, 8: 12}[P]; tab_ab = {4: 8, 8: 12}[P]; tab_ovl = {4: 6, 8: 10}[P]; war = {4: 3, 8: 7}[P]
        if ins.kind == 'mfma':
            if pw & ins.srcAB: n = max(n, tab_ab)
            if pw & ins.srcC:
                if ins.srcC == pw and ins.mfma_passes == P: pass
                else: n = max(n, tab_ovl)
            if (pw & ins.writes) and not (ins.srcC == pw and ins.writes == pw):
                n = max(n, tab_valu)
        else:
            if ins.kind in VAL + ('vload','vstore','dma','dsread','dswrite'):
                if pw & (ins.reads | ins.writes): n = max(n, tab_valu)
            if ins.kind in VAL and (prev.srcC & ins.writes): n = max(n, war)
    if prev.kind == 'vstore' and prev.store_wide:
        if prev.store_data & ins.writes:
            n = max(n, 2 if ins.kind in VAL else 1)
    return n

def fix_hazards(items, ctx=None):
    hist = list(ctx or [])
    out = []
    def place(ins, hist, outl):
        need = 0; dist = 0
        for p in reversed(hist):
            h = hazard_need(p, ins)
            if h > dist: need = max(need, h - dist)
            dist += p.states()
            if dist > 24: break
        while need > 0:
            k = min(need, 16)
            nop = Ins('s_nop %d' % (k-1)); outl.append(nop); hist.append(nop); need -= k
        outl.append(ins); hist.append(ins)
        if len(hist) > 64: del hist[:32]
    for it in items:
        if isinstance(it, Loop):
            body = it.items
            for rounds in range(3):
                nb = []; h = list(hist)
                for ins in body: place(ins, h, nb)
                nb2 = []; h2 = list(h)
                for ins in nb: place(ins, h2, nb2)
                body = nb2
                if len(nb2) == len(nb) : break
            out.append(Loop(it.label, body, None))
            hist = list(flatten(body))[-40:]
        else:
            place(it, hist, out)
    return out

def render(items):
    lines = []
    for it in items:
        if isinstance(it, Loop):
            lines += render(it.items)
        else:
            lines.append(('' if it.kind == 'label' else '    ') + it.text)
    return lines

def finish(prog, stats=False):
    LG_SLACK[0] = getattr(prog, 'lg_slack', 0)
    items, st = insert_waits(prog.items, WState())
    items = fix_hazards(items)
    if stats:
        fl = flatten(items)
        from collections import Counter
        c = Counter(i.kind for i in fl)
        print(dict(c))
    return render(items)

def weave(mfmas, fillers, start=0, per_gap=1):
    n = len(mfmas)
    slots = [[] for _ in range(n)]
    for (pos, f) in fillers:
        slots[max(0, min(n-1, pos))].append(f)
    out = []
    for i in range(n):
        out.append(mfmas[i]); out += slots[i]
    return out

class Sched:
    def __init__(self, mfmas):
        self.mf = mfmas
        self.n = len(mfmas)
        self.vec = [[] for _ in range(self.n)]
        self.pre = [[] for _ in range(self.n)]
        self.post = [[] for _ in range(self.n)]
    def free(self, lo, hi=None):
        hi = self.n - 1 if hi is None else min(hi, self.n - 1)
        for g in range(max(0, lo), hi + 1):
            if not self.vec[g]: return g
        return None
    def put(self, ins, lo, hi=None, force_gap=None):
        if isinstance(ins, str): ins = Ins(ins)
        g = force_gap if force_gap is not None else self.free(lo, hi)
        if g is None:
            hi2 = self.n - 1 if hi is None else min(hi, self.n - 1)
            lo2 = min(max(0, lo), hi2)
            g = min(range(lo2, hi2 + 1), key=lambda x: (len(self.vec[x]), -x))
        self.vec[g].append(ins)
        return g
    def scalar(self, ins, g, post=True):
        if isinstance(ins, str): ins = Ins(ins)
        g = max(0, min(self.n - 1, g))
        (self.post if post else self.pre)[g].append(ins)
    def emit(self, p):
        for i in range(self.n):
            p.add(self.mf[i])
            for x in self.pre[i] + self.vec[i] + self.post[i]: p.add(x)
```

```python
import sys
from asmgen import *
from kern import *

STEP_LDS = 16896
IMG = 8448
KV_SLOT = 16384

def k1(name, U=8, D=3, BAR=1, stamps=False, wnt=True, pf2=True, slack=6, force_slow=False, thr_log2=30):
    p = Prog(); e = p.e
    p.lg_slack = slack
    st = Stamps(p, stamps)
    assert D <= U - BAR
    def accQ(nt, rt): return 16*nt + 4*rt
    def accH(nt, rt): return 128 + 16*nt + 4*rt
    V_TID, V_TR, V_DQ, V_D1, V_XO, V_T0, V_T1, V_T2, V_T3, V_DQ2, V_D12 = 240, 241, 242, 243, 244, 245, 246, 247, 248, 249, 250
    def wfrag(nt): return 4*nt
    def xfrag(step, rt): return 60 + 16*(step % U) + 4*rt
    S_WAVE = 3
    SRD_WQ, SRD_W1, SRD_WS, SRD_B1, SRD_XN, SRD_K, SRD_V, SRD_PO, SRD_P2 = 8, 12, 16, 20, 24, 28, 32, 52, 56
    S_XN, S_Q, S_1, S_MB, S_T0, S_T1, S_CG, S_RG, S_CNT, S_H0, S_H6, S_KS, S_RP, S_OB, S_KVR, S_PF0, S_PF1 = 36, 37, 38, 39, 40, 41, 42, 43, 44, 45, 46, 47, 48, 49, 50, 51, 60
    NT = " nt" if wnt else ""
    e("s_cmp_ge_u32 s2, 256")
    e("s_cbranch_scc1 %s_done" % name)
    st.stamp(True); st.stamp()
    e("s_load_dwordx2 s[4:5], s[0:1], %d" % KA['wq'])
    e("s_load_dwordx4 s[88:91], s[0:1], %d" % KA['w1'])
    e("s_load_dwordx2 s[6:7], s[0:1], %d" % KA['ws'])
    e("s_load_dwordx2 s[92:93], s[0:1], %d" % KA['wo'])
    e("s_load_dwordx2 s[94:95], s[0:1], %d" % KA['w2'])
    e("v_lshrrev_b32 v%d, 6, v0" % V_T0)
    e("v_and_b32 v%d, 63, v0" % V_TID)
    e("v_readfirstlane_b32 s%d, v%d" % (S_WAVE, V_T0))
    e("s_and_b32 s%d, s2, 7" % S_T0)
    e("s_lshr_b32 s%d, s2, 3" % S_T1)
    e("s_lshl_b32 s%d, s%d, 2" % (S_CG, S_T0))
    e("s_and_b32 s%d, s%d, 3" % (S_T0, S_T1))
    e("s_add_u32 s%d, s%d, s%d" % (S_CG, S_CG, S_T0))
    e("s_lshr_b32 s%d, s%d, 2" % (S_T1, S_T1))
    e("s_lshl_b32 s%d, s%d, 2" % (S_RG, S_T1))
    e("s_add_u32 s%d, s%d, s%d" % (S_RG, S_RG, S_WAVE))
    e("v_lshrrev_b32 v%d, 4, v%d" % (V_T0, V_TID))
    e("v_and_b32 v%d, 15, v%d" % (V_T1, V_TID))
    e("v_lshlrev_b32 v%d, 16, v%d" % (V_DQ, V_T0))
    e("v_lshl_add_u32 v%d, v%d, 4, v%d" % (V_DQ, V_T1, V_DQ))
    e("v_add_u32 v%d, 2, v%d" % (V_T2, V_T1))
    e("v_and_b32 v%d, 1, v%d" % (V_T3, V_T1))
    e("v_cmp_gt_u32 vcc, 12, v%d" % V_T1)
    e("v_cndmask_b32 v%d, v%d, v%d, vcc" % (V_T2, V_T3, V_T2))
    e("s_bitcmp1_b32 s%d, 0" % S_CG)
    e("s_cselect_b64 vcc, -1, 0")
    e("v_cndmask_b32 v%d, v%d, v%d, vcc" % (V_T2, V_T1, V_T2))
    e("v_mul_u32_u24 v%d, %d, v%d" % (V_D1, 8*7168, V_T0))
    e("v_lshl_add_u32 v%d, v%d, 4, v%d" % (V_D1, V_T2, V_D1))
    e("v_add_u32 v%d, %d, v%d" % (V_DQ2, 8192-1056, V_DQ))
    e("v_add_u32 v%d, %d, v%d" % (V_D12, 7168-1056, V_D1))
    e("v_and_b32 v%d, 1, v%d" % (V_T2, V_T0))
    e("v_lshlrev_b32 v%d, 2, v%d" % (V_T2, V_T2))
    e("v_bfe_u32 v%d, v%d, 2, 2" % (V_T3, V_TID))
    e("v_add_u32 v%d, v%d, v%d" % (V_T2, V_T2, V_T3))
    e("v_mul_u32_u24 v%d, 1056, v%d" % (V_TR, V_T2))
    e("v_lshrrev_b32 v%d, 1, v%d" % (V_T2, V_T0))
    e("v_lshl_add_u32 v%d, v%d, 8, v%d" % (V_TR, V_T2, V_TR))
    e("v_and_b32 v%d, 3, v%d" % (V_T2, V_TID))
    e("v_lshl_add_u32 v%d, v%d, 3, v%d" % (V_TR, V_T2, V_TR))
    e("v_lshlrev_b32 v%d, 4, v%d" % (V_XO, V_TID))
    e("v_lshlrev_b32 v%d, 3, v%d" % (V_T0, V_T0))
    e("s_lshl_b32 s%d, s%d, 8" % (S_Q, S_CG))
    e("s_lshl_b32 s%d, s%d, 14" % (S_T0, S_WAVE))
    e("s_add_u32 s%d, s%d, s%d" % (S_Q, S_Q, S_T0))
    e("s_mul_i32 s%d, s%d, 224" % (S_1, S_CG))
    e("s_mul_i32 s%d, s%d, %d" % (S_T0, S_WAVE, 2*7168))
    e("s_add_u32 s%d, s%d, s%d" % (S_H0, S_1, S_T0))
    e("s_mul_i32 s%d, s%d, %d" % (S_MB, S_WAVE, 2*1056))
    e("s_mul_i32 s%d, s%d, %d" % (S_T0, S_RG, XN_RG))
    e("s_and_b32 s%d, s%d, 1" % (S_T1, S_CG))
    e("s_lshl_b32 s%d, s%d, 5" % (S_T1, S_T1))
    e("s_add_u32 s%d, s%d, s%d" % (S_H6, S_1, S_T1))
    e("s_bitcmp1_b32 s%d, 0" % S_CG)
    e("s_cselect_b32 s%d, 0, 192" % S_T1)
    e("s_add_u32 s%d, s%d, s%d" % (S_T1, S_1, S_T1))
    e("s_mov_b32 s%d, s%d" % (S_1, S_H0))
    e("s_mov_b32 s%d, 0" % S_XN)
    e("s_waitcnt lgkmcnt(0)")
    srd(p, SRD_B1, 90, 7168)
    for nt in range(6):
        e("buffer_load_dwordx2 v[%d:%d], v%d, s[%d:%d], s%d offen offset:%d" % (accH(nt, 3)+2, accH(nt, 3)+3, V_T0, SRD_B1, SRD_B1+3, S_H6, nt*32))
    e("buffer_load_dwordx2 v[%d:%d], v%d, s[%d:%d], s%d offen" % (accH(6, 3)+2, accH(6, 3)+3, V_T0, SRD_B1, SRD_B1+3, S_T1))
    srd(p, SRD_WQ, 4, 8 << 20)
    srd(p, SRD_W1, 88, 7 << 20)
    e("s_add_u32 s%d, s6, s%d" % (SRD_XN, S_T0))
    e("s_addc_u32 s%d, s7, 0" % (SRD_XN+1))
    e("s_mov_b32 s%d, 131072" % (SRD_XN+2))
    e("s_mov_b32 s%d, 0x20000" % (SRD_XN+3))
    def dma_step(slot):
        b = slot*STEP_LDS
        return [["s_add_u32 m0, s%d, %d" % (S_MB, b), "buffer_load_dwordx4 v%d, s[%d:%d], s%d offen%s lds" % (V_DQ, SRD_WQ, SRD_WQ+3, S_Q, NT)],
                ["buffer_load_dwordx4 v%d, s[%d:%d], s%d offen offset:1056%s lds" % (V_DQ2, SRD_WQ, SRD_WQ+3, S_Q, NT)],
                ["s_add_u32 m0, s%d, %d" % (S_MB, b+IMG), "buffer_load_dwordx4 v%d, s[%d:%d], s%d offen%s lds" % (V_D1, SRD_W1, SRD_W1+3, S_1, NT)],
                ["buffer_load_dwordx4 v%d, s[%d:%d], s%d offen offset:1056%s lds" % (V_D12, SRD_W1, SRD_W1+3, S_1, NT)]]
    adv_dma = ["s_add_u32 s%d, s%d, %d" % (S_Q, S_Q, 32*8192), "s_add_u32 s%d, s%d, %d" % (S_1, S_1, 32*7168)]
    def xn_loads(step):
        return ["buffer_load_dwordx4 a[%d:%d], v%d, s[%d:%d], s%d offen offset:%d" % (xfrag(step, rt), xfrag(step, rt)+3, V_XO, SRD_XN, SRD_XN+3, S_XN, rt*1024) for rt in range(4)]
    adv_xn = "s_add_u32 s%d, s%d, 4096" % (S_XN, S_XN)
    def tr_reads(step, nt):
        slot = step % U
        off = (slot % 4)*STEP_LDS + (IMG if nt >= 8 else 0) + ((nt - 8) if nt >= 8 else nt)*32
        return ["ds_read_b64_tr_b16 a[%d:%d], v%d offset:%d" % (wfrag(nt)+2*t, wfrag(nt)+2*t+1, V_TR, off + t*512) for t in range(2)]
    init = ["v_mov_b32 v%d, 0" % i for i in range(128)]
    for nt in range(7):
        b = accH(nt, 3)
        for rt in range(3):
            a = accH(nt, rt)
            init += ["v_lshlrev_b32 v%d, 16, v%d" % (a, b+2), "v_and_b32 v%d, 0xffff0000, v%d" % (a+1, b+2),
                     "v_lshlrev_b32 v%d, 16, v%d" % (a+2, b+3), "v_and_b32 v%d, 0xffff0000, v%d" % (a+3, b+3)]
        init += ["v_lshlrev_b32 v%d, 16, v%d" % (b, b+2), "v_and_b32 v%d, 0xffff0000, v%d" % (b+1, b+2),
                 "v_lshlrev_b32 v%d, 16, v%d" % (b+2, b+3), "v_mov_b32 v%d, v%d" % (b+3, accH(nt, 2)+3)]
    nvm = 8*D; per = -(-len(init)//nvm); ii = 0
    for s in range(D):
        seq = []
        for grp in dma_step(s): seq.append([(t, ("dma", s % U) if t.startswith("buffer") else None) for t in grp])
        for t in xn_loads(s): seq.append([(t, None)])
        for grp in seq:
            for t, tg in grp: e(t, tag=tg)
            for t in init[ii:ii+per]: e(t)
            ii += per
        for t in adv_dma: e(t)
        e(adv_xn)
    for t in init[ii:]: e(t)
    srd(p, SRD_WS, 6, WS_SIZE)
    st.stamp()
    p.waitvm(("dma", 0))
    e("s_barrier")
    for nt in range(15):
        for t in tr_reads(0, nt): e(t)
    e("s_mov_b32 s%d, %d" % (S_CNT, 32//U))
    st.stamp()
    p.loop_begin("g1")
    e("%s_g1:" % name)
    for s in range(U):
        if s % BAR == 0:
            p.waitvm(("dma", (s+BAR) % U))
            e("s_barrier")
        mf = []
        for nt in range(15):
            for rt in range(4):
                acc = accQ(nt, rt) if nt < 8 else accH(nt-8, rt)
                mf.append(Ins("v_mfma_f32_16x16x32_bf16 v[%d:%d], a[%d:%d], a[%d:%d], v[%d:%d]" % (acc, acc+3, wfrag(nt), wfrag(nt)+3, xfrag(s, rt), xfrag(s, rt)+3, acc, acc+3)))
        sc = Sched(mf)
        if (s+1) % 4 == 0 and U > 4:
            delta = 4*STEP_LDS if ((s+1) % U) // 4 == 1 else -(U-4)*STEP_LDS
            sc.put("v_add_u32 v%d, %d, v%d" % (V_TR, delta, V_TR) if delta > 0 else "v_subrev_u32 v%d, %d, v%d" % (V_TR, -delta, V_TR), 0)
        for nt in range(15):
            r = tr_reads(s+1, nt)
            g = sc.put(r[0], min(4*nt+3, 59)); sc.put(r[1], min(g+1, 59))
        pos = 1
        for grp in dma_step((s + D) % U):
            g = sc.put(Ins(grp[-1], tag=("dma", (s+D) % U)), pos)
            for t in grp[:-1]: sc.scalar(t, g-1)
            pos = g + 4
        for q, t in enumerate(adv_dma): sc.scalar(t, pos + q)
        pos = 30
        for t in xn_loads(s + D):
            g = sc.put(t, pos); pos = g + 4
        sc.scalar(adv_xn, pos)
        sc.emit(p)
    e("s_sub_u32 s%d, s%d, 1" % (S_CNT, S_CNT))
    e("s_cmp_lg_u32 s%d, 0" % S_CNT)
    e("s_cbranch_scc1 %s_g1" % name)
    p.loop_end()
    st.stamp()
    def Oacc(dt, qt): return 16*dt + 4*qt
    def Sreg(par, kt2, qt): return 128 + 32*par + 16*kt2 + 4*qt
    def Preg(par, qt): return 192 + 16*par + 4*qt
    def negm(qt): return 224 + 4*qt
    def Qf(qt, u): return 16*qt + 4*u
    def Kf(kt2, u): return 64 + 16*kt2 + 4*u
    def Vf(dt): return 96 + 4*dt
    def Lacc(qt): return 128 + 4*qt
    ONES = 144
    V_KV = V_TR
    def kv_dma():
        return [["s_mov_b32 m0, s%d" % S_RP, "buffer_load_dwordx4 v%d, s[%d:%d], s%d offen lds" % (V_XO, SRD_K, SRD_K+3, S_KS)],
                ["buffer_load_dwordx4 v%d, s[%d:%d], s%d offen offset:1024 lds" % (V_XO, SRD_K, SRD_K+3, S_KS)],
                ["buffer_load_dwordx4 v%d, s[%d:%d], s%d offen offset:2048 lds" % (V_XO, SRD_V, SRD_V+3, S_KS)],
                ["buffer_load_dwordx4 v%d, s[%d:%d], s%d offen offset:3072 lds" % (V_XO, SRD_V, SRD_V+3, S_KS)]], \
               ["s_add_u32 s%d, s%d, 8192" % (S_KS, S_KS), "s_add_u32 s%d, s%d, %d" % (S_RP, S_RP, KV_SLOT), "s_and_b32 s%d, s%d, 0x1ffff" % (S_RP, S_RP)]
    def tagkv(t, m): return ("kv", m) if t.startswith("buffer") else None
    e("s_barrier")
    e("s_lshr_b32 s%d, s%d, 3" % (S_T0, S_CG))
    e("s_lshl_b32 s%d, s%d, 17" % (S_KVR, S_T0))
    e("s_lshl_b32 s%d, s%d, 11" % (S_T1, S_WAVE))
    e("s_add_u32 s%d, s%d, s%d" % (S_T0, S_KVR, S_T1))
    e("s_add_u32 s%d, s%d, %d" % (S_T1, S_T0, WS_KP))
    e("s_add_u32 s%d, s6, s%d" % (SRD_K, S_T1))
    e("s_addc_u32 s%d, s7, 0" % (SRD_K+1))
    e("s_mov_b32 s%d, %d" % (SRD_K+2, 16*8192))
    e("s_mov_b32 s%d, 0x20000" % (SRD_K+3))
    e("s_add_u32 s%d, s%d, %d" % (S_T1, S_T0, WS_VP - 2*8192 - 2048))
    e("s_add_u32 s%d, s6, s%d" % (SRD_V, S_T1))
    e("s_addc_u32 s%d, s7, 0" % (SRD_V+1))
    e("s_mov_b32 s%d, %d" % (SRD_V+2, 18*8192 + 2048))
    e("s_mov_b32 s%d, 0x20000" % (SRD_V+3))
    e("s_mov_b32 s%d, 0" % S_KS)
    e("s_lshl_b32 s%d, s%d, 12" % (S_RP, S_WAVE))
    valu = []
    for qt in range(4):
        for u in range(4):
            a, b = accQ(2*u, qt), accQ(2*u+1, qt)
            valu += ["v_cvt_pk_bf16_f32 v%d, v%d, v%d" % (a, a, a+1), "v_cvt_pk_bf16_f32 v%d, v%d, v%d" % (a+1, a+2, a+3),
                     "v_cvt_pk_bf16_f32 v%d, v%d, v%d" % (a+2, b, b+1), "v_cvt_pk_bf16_f32 v%d, v%d, v%d" % (a+3, b+2, b+3)]
            valu += ["v_accvgpr_write_b32 a%d, v%d" % (Qf(qt, u)+r, a+r) for r in range(4)]
    hs = []
    hs.append("s_lshr_b32 s%d, s%d, 1" % (S_T0, S_CG))
    hs.append("s_mul_i32 s%d, s%d, 7" % (S_T0, S_T0))
    hs.append("s_and_b32 s%d, s%d, 1" % (S_T1, S_CG))
    hs.append("s_lshl_b32 s%d, s%d, 2" % (S_H0, S_T1))
    hs.append("s_add_u32 s%d, s%d, s%d" % (S_H0, S_H0, S_T0))
    hs.append("s_lshl_b32 s%d, s%d, 11" % (S_H0, S_H0))
    hs.append("s_add_u32 s%d, s%d, 3" % (S_H6, S_T0))
    hs.append("s_lshl_b32 s%d, s%d, 11" % (S_H6, S_H6))
    hs.append("s_lshl_b32 s%d, s%d, 3" % (S_T1, S_T1))
    hs.append("s_add_u32 s%d, s%d, s%d" % (S_H6, S_H6, S_T1))
    hs.append("s_mul_i32 s%d, s%d, %d" % (S_T0, S_RG, 2*HF_RP))
    hs.append("s_add_u32 s%d, s%d, %d" % (S_T0, S_T0, WS_HF))
    hs.append("s_add_u32 s%d, s%d, s%d" % (S_H0, S_H0, S_T0))
    hs.append("s_add_u32 s%d, s%d, s%d" % (S_H6, S_H6, S_T0))
    hs.append("s_mul_i32 s%d, s%d, %d" % (S_T0, S_RG, 2*OF_RP))
    hs.append("s_lshl_b32 s%d, s%d, 13" % (S_T1, S_CG))
    hs.append("s_add_u32 s%d, s%d, s%d" % (S_T0, S_T0, S_T1))
    hs.append("s_add_u32 s%d, s%d, %d" % (S_OB, S_T0, WS_OF))
    valu += hs
    for rt in range(4):
        for nt in range(7):
            a = accH(nt, rt)
            valu += ["v_max_f32 v%d, 0, v%d" % (a+r, a+r) for r in range(4)]
            valu += ["v_pk_mul_f32 v[%d:%d], v[%d:%d], v[%d:%d]" % (a+2*h, a+2*h+1, a+2*h, a+2*h+1, a+2*h, a+2*h+1) for h in range(2)]
        for u in range(3):
            a, b = accH(2*u, rt), accH(2*u+1, rt)
            valu += ["v_cvt_pk_bf16_f32 v%d, v%d, v%d" % (a, a, a+1), "v_cvt_pk_bf16_f32 v%d, v%d, v%d" % (a+1, a+2, a+3),
                     "v_cvt_pk_bf16_f32 v%d, v%d, v%d" % (a+2, b, b+1), "v_cvt_pk_bf16_f32 v%d, v%d, v%d" % (a+3, b+2, b+3)]
            off = (rt >> 1)*HF_RP + (rt & 1)*1024 + u*2048
            valu += ["s_add_u32 s%d, s%d, %d" % (S_T0, S_H0, off),
                     "buffer_store_dwordx4 v[%d:%d], v%d, s[%d:%d], s%d offen" % (a, a+3, V_XO, SRD_WS, SRD_WS+3, S_T0)]
        a = accH(6, rt)
        valu += ["v_cvt_pk_bf16_f32 v%d, v%d, v%d" % (a, a, a+1), "v_cvt_pk_bf16_f32 v%d, v%d, v%d" % (a+1, a+2, a+3)]
        off = (rt >> 1)*HF_RP + (rt & 1)*1024
        valu += ["s_add_u32 s%d, s%d, %d" % (S_T0, S_H6, off),
                 "buffer_store_dwordx2 v[%d:%d], v%d, s[%d:%d], s%d offen" % (a, a+1, V_XO, SRD_WS, SRD_WS+3, S_T0)]
    NPRO = 7
    per = len(valu)//(4*NPRO); ii = 0
    for m in range(NPRO):
        grps, advs = kv_dma()
        for grp in grps:
            for t in grp: e(t, tag=tagkv(t, m))
            for t in valu[ii:ii+per]: e(t)
            ii += per
        for t in advs: e(t)
    for t in valu[ii:]: e(t)
    if pf2:
        srd(p, SRD_PO, 92, 8 << 20)
        srd(p, SRD_P2, 94, 7 << 20)
        e("s_lshl_b32 s%d, s2, 15\ns_lshl_b32 s%d, s%d, 13\ns_add_u32 s%d, s%d, s%d" % (S_PF0, S_T0, S_WAVE, S_PF0, S_PF0, S_T0))
        e("s_mul_i32 s%d, s2, 28672\ns_mul_i32 s%d, s%d, 7168\ns_add_u32 s%d, s%d, s%d" % (S_PF1, S_T0, S_WAVE, S_PF1, S_PF1, S_T0))
    st.stamp()
    def koff(f): return (f >> 1)*4096 + (f & 1)*1024
    def kread(f, rel=0):
        return "ds_read_b128 a[%d:%d], v%d offset:%d" % (Kf(f//4, f % 4), Kf(f//4, f % 4)+3, V_KV, rel*KV_SLOT + koff(f))
    def vread(dt, rel=0):
        return "ds_read_b128 a[%d:%d], v%d offset:%d" % (Vf(dt), Vf(dt)+3, V_KV, rel*KV_SLOT + 2048 + koff(dt))
    def qk_mfmas(par, first):
        out = []
        for kt2 in range(2):
            for u in range(4):
                for qt in range(4):
                    s_ = Sreg(par, kt2, qt)
                    if u == 0: c = "0" if first else "v[%d:%d]" % (negm(qt), negm(qt)+3)
                    else: c = "v[%d:%d]" % (s_, s_+3)
                    out.append(Ins("v_mfma_f32_16x16x32_bf16 v[%d:%d], a[%d:%d], a[%d:%d], %s" % (s_, s_+3, Kf(kt2, u), Kf(kt2, u)+3, Qf(qt, u), Qf(qt, u)+3, c)))
        return out
    def pv_mfmas(par, first):
        out = []
        for dt in range(8):
            for qt in range(4):
                o = Oacc(dt, qt)
                c = "0" if first else "v[%d:%d]" % (o, o+3)
                out.append(Ins("v_mfma_f32_16x16x32_bf16 v[%d:%d], a[%d:%d], v[%d:%d], %s" % (o, o+3, Vf(dt), Vf(dt)+3, Preg(par, qt), Preg(par, qt)+3, c)))
        for qt in range(4):
            l = Lacc(qt)
            c = "0" if first else "a[%d:%d]" % (l, l+3)
            out.append(Ins("v_mfma_f32_16x16x32_bf16 a[%d:%d], a[%d:%d], v[%d:%d], %s" % (l, l+3, ONES, ONES+3, Preg(par, qt), Preg(par, qt)+3, c)))
        return out
    def softmax_ops(par):
        ops = []
        for qt in range(4):
            for kt2 in range(2):
                s_ = Sreg(par, kt2, qt)
                for h in range(2):
                    ops.append(("exp", "v_exp_f32 v%d, v%d" % (s_+2*h, s_+2*h)))
                    ops.append(("exp", "v_exp_f32 v%d, v%d" % (s_+2*h+1, s_+2*h+1)))
                    ops.append(("cvt", "v_cvt_pk_bf16_f32 v%d, v%d, v%d" % (Preg(par, qt)+2*kt2+h, s_+2*h, s_+2*h+1)))
        return ops
    pfn = [0]
    def pf_load():
        return None
    def step(j, qk, pv, pvfirst, sm, dma, rd_k, rd_v, rel, adj, dmatag=None, pf=None):
        par = j & 1
        mf = []
        kpos = {}; vpos = {}
        if qk:
            mf += qk_mfmas(1-par, False)
            for f in range(8): kpos[f] = 4*f + 3
        n0 = len(mf)
        if pv:
            mf += pv_mfmas(1-par, pvfirst)
            for f in range(8): vpos[f] = n0 + 4*f + 3
        n = len(mf)
        sc = Sched(mf)
        lastrd = 0
        if rd_k:
            for f in range(8): lastrd = max(lastrd, sc.put(kread(f, rel), kpos[f], force_gap=kpos[f]))
        if rd_v:
            for f in range(8):
                g = vpos.get(f, None)
                lastrd = max(lastrd, sc.put(vread(f, rel), g if g is not None else 4*f+1, force_gap=g))
        if dma:
            grps, advs = kv_dma()
            pos = 1
            for grp in grps:
                g = sc.put(Ins(grp[-1], tag=tagkv(grp[-1], dmatag)), pos)
                for t in grp[:-1]: sc.scalar(t, g-1)
                pos = g + 12
            for q, t in enumerate(advs): sc.scalar(t, min(n-1, pos - 10 + 2*q))
        if pf is not None:
            srd_, sreg = pf
            g = sc.put(Ins("buffer_load_dwordx4 a[148:151], v%d, s[%d:%d], s%d offen" % (V_XO, srd_, srd_+3, sreg), tag="pf"), 8)
            sc.scalar("s_add_u32 s%d, s%d, 1024" % (sreg, sreg), g)
        if adj:
            g = sc.put("v_add_u32 v%d, %d, v%d" % (V_KV, 2*KV_SLOT, V_KV), lastrd+1)
            sc.put("v_and_b32 v%d, 0x1ffff, v%d" % (V_KV, V_KV), g+1)
        if sm:
            pos = 0
            for kind, t in softmax_ops(par):
                g = sc.put(t, pos)
                pos = g if kind == "cvt" else g + (0 if False else 0)
                pos = g + 1 if kind == "exp" else g
        sc.emit(p)
    e("v_mov_b32 v%d, v%d" % (V_KV, V_XO))
    e("v_mov_b32 v%d, 0x3f803f80" % V_T0)
    for r in range(4): e("v_accvgpr_write_b32 a%d, v%d" % (ONES+r, V_T0))
    p.waitvm(("kv", 2)); p.waitvm(("kv", 1)); p.waitvm(("kv", 0))
    e("s_barrier")
    for f in range(8): e(kread(f, 0))
    sc = Sched(qk_mfmas(0, True))
    for f in range(8): sc.put(kread(f, 1), 4*f+3, force_gap=4*f+3)
    sc.emit(p)
    e("v_add_u32 v%d, %d, v%d" % (V_KV, 2*KV_SLOT, V_KV))
    def rowmax(qt, t0, t1):
        a, b = Sreg(0, 0, qt), Sreg(0, 1, qt)
        e("v_max3_f32 v%d, v%d, v%d, v%d" % (t0, a, a+1, a+2))
        e("v_max3_f32 v%d, v%d, v%d, v%d" % (t1, a+3, b, b+1))
        e("v_max3_f32 v%d, v%d, v%d, v%d" % (t0, t0, b+2, b+3))
        e("v_max_f32 v%d, v%d, v%d" % (t0, t0, t1))
    tm = [V_T0, V_T1, V_T2, V_T3]; tn = [251, 252, 253, 254]
    for qt in range(4): rowmax(qt, tm[qt], tn[qt])
    for qt in range(4): e("v_mov_b32 v%d, v%d" % (tn[qt], tm[qt]))
    for qt in range(4): e("v_permlane32_swap_b32 v%d, v%d" % (tm[qt], tn[qt]))
    for qt in range(4): e("v_max_f32 v%d, v%d, v%d" % (tm[qt], tm[qt], tn[qt]))
    for qt in range(4): e("v_mov_b32 v%d, v%d" % (tn[qt], tm[qt]))
    for qt in range(4): e("v_permlane16_swap_b32 v%d, v%d" % (tm[qt], tn[qt]))
    for qt in range(4): e("v_max_f32 v%d, v%d, v%d" % (tm[qt], tm[qt], tn[qt]))
    for qt in range(4):
        for r in range(4): e("v_sub_f32 v%d, 0, v%d" % (negm(qt)+r, tm[qt]))
    for qt in range(4):
        a, b = Sreg(0, 0, qt), Sreg(0, 1, qt)
        for r in range(4):
            e("v_sub_f32 v%d, v%d, v%d" % (a+r, a+r, tm[qt]))
            e("v_sub_f32 v%d, v%d, v%d" % (b+r, b+r, tm[qt]))
    st.stamp()
    PO, P2 = (SRD_PO, S_PF0), (SRD_P2, S_PF1)
    pfs = lambda x: x if pf2 else None
    NV = 5 if pf2 else 4
    step(0, True, False, False, True, True, True, True, 0, False, dmatag=7, pf=pfs(PO))
    p.waitvm(("kv", 4)); p.waitvm(("kv", 3))
    e("s_barrier")
    step(1, True, True, True, True, True, True, True, 1, True, dmatag=8, pf=pfs(P2))
    e("s_mov_b32 s%d, 6" % S_CNT)
    p.loop_begin("at")
    e("%s_at:" % name)
    step(2, True, True, False, True, True, True, True, 0, False, pf=pfs(PO))
    e("s_waitcnt vmcnt(%d)" % (3*NV))
    e("s_barrier")
    step(3, True, True, False, True, True, True, True, 1, True, pf=pfs(P2))
    e("s_sub_u32 s%d, s%d, 1" % (S_CNT, S_CNT))
    e("s_cmp_lg_u32 s%d, 0" % S_CNT)
    e("s_cbranch_scc1 %s_at" % name)
    p.loop_end()
    step(14, True, True, False, True, False, False, True, 0, False, pf=pfs(PO))
    e("s_waitcnt vmcnt(%d)" % (3*NV + (1 if pf2 else 0)))
    e("s_barrier")
    step(15, False, True, False, True, False, False, True, 1, False)
    step(16, False, True, False, False, False, False, False, 0, False)
    st.stamp()
    for qt in range(4):
        e("v_accvgpr_read_b32 v%d, a%d" % (negm(qt), Lacc(qt)))
    e("s_mov_b32 s%d, 0x%x" % (S_T0, f2u(2.0**thr_log2) if not force_slow else 0))
    e("v_max3_f32 v%d, v%d, v%d, v%d" % (V_T0, negm(0), negm(1), negm(2)))
    e("v_cmp_gt_f32 vcc, s%d, v%d" % (S_T0, V_T0))
    e("v_cmp_gt_f32 s[62:63], s%d, v%d" % (S_T0, negm(3)))
    for qt in (0, 1, 2):
        pass
    e("v_cmp_o_f32 s[64:65], v%d, v%d" % (negm(0), negm(1)) if False else "s_nop 0")
    e("s_and_b64 vcc, vcc, s[62:63]")
    e("v_cmp_o_f32 s[62:63], v%d, v%d" % (negm(0), negm(1)))
    e("s_and_b64 vcc, vcc, s[62:63]")
    e("v_cmp_o_f32 s[62:63], v%d, v%d" % (negm(2), negm(3)))
    e("s_and_b64 vcc, vcc, s[62:63]")
    e("s_cmp_eq_u64 vcc, -1")
    e("s_cbranch_scc0 %s_slow" % name)
    e("%s_oepi:" % name)
    for qt in range(4):
        e("v_rcp_f32 v%d, v%d" % (negm(qt)+2, negm(qt)))
    for qt in range(4):
        e("v_fma_f32 v%d, -v%d, v%d, 2.0" % (negm(qt)+1, negm(qt), negm(qt)+2))
        e("v_mul_f32 v%d, v%d, v%d" % (negm(qt)+2, negm(qt)+1, negm(qt)+2))
        e("v_mov_b32 v%d, v%d" % (negm(qt)+3, negm(qt)+2))
    for qt in range(4):
        iv = negm(qt)+2
        for u in range(4):
            a, b = Oacc(2*u, qt), Oacc(2*u+1, qt)
            for h in range(2):
                e("v_pk_mul_f32 v[%d:%d], v[%d:%d], v[%d:%d]" % (a+2*h, a+2*h+1, a+2*h, a+2*h+1, iv, iv+1))
                e("v_pk_mul_f32 v[%d:%d], v[%d:%d], v[%d:%d]" % (b+2*h, b+2*h+1, b+2*h, b+2*h+1, iv, iv+1))
            e("v_cvt_pk_bf16_f32 v%d, v%d, v%d" % (a, a, a+1))
            e("v_cvt_pk_bf16_f32 v%d, v%d, v%d" % (a+1, a+2, a+3))
            e("v_cvt_pk_bf16_f32 v%d, v%d, v%d" % (a+2, b, b+1))
            e("v_cvt_pk_bf16_f32 v%d, v%d, v%d" % (a+3, b+2, b+3))
            off = (qt >> 1)*OF_RP + (qt & 1)*1024 + u*2048
            e("s_add_u32 s%d, s%d, %d" % (S_T0, S_OB, off))
            e("buffer_store_dwordx4 v[%d:%d], v%d, s[%d:%d], s%d offen" % (a, a+3, V_XO, SRD_WS, SRD_WS+3, S_T0))
    st.stamp()
    if stamps:
        e("s_waitcnt vmcnt(0)")
        st.stamp(); st.stamp(True)
        st.dump(SRD_WS, V_T0, 1)
    e("s_endpgm")
    e("%s_slow:" % name)
    e("s_waitcnt vmcnt(0) lgkmcnt(0)")
    for i in range(128): e("v_mov_b32 v%d, 0" % i)
    e("v_mov_b32 v%d, 0" % V_T0)
    for qt in range(4):
        for r in range(4): e("v_accvgpr_write_b32 a%d, v%d" % (Lacc(qt)+r, V_T0))
    M = [232, 233, 234, 235]
    for qt in range(4): e("v_mov_b32 v%d, 0xff7fffff" % M[qt])
    e("s_add_u32 s%d, s%d, %d" % (S_KS, S_KVR, WS_KP))
    e("s_add_u32 s%d, s%d, %d" % (S_RP, S_KVR, WS_VP))
    e("s_mov_b32 s%d, 16" % S_CNT)
    e("%s_sl:" % name)
    for f in range(8):
        e("s_add_u32 s%d, s%d, %d" % (S_T0, S_KS, f*1024))
        e("buffer_load_dwordx4 a[%d:%d], v%d, s[%d:%d], s%d offen" % (Kf(f//4, f % 4), Kf(f//4, f % 4)+3, V_XO, SRD_WS, SRD_WS+3, S_T0))
    for f in range(8):
        e("s_add_u32 s%d, s%d, %d" % (S_T0, S_RP, f*1024))
        e("buffer_load_dwordx4 a[%d:%d], v%d, s[%d:%d], s%d offen" % (Vf(f), Vf(f)+3, V_XO, SRD_WS, SRD_WS+3, S_T0))
    e("s_waitcnt vmcnt(0)")
    for ins in qk_mfmas(0, True): p.add(ins)
    e("s_nop 15")
    for qt in range(4):
        t0, t1, al = V_T0, V_T1, V_T2
        rowmax(qt, t0, t1)
        e("v_mov_b32 v%d, v%d" % (t1, t0))
        e("v_permlane32_swap_b32 v%d, v%d" % (t0, t1))
        e("v_max_f32 v%d, v%d, v%d" % (t0, t0, t1))
        e("v_mov_b32 v%d, v%d" % (t1, t0))
        e("v_permlane16_swap_b32 v%d, v%d" % (t0, t1))
        e("v_max3_f32 v%d, v%d, v%d, v%d" % (t0, t0, t1, M[qt]))
        e("v_sub_f32 v%d, v%d, v%d" % (al, M[qt], t0))
        e("v_exp_f32 v%d, v%d" % (al, al))
        e("v_mov_b32 v%d, v%d" % (M[qt], t0))
        a, b = Sreg(0, 0, qt), Sreg(0, 1, qt)
        for r in range(4):
            e("v_sub_f32 v%d, v%d, v%d" % (a+r, a+r, t0)); e("v_sub_f32 v%d, v%d, v%d" % (b+r, b+r, t0))
        for r in range(4):
            e("v_exp_f32 v%d, v%d" % (a+r, a+r)); e("v_exp_f32 v%d, v%d" % (b+r, b+r))
        e("v_cvt_pk_bf16_f32 v%d, v%d, v%d" % (Preg(0, qt), a, a+1))
        e("v_cvt_pk_bf16_f32 v%d, v%d, v%d" % (Preg(0, qt)+1, a+2, a+3))
        e("v_cvt_pk_bf16_f32 v%d, v%d, v%d" % (Preg(0, qt)+2, b, b+1))
        e("v_cvt_pk_bf16_f32 v%d, v%d, v%d" % (Preg(0, qt)+3, b+2, b+3))
        for dt in range(8):
            for r in range(4): e("v_mul_f32 v%d, v%d, v%d" % (Oacc(dt, qt)+r, Oacc(dt, qt)+r, al))
        e("v_accvgpr_read_b32 v%d, a%d" % (t1, Lacc(qt)))
        e("v_mul_f32 v%d, v%d, v%d" % (t1, t1, al))
        e("v_accvgpr_write_b32 a%d, v%d" % (Lacc(qt), t1))
    e("s_nop 3")
    for ins in pv_mfmas(0, False): p.add(ins)
    e("s_nop 15")
    e("s_add_u32 s%d, s%d, 8192" % (S_KS, S_KS))
    e("s_add_u32 s%d, s%d, 8192" % (S_RP, S_RP))
    e("s_sub_u32 s%d, s%d, 1" % (S_CNT, S_CNT))
    e("s_cmp_lg_u32 s%d, 0" % S_CNT)
    e("s_cbranch_scc1 %s_sl" % name)
    for qt in range(4):
        e("v_accvgpr_read_b32 v%d, a%d" % (negm(qt), Lacc(qt)))
    e("s_branch %s_oepi" % name)
    e("%s_done:" % name)
    e("s_endpgm")
    return p
```

```python
import sys, math
from asmgen import *

WS_XN = 0
XN_RG = 131072 + 8192
OF_RP = 262144 + 8192
HF_RP = 229376 + 8192
WS_KP = 5 << 20
WS_VP = (5 << 20) + (512 << 10)
WS_OF = 8 << 20
WS_HF = 25 << 20
WS_G  = 40 << 20
WS_DBG = 48 << 20
WS_SIZE = 256 << 20
KA = dict(x=0, k=8, v=16, wq=24, wo=32, bx=40, w1=48, b1=56, w2=64, b2=72, out=80, dbg=88, ws=96)
CSCALE = math.log2(math.e) / math.sqrt(128.0)

def f2u(x):
    import struct
    return struct.unpack('<I', struct.pack('<f', x))[0]

def srd(p, d, base, nbytes, add=0):
    if add:
        p.e("s_add_u32 s%d, s%d, 0x%x" % (d, base, add))
        p.e("s_addc_u32 s%d, s%d, 0" % (d+1, base+1))
    else:
        p.e("s_mov_b32 s%d, s%d" % (d, base))
        p.e("s_mov_b32 s%d, s%d" % (d+1, base+1))
    p.e("s_mov_b32 s%d, 0x%x" % (d+2, nbytes))
    p.e("s_mov_b32 s%d, 0x20000" % (d+3))

class Stamps:
    def __init__(self, p, on): self.p = p; self.on = on; self.n = 0
    def stamp(self, real=False):
        if not self.on: return
        r = 64 + 2*self.n; self.n += 1
        self.p.e("%s s[%d:%d]" % ("s_memrealtime" if real else "s_memtime", r, r+1))
        self.p.e("s_waitcnt lgkmcnt(0)")
    def dump(self, srd_ws, vtmp, kidx):
        if not self.on: return
        e = self.p.e
        e("s_mov_b64 exec, 1")
        e("s_lshl_b32 s62, s2, 9")
        e("s_lshl_b32 s63, s3, 6")
        e("s_add_u32 s62, s62, s63")
        e("s_add_u32 s62, s62, 0x%x" % (WS_DBG + kidx*(1 << 20)))
        e("v_mov_b32 v%d, 0" % vtmp)
        for i in range(self.n):
            e("v_mov_b32 v%d, s%d" % (vtmp+1, 64+2*i))
            e("buffer_store_dword v%d, v%d, s[%d:%d], s62 offen offset:%d" % (vtmp+1, vtmp, srd_ws, srd_ws+3, 4*i))
        e("s_waitcnt vmcnt(0)")

def k0(name, prefetch=True, stamps=False):
    p = Prog(); e = p.e
    st = Stamps(p, stamps)
    e("s_cmp_ge_u32 s2, 256")
    e("s_cbranch_scc1 %s_done" % name)
    st.stamp(True)
    e("s_load_dwordx2 s[4:5], s[0:1], %d" % KA['x'])
    e("s_load_dwordx2 s[6:7], s[0:1], %d" % KA['ws'])
    e("s_load_dwordx4 s[24:27], s[0:1], %d" % KA['k'])
    e("s_load_dwordx2 s[28:29], s[0:1], %d" % KA['wq'])
    e("s_load_dwordx2 s[30:31], s[0:1], %d" % KA['w1'])
    e("v_and_b32 v1, 63, v0")
    e("v_lshrrev_b32 v2, 6, v0")
    e("v_and_b32 v3, 15, v1")
    e("v_lshrrev_b32 v4, 4, v1")
    e("v_readfirstlane_b32 s3, v2")
    def pf():
        if not prefetch: return
        srd(p, 32, 28, 8 << 20)
        srd(p, 36, 30, 7 << 20)
        e("s_and_b32 s40, s2, 7\ns_lshr_b32 s41, s2, 3")
        e("s_lshl_b32 s41, s41, 5\ns_lshl_b32 s42, s3, 2\ns_add_u32 s41, s41, s42")
        e("s_lshl_b32 s42, s41, 13\ns_lshl_b32 s43, s40, 10\ns_add_u32 s42, s42, s43")
        e("s_mul_i32 s43, s41, 7168\ns_mul_i32 s44, s40, 896\ns_add_u32 s43, s43, s44")
        e("v_lshlrev_b32 v88, 4, v1")
        e("v_min_u32 v89, 55, v1\nv_lshlrev_b32 v89, 4, v89")
        for r in range(4):
            e("buffer_load_dwordx4 v[84:87], v88, s[32:35], s42 offen nt", tag="pf")
            e("buffer_load_dwordx4 v[84:87], v89, s[36:39], s43 offen nt", tag="pf")
            if r < 3: e("s_add_u32 s42, s42, 8192\ns_add_u32 s43, s43, 7168")
    e("s_cmp_ge_u32 s2, 128")
    e("s_cbranch_scc1 %s_kv" % name)
    e("s_waitcnt lgkmcnt(0)")
    srd(p, 8, 4, 4 << 20)
    srd(p, 12, 6, 32*XN_RG, WS_XN)
    e("s_lshl_b32 s16, s2, 15")
    e("s_lshl_b32 s17, s3, 8")
    e("s_add_u32 s16, s16, s17")
    e("v_lshlrev_b32 v5, 11, v3")
    e("v_lshl_add_u32 v5, v4, 3, v5")
    for q in range(4):
        e("buffer_load_dwordx2 v[%d:%d], v5, s[8:11], s16 offen offset:%d nt" % (16+4*q, 17+4*q, q*64))
        e("buffer_load_dwordx2 v[%d:%d], v5, s[8:11], s16 offen offset:%d nt" % (18+4*q, 19+4*q, q*64+32))
    pf()
    e("v_mul_u32_u24 v6, 48, v3")
    e("s_lshl_b32 s18, s3, 2")
    e("v_add_u32 v7, s18, v6")
    for r in range(16):
        e("v_lshlrev_b32 v%d, 16, v%d" % (32+2*r, 16+r))
        e("v_and_b32 v%d, 0xffff0000, v%d" % (33+2*r, 16+r))
    def reduce_all(src, lds_off):
        e("v_mov_b32 v9, v%d" % src)
        e("v_permlane32_swap_b32 v%d, v9" % src)
        e("v_add_f32 v%d, v%d, v9" % (src, src))
        e("v_mov_b32 v9, v%d" % src)
        e("v_permlane16_swap_b32 v%d, v9" % src)
        e("v_add_f32 v%d, v%d, v9" % (src, src))
        e("ds_write_b32 v7, v%d offset:%d" % (src, lds_off))
        e("s_waitcnt lgkmcnt(0)")
        e("s_barrier")
        e("ds_read_b128 v[64:67], v6 offset:%d" % lds_off)
        e("ds_read_b128 v[68:71], v6 offset:%d" % (lds_off+16))
        e("v_add_f32 v64, v64, v65\nv_add_f32 v66, v66, v67\nv_add_f32 v68, v68, v69\nv_add_f32 v70, v70, v71")
        e("v_add_f32 v64, v64, v66\nv_add_f32 v68, v68, v70\nv_add_f32 v8, v64, v68")
    for i in range(4):
        e("v_add_f32 v%d, v%d, v%d" % (72+i, 32+i, 36+i))
    for r in range(8, 32):
        e("v_add_f32 v%d, v%d, v%d" % (72+(r % 4), 72+(r % 4), 32+r))
    e("v_add_f32 v72, v72, v73\nv_add_f32 v74, v74, v75\nv_add_f32 v72, v72, v74")
    reduce_all(72, 0)
    e("v_mul_f32 v10, 0x%x, v8" % f2u(1.0/1024))
    for r in range(32):
        e("v_sub_f32 v%d, v%d, v10" % (80+(r % 4), 32+r))
        if r < 4: e("v_mul_f32 v%d, v%d, v%d" % (72+r, 80+(r % 4), 80+(r % 4)))
        else: e("v_fmac_f32 v%d, v%d, v%d" % (72+(r % 4), 80+(r % 4), 80+(r % 4)))
    e("v_add_f32 v72, v72, v73\nv_add_f32 v74, v74, v75\nv_add_f32 v72, v72, v74")
    reduce_all(72, 1024)
    e("v_mul_f32 v11, 0x%x, v8" % f2u(1.0/1024))
    e("v_cvt_pk_bf16_f32 v12, v10, v11")
    e("v_and_b32 v11, 0xffff0000, v12")
    e("v_lshlrev_b32 v10, 16, v12")
    e("v_add_f32 v11, 0x%x, v11" % f2u(1e-5))
    e("v_cvt_pk_bf16_f32 v12, v11, v11")
    e("v_and_b32 v11, 0xffff0000, v12")
    e("v_sqrt_f32 v11, v11")
    e("v_cvt_pk_bf16_f32 v12, v11, v11")
    e("v_and_b32 v11, 0xffff0000, v12")
    e("v_rcp_f32 v13, v11")
    for r in range(16):
        a, b = 32+2*r, 33+2*r
        e("v_sub_f32 v%d, v%d, v10" % (a, a))
        e("v_sub_f32 v%d, v%d, v10" % (b, b))
        e("v_cvt_pk_bf16_f32 v%d, v%d, v%d" % (16+r, a, b))
        e("v_lshlrev_b32 v%d, 16, v%d" % (a, 16+r))
        e("v_and_b32 v%d, 0xffff0000, v%d" % (b, 16+r))
        e("v_mul_f32 v80, v%d, v13" % a)
        e("v_mul_f32 v81, v%d, v13" % b)
        e("v_fma_f32 v%d, -v80, v11, v%d" % (a, a))
        e("v_fma_f32 v%d, -v81, v11, v%d" % (b, b))
        e("v_fmac_f32 v80, v%d, v13" % a)
        e("v_fmac_f32 v81, v%d, v13" % b)
        e("v_cvt_pk_bf16_f32 v%d, v80, v81" % (16+r))
    e("s_lshr_b32 s16, s2, 2\ns_mul_i32 s16, s16, %d" % XN_RG)
    e("s_and_b32 s17, s2, 3\ns_lshl_b32 s17, s17, 10")
    e("s_add_u32 s16, s16, s17")
    e("s_lshl_b32 s17, s3, 14")
    e("s_add_u32 s16, s16, s17")
    e("v_lshlrev_b32 v5, 4, v1")
    for q in range(4):
        e("s_add_u32 s17, s16, %d" % (q*4096))
        e("buffer_store_dwordx4 v[%d:%d], v5, s[12:15], s17 offen" % (16+4*q, 19+4*q))
    def fin():
        if stamps:
            e("s_waitcnt vmcnt(0)")
            e("s_memrealtime s[66:67]")
            e("s_waitcnt lgkmcnt(0)")
            srd(p, 48, 6, WS_SIZE)
            n0 = st.n; st.n = 2
            st.dump(48, 90, 0)
            st.n = n0
    fin()
    e("s_endpgm")
    e("%s_kv:" % name)
    e("s_waitcnt lgkmcnt(0)")
    e("s_sub_u32 s16, s2, 128")
    e("s_lshl_b32 s16, s16, 3")
    e("s_add_u32 s16, s16, s3")
    e("s_and_b32 s17, s16, 511")
    e("s_lshr_b32 s18, s17, 7")
    e("s_lshr_b32 s19, s17, 3\ns_and_b32 s19, s19, 15")
    e("s_lshl_b32 s20, s18, 19")
    e("s_lshl_b32 s21, s19, 13")
    e("s_add_u32 s20, s20, s21")
    e("s_add_u32 s20, s20, %d" % (1536*256))
    e("s_lshl_b32 s22, s17, 10")
    e("v_lshlrev_b32 v5, 4, v1")
    e("s_cmp_ge_u32 s16, 512")
    e("s_cbranch_scc1 %s_v" % name)
    srd(p, 8, 24, 2 << 20)
    srd(p, 12, 6, 512 << 10, WS_KP)
    e("s_lshr_b32 s21, s17, 2\ns_and_b32 s21, s21, 1\ns_lshl_b32 s21, s21, 12")
    e("s_add_u32 s20, s20, s21")
    e("s_and_b32 s21, s17, 3\ns_lshl_b32 s21, s21, 6")
    e("s_add_u32 s20, s20, s21")
    e("v_lshlrev_b32 v6, 8, v3")
    e("v_lshl_add_u32 v6, v4, 3, v6")
    e("buffer_load_dwordx2 v[16:17], v6, s[8:11], s20 offen nt")
    e("buffer_load_dwordx2 v[18:19], v6, s[8:11], s20 offen offset:32 nt")
    pf()
    e("s_mov_b32 s23, 0x%x" % f2u(CSCALE))
    for r in range(4):
        e("v_lshlrev_b32 v20, 16, v%d" % (16+r))
        e("v_and_b32 v21, 0xffff0000, v%d" % (16+r))
        e("v_mul_f32 v20, s23, v20")
        e("v_mul_f32 v21, s23, v21")
        e("v_cvt_pk_bf16_f32 v%d, v20, v21" % (16+r))
    e("buffer_store_dwordx4 v[16:19], v5, s[12:15], s22 offen")
    fin()
    e("s_endpgm")
    e("%s_v:" % name)
    srd(p, 8, 26, 2 << 20)
    srd(p, 12, 6, 512 << 10, WS_VP)
    e("s_and_b32 s21, s17, 7\ns_lshl_b32 s21, s21, 5")
    e("s_add_u32 s20, s20, s21")
    e("s_add_u32 s21, s20, 4096")
    e("v_lshlrev_b32 v6, 1, v3")
    e("v_lshl_add_u32 v6, v4, 10, v6")
    for j in range(4):
        e("buffer_load_ushort v%d, v6, s[8:11], s20 offen offset:%d nt" % (24+j, j*256))
    for j in range(4):
        e("buffer_load_ushort v%d, v6, s[8:11], s21 offen offset:%d nt" % (28+j, j*256))
    pf()
    for r in range(4):
        e("v_lshl_or_b32 v%d, v%d, 16, v%d" % (16+r, 25+2*r, 24+2*r))
    e("buffer_store_dwordx4 v[16:19], v5, s[12:15], s22 offen")
    fin()
    e("%s_done:" % name)
    e("s_endpgm")
    return p

def assemble(kernels, launches, header=""):
    out = []
    if header: out.append(header.rstrip("\n"))
    for (n, g, b, l) in launches:
        out.append("; @launch kernel=%s grid=(%d,%d,%d) block=(%d,%d,%d) lds=%d" % (n, g[0], g[1], g[2], b[0], b[1], b[2], l))
    out.append('.amdgcn_target "amdgcn-amd-amdhsa--gfx950"')
    out.append(".text")
    for (n, prog, v, s, a) in kernels:
        out += [".globl %s" % n, ".p2align 8", ".type %s,@function" % n, "%s:" % n]
        out += finish(prog)
    out.append('.section .rodata,"a"')
    for (n, prog, v, s, a) in kernels:
        out += [".p2align 6", ".amdhsa_kernel %s" % n,
                "  .amdhsa_next_free_vgpr %d" % v, "  .amdhsa_next_free_sgpr %d" % s, "  .amdhsa_accum_offset %d" % a,
                "  .amdhsa_group_segment_fixed_size 0", "  .amdhsa_kernarg_size 104", "  .amdhsa_user_sgpr_count 2",
                "  .amdhsa_user_sgpr_kernarg_segment_ptr 1", "  .amdhsa_system_sgpr_workgroup_id_x 1",
                "  .amdhsa_float_denorm_mode_32 3", "  .amdhsa_float_denorm_mode_16_64 3",
                ".end_amdhsa_kernel"]
    return "\n".join(out) + "\n"

if __name__ == "__main__":
    ks = [("prep_kernel", k0("prep"), 96, 48, 96)]
    ls = [("prep_kernel", (256,1,1), (512,1,1), 4096)]
    open("t0.s", "w").write(assemble(ks, ls))
    import build
    print(build.build("t0.s"))
```

```python
import sys
from asmgen import *
from kern import *

IMG = 8448
def k2(name, DW=8, DA=8, BAR=4, stamps=False, same=0, noact=False, now=False, slack=4, xnt=True, notr=False, nomfma=False):
    p = Prog(); e = p.e
    st = Stamps(p, stamps)
    p.lg_slack = slack
    U = 16
    def acc(nt, rt): return 8*nt + 4*rt
    V_PRE = 64
    V_TID, V_TR0, V_TR1, V_TR2, V_DW, V_XO, V_T0, V_T1, V_T2, V_T3, V_RM, V_DW2, V_FLAG, V_G8, V_LW, V_LR = 100, 101, 102, 103, 104, 105, 106, 107, 108, 109, 110, 111, 120, 121, 122, 123
    def wfrag(nt): return 4*nt
    def afrag(step, rt): return 32 + 8*(step % U) + 4*rt
    S_WAVE = 3
    SRD_W, SRD_WS, SRD_X, SRD_OUT, SRD_DBG, SRD_A = 8, 12, 16, 20, 24, 56
    S_A, S_W, S_MB, S_T0, S_T1, S_ROLE, S_RT, S_CT, S_CNT, S_G, S_PAIR, S_XB, S_NU, S_AB, S_FOFF, S_FMASK = 28, 29, 30, 31, 32, 33, 34, 35, 36, 38, 39, 50, 51, 55, 60, 61
    e("s_cmp_ge_u32 s2, 256")
    e("s_cbranch_scc1 %s_done" % name)
    st.stamp(True); st.stamp()
    e("s_load_dwordx2 s[4:5], s[0:1], %d" % KA['wo'])
    e("s_load_dwordx4 s[40:43], s[0:1], %d" % KA['w2'])
    e("s_load_dwordx4 s[44:47], s[0:1], %d" % KA['out'])
    e("s_load_dwordx2 s[6:7], s[0:1], %d" % KA['ws'])
    e("s_load_dwordx2 s[48:49], s[0:1], %d" % KA['x'])
    e("v_lshrrev_b32 v%d, 6, v0" % V_T0)
    e("v_and_b32 v%d, 63, v0" % V_TID)
    e("v_readfirstlane_b32 s%d, v%d" % (S_WAVE, V_T0))
    e("s_bfe_u32 s%d, s2, 0x10002" % S_ROLE)
    e("s_and_b32 s%d, s2, 3" % S_T0)
    e("s_lshr_b32 s%d, s2, 3" % S_T1)
    e("s_lshr_b32 s%d, s%d, 1" % (S_RT, S_T0))
    e("s_lshl_b32 s%d, s%d, 3" % (S_RT, S_RT))
    e("s_lshr_b32 s%d, s%d, 2" % (S_CT, S_T1))
    e("s_add_u32 s%d, s%d, s%d" % (S_RT, S_RT, S_CT))
    e("s_and_b32 s%d, s%d, 1" % (S_CT, S_T0))
    e("s_lshl_b32 s%d, s%d, 2" % (S_CT, S_CT))
    e("s_and_b32 s%d, s%d, 3" % (S_T1, S_T1))
    e("s_add_u32 s%d, s%d, s%d" % (S_CT, S_CT, S_T1))
    e("s_lshl_b32 s%d, s%d, 3" % (S_PAIR, S_RT))
    e("s_add_u32 s%d, s%d, s%d" % (S_PAIR, S_PAIR, S_CT))
    if same & 1: e("s_mov_b32 s%d, 0" % S_RT)
    if same & 2: e("s_mov_b32 s%d, 0" % S_CT)
    e("v_lshrrev_b32 v%d, 4, v%d" % (V_T0, V_TID))
    e("v_and_b32 v%d, 15, v%d" % (V_T1, V_TID))
    e("v_lshlrev_b32 v%d, 14, v%d" % (V_DW, V_T0))
    e("v_lshl_add_u32 v%d, v%d, 4, v%d" % (V_DW, V_T1, V_DW))
    e("v_and_b32 v%d, 1, v%d" % (V_T2, V_T0))
    e("v_lshlrev_b32 v%d, 2, v%d" % (V_T2, V_T2))
    e("v_bfe_u32 v%d, v%d, 2, 2" % (V_T3, V_TID))
    e("v_add_u32 v%d, v%d, v%d" % (V_T2, V_T2, V_T3))
    e("v_mul_u32_u24 v%d, 1056, v%d" % (V_TR0, V_T2))
    e("v_lshrrev_b32 v%d, 1, v%d" % (V_T2, V_T0))
    e("v_lshl_add_u32 v%d, v%d, 8, v%d" % (V_TR0, V_T2, V_TR0))
    e("v_and_b32 v%d, 3, v%d" % (V_T2, V_TID))
    e("v_lshl_add_u32 v%d, v%d, 3, v%d" % (V_TR0, V_T2, V_TR0))
    e("v_add_u32 v%d, %d, v%d" % (V_DW2, 2048-1056, V_DW))
    e("v_add_u32 v%d, %d, v%d" % (V_TR1, 7*IMG, V_TR0))
    e("v_add_u32 v%d, %d, v%d" % (V_TR2, 14*IMG, V_TR0))
    e("v_lshlrev_b32 v%d, 4, v%d" % (V_XO, V_TID))
    e("v_lshlrev_b32 v%d, 11, v%d" % (V_RM, V_T0))
    e("v_lshl_add_u32 v%d, v%d, 4, v%d" % (V_RM, V_T1, V_RM))
    e("v_lshlrev_b32 v%d, 3, v%d" % (V_G8, V_T0))
    e("v_mul_u32_u24 v%d, 272, v%d" % (V_LW, V_T1))
    e("v_add_u32 v%d, v%d, v%d" % (V_LW, V_LW, V_G8))
    e("v_mul_u32_u24 v%d, 272, v%d" % (V_LR, V_T0))
    e("v_lshl_add_u32 v%d, v%d, 4, v%d" % (V_LR, V_T1, V_LR))
    e("s_mul_i32 s%d, s%d, %d" % (S_T0, S_WAVE, 32*272))
    e("v_add_u32 v%d, s%d, v%d" % (V_LW, S_T0, V_LW))
    e("v_add_u32 v%d, s%d, v%d" % (V_LR, S_T0, V_LR))
    e("s_waitcnt lgkmcnt(0)")
    def sel(d, x, y):
        e("s_mov_b32 s%d, 0x%x" % (d, y))
        e("s_cselect_b32 s%d, 0x%x, s%d" % (d, x, d))
    e("s_cmp_eq_u32 s%d, 1" % S_ROLE)
    e("s_cselect_b32 s%d, s4, s40" % SRD_W)
    e("s_cselect_b32 s%d, s5, s41" % (SRD_W+1))
    sel(SRD_W+2, 8 << 20, 7 << 20)
    e("s_mov_b32 s%d, 0x20000" % (SRD_W+3))
    sel(S_NU, 128*2048, 112*2048)
    sel(62, OF_RP, HF_RP)
    sel(S_AB, WS_OF, WS_HF)
    e("s_cselect_b32 s%d, 8, 7" % S_CNT)
    e("s_cselect_b32 s%d, s48, s42" % SRD_X)
    e("s_cselect_b32 s%d, s49, s43" % (SRD_X+1))
    sel(SRD_X+2, 4 << 20, 2048)
    e("s_mov_b32 s%d, 0x20000" % (SRD_X+3))
    e("s_lshl_b32 s%d, s%d, 2" % (S_T0, S_RT))
    e("s_add_u32 s%d, s%d, s%d" % (S_T0, S_T0, S_WAVE))
    e("s_mul_i32 s%d, s%d, s62" % (S_A, S_T0))
    e("s_add_u32 s%d, s%d, s%d" % (S_A, S_A, S_AB))
    e("s_add_u32 s%d, s6, s%d" % (SRD_A, S_A))
    e("s_addc_u32 s%d, s7, 0" % (SRD_A+1))
    e("s_mov_b32 s%d, s%d" % (SRD_A+2, S_NU))
    e("s_mov_b32 s%d, 0x20000" % (SRD_A+3))
    e("s_mov_b32 s%d, 0" % S_A)
    e("s_lshl_b32 s%d, s%d, 8" % (S_W, S_CT))
    e("s_lshl_b32 s%d, s%d, 12" % (S_T0, S_WAVE))
    e("s_add_u32 s%d, s%d, s%d" % (S_W, S_W, S_T0))
    e("s_mul_i32 s%d, s%d, %d" % (S_MB, S_WAVE, 2*1056))
    def dma_step(slot):
        b = slot*IMG
        return [["s_add_u32 m0, s%d, %d" % (S_MB, b), "buffer_load_dwordx4 v%d, s[%d:%d], s%d offen lds" % (V_DW, SRD_W, SRD_W+3, S_W)],
                ["buffer_load_dwordx4 v%d, s[%d:%d], s%d offen offset:1056 lds" % (V_DW2, SRD_W, SRD_W+3, S_W)]]
    adv_w = ["s_add_u32 s%d, s%d, %d" % (S_W, S_W, 32*2048)]
    def a_loads(step):
        return ["buffer_load_dwordx4 a[%d:%d], v%d, s[%d:%d], s%d offen offset:%d" % (afrag(step, rt), afrag(step, rt)+3, V_XO, SRD_A, SRD_A+3, S_A, (step % 2)*2048 + rt*1024) for rt in range(2)]
    adv_a = "s_add_u32 s%d, s%d, 4096" % (S_A, S_A)
    def tr_reads(step, nt):
        slot = step % U
        v, o = (V_TR0, slot) if slot < 7 else (V_TR1, slot-7) if slot < 14 else (V_TR2, slot-14)
        return ["ds_read_b64_tr_b16 a[%d:%d], v%d offset:%d" % (wfrag(nt)+2*t, wfrag(nt)+2*t+1, v, o*IMG + nt*32 + t*512) for t in range(2)]
    DM = max(DW, DA)
    for s in range(DM):
        if s < DW:
            for grp in dma_step(s):
                for t in grp: e(t, tag=("w", s) if t.startswith("buffer") else None)
            for t in adv_w: e(t)
        if s < DA:
            for t in a_loads(s): e(t)
            if s % 2 == 1: e(adv_a)
        if s == 0:
            srd(p, SRD_WS, 6, WS_SIZE)
            srd(p, SRD_OUT, 44, 4 << 20)
            srd(p, SRD_DBG, 46, 256)
            e("s_lshl_b32 s%d, s%d, 15" % (S_G, S_PAIR))
            e("s_lshl_b32 s%d, s%d, 13" % (S_T0, S_WAVE))
            e("s_add_u32 s%d, s%d, s%d" % (S_G, S_G, S_T0))
            e("s_add_u32 s%d, s%d, 0x%x" % (S_G, S_G, WS_G))
            e("s_lshl_b32 s%d, s%d, 18" % (S_XB, S_RT))
            e("s_lshl_b32 s%d, s%d, 16" % (S_T0, S_WAVE))
            e("s_add_u32 s%d, s%d, s%d" % (S_XB, S_XB, S_T0))
            e("s_lshl_b32 s%d, s%d, 8" % (S_T0, S_CT))
            e("s_add_u32 s%d, s%d, s%d" % (S_XB, S_XB, S_T0))
            e("s_lshr_b32 s%d, s%d, 1" % (S_FOFF, S_PAIR))
            e("s_lshl_b32 s%d, s%d, 2" % (S_FOFF, S_FOFF))
            e("s_and_b32 s%d, s%d, 1" % (S_T1, S_PAIR))
            e("s_lshl_b32 s%d, s%d, 4" % (S_T1, S_T1))
            e("s_lshl_b32 s%d, 1, s%d" % (S_FMASK, S_T1))
            e("v_mov_b32 v%d, 0" % V_FLAG)
            e("v_mov_b32 v%d, 0" % V_T3)
        if s == 1:
            for i in range(64): e("v_mov_b32 v%d, 0" % i)
    e("s_cmp_eq_u32 s%d, 1" % S_ROLE)
    e("s_cbranch_scc0 %s_preg" % name)
    for i in range(8):
        e("s_add_u32 s%d, s%d, %d" % (S_T0, S_XB, i*8192))
        e("buffer_load_dwordx4 v[%d:%d], v%d, s[%d:%d], s%d offen%s" % (V_PRE+4*i, V_PRE+4*i+3, V_RM, SRD_X, SRD_X+3, S_T0, " nt" if xnt else ""), tag="optional")
    e("s_branch %s_prej" % name)
    e("%s_preg:" % name)
    e("s_lshl_b32 s%d, s%d, 8" % (S_T0, S_CT))
    for nt in range(8):
        e("buffer_load_dwordx2 v[%d:%d], v%d, s[%d:%d], s%d offen offset:%d" % (V_PRE+2*nt, V_PRE+2*nt+1, V_G8, SRD_X, SRD_X+3, S_T0, nt*32), tag="optional")
    e("%s_prej:" % name)
    st.stamp()
    p.waitvm(("w", 0))
    e("s_barrier")
    for nt in range(8):
        for t in tr_reads(0, nt): e(t)
    st.stamp()
    p.loop_begin("g2")
    e("%s_g2:" % name)
    for s in range(U):
        if s % BAR == 0:
            p.waitvm(("w", (s+BAR) % U))
            e("s_barrier")
        if s == 13:
            e("s_cmp_lg_u32 s%d, 1" % S_CNT)
            e("s_cbranch_scc1 %s_nofl" % name)
            e("buffer_load_dword v%d, v%d, s[%d:%d], s%d offen sc1" % (V_FLAG, V_T3, SRD_DBG, SRD_DBG+3, S_FOFF), tag="optional")
            e("%s_nofl:" % name)
        mf = []
        for nt in range(8):
            for rt in range(2):
                a = acc(nt, rt)
                mf.append(Ins("v_mfma_f32_16x16x32_bf16 v[%d:%d], a[%d:%d], a[%d:%d], v[%d:%d]" % (a, a+3, wfrag(nt), wfrag(nt)+3, afrag(s, rt), afrag(s, rt)+3, a, a+3)))
        fill = []
        for nt in range(8):
            r = tr_reads(s+1, nt)
            if notr: continue
            fill.append((min(2*nt+1, 15), Ins(r[0])))
            fill.append((min(2*nt+2, 15), Ins(r[1])))
        dm = dma_step((s + DW) % U)
        posd = [2, 8]
        for q, grp in enumerate(dm):
            for k_, t in enumerate(grp):
                if now and t.startswith("buffer"): continue
                fill.append((posd[q] - (len(grp)-1-k_), Ins(t, tag=("w", (s+DW) % U) if t.startswith("buffer") else None)))
        for q, t in enumerate(adv_w): fill.append((10+q, Ins(t)))
        for q, t in enumerate(a_loads(s + DA)):
            if not noact: fill.append((4+8*q, Ins(t)))
        if (s + DA) % 2 == 1: fill.append((14, Ins(adv_a)))
        fill.sort(key=lambda x: x[0])
        for ins in weave(mf, fill):
            if nomfma and ins.kind == 'mfma': continue
            p.add(ins)
    e("s_sub_u32 s%d, s%d, 1" % (S_CNT, S_CNT))
    e("s_cmp_lg_u32 s%d, 0" % S_CNT)
    e("s_cbranch_scc1 %s_g2" % name)
    p.loop_end()
    st.stamp()
    e("s_waitcnt vmcnt(0) lgkmcnt(0)")
    e("s_cmp_eq_u32 s%d, 1" % S_ROLE)
    e("s_cbranch_scc1 %s_epis" % name)
    LOG2E = f2u(1.4426950408889634)
    def rnd(a, b, t):
        e("v_cvt_pk_bf16_f32 v%d, v%d, v%d" % (t, a, b))
        e("v_lshlrev_b32 v%d, 16, v%d" % (a, t))
        e("v_and_b32 v%d, 0xffff0000, v%d" % (b, t))
    e("s_mov_b32 s52, 0x%x" % (LOG2E ^ 0x80000000))
    for u in range(4):
        for rt in range(2):
            d = 128 + 4*(2*u+rt)
            for half in range(2):
                nt = 2*u + half
                b = V_PRE + 2*nt
                a = acc(nt, rt)
                T = 112 + 4*half
                e("v_lshlrev_b32 v96, 16, v%d\nv_and_b32 v97, 0xffff0000, v%d\nv_lshlrev_b32 v98, 16, v%d\nv_and_b32 v99, 0xffff0000, v%d" % (b, b, b+1, b+1))
                rnd(a, a+1, V_T0); rnd(a+2, a+3, V_T1)
                for r in range(4): e("v_add_f32 v%d, v%d, v%d" % (a+r, a+r, 96+r))
                rnd(a, a+1, V_T0); rnd(a+2, a+3, V_T1)
                for r in range(4): e("v_mul_f32 v%d, s52, v%d" % (T+r, a+r))
                for r in range(4): e("v_exp_f32 v%d, v%d" % (T+r, T+r))
                for r in range(4): e("v_add_f32 v%d, 1.0, v%d" % (T+r, T+r))
                for r in range(4): e("v_rcp_f32 v%d, v%d" % (T+r, T+r))
                for r in range(4): e("v_mul_f32 v%d, v%d, v%d" % (a+r, a+r, T+r))
                e("v_cvt_pk_bf16_f32 v%d, v%d, v%d" % (d+2*half, a, a+1))
                e("v_cvt_pk_bf16_f32 v%d, v%d, v%d" % (d+2*half+1, a+2, a+3))
            e("s_add_u32 s%d, s%d, %d" % (S_T0, S_G, (2*u+rt)*1024))
            e("buffer_store_dwordx4 v[%d:%d], v%d, s[%d:%d], s%d offen sc1" % (d, d+3, V_XO, SRD_WS, SRD_WS+3, S_T0))
    e("s_waitcnt vmcnt(0)")
    e("s_barrier")
    e("s_cmp_lg_u32 s%d, 0" % S_WAVE)
    e("s_cbranch_scc1 %s_fin" % name)
    e("s_mov_b64 exec, 1")
    e("v_mov_b32 v%d, s%d" % (V_T0, S_FMASK))
    e("buffer_atomic_add v%d, v%d, s[%d:%d], s%d offen sc1" % (V_T0, V_T3, SRD_DBG, SRD_DBG+3, S_FOFF))
    e("s_waitcnt vmcnt(0)")
    e("s_branch %s_fin" % name)
    e("%s_epis:" % name)
    e("s_barrier")
    e("s_mov_b32 s53, 0x400000")
    e("%s_poll:" % name)
    e("v_readfirstlane_b32 s54, v%d" % V_FLAG)
    e("s_and_b32 s54, s54, s%d" % S_FMASK)
    e("s_cbranch_scc1 %s_polled" % name)
    e("s_sleep 1")
    e("buffer_load_dword v%d, v%d, s[%d:%d], s%d offen sc1" % (V_FLAG, V_T3, SRD_DBG, SRD_DBG+3, S_FOFF))
    e("s_waitcnt vmcnt(0)")
    e("s_sub_u32 s53, s53, 1")
    e("s_cmp_lg_u32 s53, 0")
    e("s_cbranch_scc1 %s_poll" % name)
    e("%s_polled:" % name)
    for k_ in range(8):
        e("s_add_u32 s%d, s%d, %d" % (S_T0, S_G, k_*1024))
        e("buffer_load_dwordx4 v[%d:%d], v%d, s[%d:%d], s%d offen sc1" % (128+4*k_, 128+4*k_+3, V_XO, SRD_WS, SRD_WS+3, S_T0))
    for nt in range(8):
        for rt in range(2):
            a = acc(nt, rt)
            rnd(a, a+1, V_T0); rnd(a+2, a+3, V_T1)
    for u in range(4):
        for rt in range(2):
            gq = 128 + 4*(2*u+rt)
            for half in range(2):
                nt = 2*u + half
                a = acc(nt, rt)
                T = 112 + 4*half
                e("v_lshlrev_b32 v%d, 16, v%d\nv_and_b32 v%d, 0xffff0000, v%d\nv_lshlrev_b32 v%d, 16, v%d\nv_and_b32 v%d, 0xffff0000, v%d" % (T, gq+2*half, T+1, gq+2*half, T+2, gq+2*half+1, T+3, gq+2*half+1))
                for r in range(4): e("v_mul_f32 v%d, v%d, v%d" % (a+r, a+r, T+r))
                e("v_cvt_pk_bf16_f32 v%d, v%d, v%d" % (a, a, a+1))
                e("v_cvt_pk_bf16_f32 v%d, v%d, v%d" % (a+1, a+2, a+3))
                e("ds_write_b64 v%d, v[%d:%d] offset:%d" % (V_LW, a, a+1, rt*16*272 + nt*32))
    e("s_waitcnt lgkmcnt(0)")
    for i in range(8):
        e("ds_read_b128 v[%d:%d], v%d offset:%d" % (128+4*i, 128+4*i+3, V_LR, i*4*272))
    for i in range(8):
        pr, xr = 128+4*i, V_PRE+4*i
        for h in range(2):
            T = 112 + 8*0
            for q in range(2):
                di = 2*h + q
                e("v_lshlrev_b32 v%d, 16, v%d" % (112+4*q, pr+di)); e("v_and_b32 v%d, 0xffff0000, v%d" % (113+4*q, pr+di))
                e("v_lshlrev_b32 v%d, 16, v%d" % (114+4*q, xr+di)); e("v_and_b32 v%d, 0xffff0000, v%d" % (115+4*q, xr+di))
            for q in range(2):
                e("v_add_f32 v%d, v%d, v%d" % (112+4*q, 112+4*q, 114+4*q)); e("v_add_f32 v%d, v%d, v%d" % (113+4*q, 113+4*q, 115+4*q))
            for q in range(2):
                e("v_cvt_pk_bf16_f32 v%d, v%d, v%d" % (pr+2*h+q, 112+4*q, 113+4*q))
        e("s_add_u32 s%d, s%d, %d" % (S_T0, S_XB, i*8192))
        e("buffer_store_dwordx4 v[%d:%d], v%d, s[%d:%d], s%d offen" % (pr, pr+3, V_RM, SRD_OUT, SRD_OUT+3, S_T0))
    e("%s_fin:" % name)
    if stamps:
        e("s_waitcnt vmcnt(0)")
        e("s_mov_b64 exec, -1")
        st.stamp(); st.stamp(True)
        st.dump(SRD_WS, V_T0, 2)
    e("%s_done:" % name)
    e("s_endpgm")
    return p

def arg(n, d):
    for a in sys.argv:
        if a.startswith(n + "="): return int(a[len(n)+1:])
    return d
def build_all(fn, stamps=False, k0kw={}, k1kw={}, k2kw={}):
    from k1 import k1, STEP_LDS
    ks = [("prep_kernel", k0("prep", stamps=stamps, **k0kw), 96, 102, 96),
          ("pa_kernel", k1("pa", stamps=stamps, **k1kw), 512, 102, 256),
          ("pb_kernel", k2("pb", stamps=stamps, **k2kw), 512, 102, 256)]
    ls = [("prep_kernel", (256,1,1), (512,1,1), 4096), ("pa_kernel", (256,1,1), (256,1,1), 8*STEP_LDS), ("pb_kernel", (256,1,1), (256,1,1), 16*IMG)]
    hdr = open("recurrent_scan__sliding_block_cached__dense_activation_squared_relu__prompt.s.ref").read().split("; Override")[0]
    open(fn + ".s", "w").write(assemble(ks, ls, header=hdr))
    import build
    return build.build(fn + ".s")
if __name__ == "__main__":
    fn = ([a[3:] for a in sys.argv if a.startswith("fn=")] + ["t2"])[0]
    print(build_all(fn, stamps="stamps" in sys.argv, k1kw=dict(D=arg("D", 3), BAR=arg("BAR1", 1), slack=arg("slack1", 6), pf2=bool(arg("pf2", 1)), force_slow=bool(arg("slow", 0))),
          k2kw=dict(DW=arg("DW", 8), DA=arg("DA", 8), BAR=arg("BAR", 4), same=arg("same", 0), noact=bool(arg("noact", 0)), now=bool(arg("now", 0)), slack=arg("slack", 4), xnt=bool(arg("xnt", 1)), notr=bool(arg("notr", 0)), nomfma=bool(arg("nomfma", 0)))))
```

```python
import re

def regs_of(tok):
    tok = tok.strip()
    neg = tok.lstrip('-')
    m = re.fullmatch(r'abs\((.*)\)|\|(.*)\|', neg)
    if m: neg = (m.group(1) or m.group(2))
    m = re.fullmatch(r'([vas])(\d+)', neg)
    if m: return [(m.group(1), int(m.group(2)))]
    m = re.fullmatch(r'([vas])\[(\d+):(\d+)\]', neg)
    if m: return [(m.group(1), i) for i in range(int(m.group(2)), int(m.group(3))+1)]
    if neg == 'vcc': return [('x','vcc')]
    if neg in ('vcc_lo','vcc_hi'): return [('x','vcc')]
    if neg == 'exec': return [('x','exec')]
    if neg == 'm0': return [('x','m0')]
    if neg == 'scc': return [('x','scc')]
    return []

TRANS = ('v_exp_f32','v_log_f32','v_rcp_f32','v_rsq_f32','v_sqrt_f32','v_sin_f32','v_cos_f32','v_rcp_iflag_f32')
SALU_NODST = ('s_cmp_','s_cbranch','s_branch','s_waitcnt','s_barrier','s_nop','s_setprio','s_endpgm','s_sleep','s_bitcmp')
SCC_W = ('s_add_','s_addc_','s_sub_','s_subb_','s_cmp_','s_and_','s_or_','s_xor_','s_lshl_','s_lshr_','s_ashr_','s_andn2_','s_orn2_','s_not_','s_min_','s_max_','s_addk_','s_bitcmp','s_bfe_','s_and_saveexec','s_or_saveexec','s_mul_hi' )
SCC_R = ('s_addc_','s_subb_','s_cselect_','s_cbranch_scc','s_cmov')

class Ins:
    __slots__ = ('text','op','kind','reads','writes','tag','lds','nops','mfma_passes','srcC','srcAB','store_wide','store_data','note','loadregs')
    def __init__(self, text, tag=None):
        self.text = text.strip()
        self.tag = tag
        t = self.text.split(';')[0].strip()
        parts = t.split(None, 1)
        self.op = op = parts[0]
        rest = parts[1] if len(parts) > 1 else ''
        ops = [o.strip() for o in re.split(r',(?![^\[]*\])', rest)] if rest else []
        mods = []
        if ops:
            l = ops[-1].split()
            if l:
                ops[-1] = l[0]; mods = l[1:]
        self.reads = set(); self.writes = set(); self.lds = False; self.nops = 0
        self.mfma_passes = 0; self.srcC = set(); self.srcAB = set(); self.store_wide = False; self.store_data = set(); self.loadregs = set()
        R = lambda toks: set(r for tk in toks for r in regs_of(tk))
        if op.endswith(':') and not rest:
            self.kind = 'label'
        elif op.startswith('.'):
            self.kind = 'dir'
        elif op.startswith('v_mfma'):
            self.kind = 'mfma'
            self.writes = R(ops[:1]); self.srcAB = R(ops[1:3]); self.srcC = R(ops[3:4])
            self.reads = self.srcAB | self.srcC | {('x','exec')}
            self.mfma_passes = 4 if '16x16x32' in op else 8 if '32x32x16' in op else None
            assert self.mfma_passes
        elif op.startswith('v_'):
            self.kind = 'trans' if op.replace('_e32','').replace('_e64','') in TRANS else 'valu'
            if op.startswith('v_cmp'):
                self.writes = R(ops[:1]); self.reads = R(ops[1:])
                if op.startswith('v_cmpx'): self.writes.add(('x','exec'))
            elif op.startswith(('v_add_co','v_sub_co','v_addc_co','v_subb_co','v_subrev_co')):
                self.writes = R(ops[:2]); self.reads = R(ops[2:])
            elif op.startswith(('v_permlane16_swap','v_permlane32_swap','v_swap')):
                self.writes = R(ops[:2]); self.reads = R(ops[:2])
            else:
                self.writes = R(ops[:1]); self.reads = R(ops[1:])
                if op.startswith(('v_fmac','v_dot2c','v_pk_fmac','v_writelane','v_mac')): self.reads |= self.writes
                if op.startswith('v_cndmask') and len(ops) == 3: self.reads.add(('x','vcc'))
                if 'dpp' in op or any(m.startswith(('row_','quad_perm','wave_','bank_mask')) for m in mods):
                    self.kind = 'dpp'; self.reads |= self.writes
            self.reads.add(('x','exec'))
        elif op.startswith('s_load') or op.startswith('s_buffer_load') or op in ('s_memtime','s_memrealtime'):
            self.kind = 'smem'
            self.writes = R(ops[:1]); self.reads = R(ops[1:]); self.loadregs = set(self.writes)
        elif op == 's_waitcnt':
            self.kind = 'wait'
        elif op == 's_nop':
            self.kind = 'nop'; self.nops = int(ops[0], 0)
        elif op == 's_barrier':
            self.kind = 'barrier'
        elif op.startswith(('s_branch','s_cbranch','s_endpgm','s_setpc')):
            self.kind = 'branch'
            if op.startswith('s_cbranch_scc'): self.reads = {('x','scc')}
            if op.startswith('s_cbranch_vcc'): self.reads = {('x','vcc')}
            if op.startswith('s_cbranch_exec'): self.reads = {('x','exec')}
        elif op.startswith('s_'):
            self.kind = 'salu'
            if op.startswith(SALU_NODST): self.reads = R(ops)
            else:
                self.writes = R(ops[:1]); self.reads = R(ops[1:])
                if op.startswith(('s_addk','s_mulk','s_cmov')): self.reads |= self.writes
            if op.startswith(SCC_W): self.writes.add(('x','scc'))
            if op.startswith(SCC_R): self.reads.add(('x','scc'))
            if 'saveexec' in op: self.writes.add(('x','exec')); self.reads.add(('x','exec'))
            if op == 's_getreg_b32': self.reads = set()
        elif op.startswith(('buffer_load','global_load')):
            if 'lds' in mods or op.startswith('global_load_lds'):
                self.kind = 'dma'; self.reads = R(ops) | {('x','m0')}
            else:
                self.kind = 'vload'; self.writes = R(ops[:1]); self.reads = R(ops[1:]); self.loadregs = set(self.writes)
                if 'd16' in op: pass
            self.reads.add(('x','exec'))
        elif op.startswith(('buffer_store','global_store')):
            self.kind = 'vstore'; self.reads = R(ops) | {('x','exec')}
            data = ops[0] if op.startswith('buffer') else ops[1]
            self.store_data = R([data])
            self.store_wide = op.endswith(('x3','x4'))
        elif op.startswith(('buffer_atomic','global_atomic')):
            self.kind = 'vstore'; self.reads = R(ops) | {('x','exec')}
            if 'sc0' in mods:
                self.kind = 'vload'; self.writes = R(ops[:1]); self.loadregs = set(self.writes)
        elif op.startswith('buffer_inv') or op.startswith('buffer_wbl2'):
            self.kind = 'vstore'
        elif op.startswith('ds_read') or op.startswith('ds_bpermute') or op.startswith('ds_swizzle'):
            self.kind = 'dsread'; self.writes = R(ops[:1]); self.reads = R(ops[1:]) | {('x','exec')}; self.loadregs = set(self.writes)
        elif op.startswith('ds_write'):
            self.kind = 'dswrite'; self.reads = R(ops) | {('x','exec')}
        else:
            raise ValueError("unknown instruction: " + text)
    def states(self):
        if self.kind in ('label','dir'): return 0
        if self.kind == 'nop': return self.nops + 1
        return 1

class Loop:
    def __init__(self, label, body_items, tail):
        self.label = label; self.items = body_items; self.tail = tail

class Prog:
    def __init__(self):
        self.items = []
        self.stack = [self.items]
    def e(self, text, tag=None):
        for l in text.split('\n'):
            l = l.strip()
            if not l or l.startswith(';'): continue
            self.stack[-1].append(Ins(l, tag))
    def add(self, ins):
        self.stack[-1].append(ins)
    def waitvm(self, tag):
        i = Ins('s_waitcnt vmcnt(0)'); i.kind = 'waittag'; i.tag = tag; self.stack[-1].append(i)
    def drain(self):
        self.e('s_waitcnt vmcnt(0) lgkmcnt(0)')
    def loop_begin(self, label):
        l = Loop(label, [], None)
        self.stack[-1].append(l)
        self.stack.append(l.items)
        return l
    def loop_end(self):
        self.stack.pop()

VMK = ('vload','vstore','dma')
LGK = ('dsread','dswrite','smem')

def parse_wait(text):
    vm = re.search(r'vmcnt\((\d+)\)', text); lg = re.search(r'lgkmcnt\((\d+)\)', text)
    return (int(vm.group(1)) if vm else None, int(lg.group(1)) if lg else None)

LG_SLACK = [0]
class WState:
    def __init__(self):
        self.vm = []
        self.lg = []
    def copy(self):
        s = WState(); s.vm = list(self.vm); s.lg = list(self.lg); return s
    def apply_wait(self, vm, lg):
        if vm is not None and len(self.vm) > vm: self.vm = self.vm[len(self.vm)-vm:] if vm else []
        if lg is not None:
            if any(i.kind == 'smem' for i in self.lg):
                if lg == 0: self.lg = []
            elif len(self.lg) > lg: self.lg = self.lg[len(self.lg)-lg:] if lg else []
    def need(self, ins):
        vm = lg = None
        touch = ins.reads | ins.writes
        if ins.kind == 'waittag':
            for p, o in enumerate(self.vm):
                if o.tag == ins.tag:
                    n = len(self.vm) - 1 - p
                    vm = n if vm is None else min(vm, n)
            return vm, None
        for p, o in enumerate(self.vm):
            if o.loadregs & touch:
                if ins.kind == 'vload' and not (o.loadregs & ins.reads) and ins.tag == 'pf' and o.tag == 'pf':
                    continue
                n = len(self.vm) - 1 - p
                vm = n if vm is None else min(vm, n)
        for p, o in enumerate(self.lg):
            if o.loadregs & touch:
                n = len(self.lg) - 1 - p
                if any(x.kind == 'smem' for x in self.lg): n = 0
                if n > 0 and ins.kind == 'mfma': n = max(0, min(n, 15) - LG_SLACK[0])
                lg = n if lg is None else min(lg, n)
        return vm, lg
    def issue(self, ins):
        if ins.tag == 'optional': return
        if ins.kind in VMK: self.vm.append(ins)
        elif ins.kind in LGK: self.lg.append(ins)

def flatten(items):
    out = []
    for it in items:
        if isinstance(it, Loop): out += flatten(it.items)
        else: out.append(it)
    return out

def insert_waits(items, st):
    out = []
    for it in items:
        if isinstance(it, Loop):
            body = it.items
            assert not any(isinstance(b, Loop) for b in body), "nested loops: not supported in wait pass"
            req = [(None, None)]*len(body)
            def mn(a, b): return b if a is None else a if b is None else min(a, b)
            for rounds in range(4):
                s = st.copy(); changed = False
                for p in range(3):
                    for k, ins in enumerate(body):
                        if ins.kind == 'wait':
                            s.apply_wait(*parse_wait(ins.text)); continue
                        v, l = s.need(ins)
                        nv, nl = mn(req[k][0], v), mn(req[k][1], l)
                        if (nv, nl) != req[k]: req[k] = (nv, nl); changed = True
                        s.apply_wait(None if req[k][0] is None else min(req[k][0], 63), None if req[k][1] is None else min(req[k][1], 15))
                        s.issue(ins)
                if not changed: break
            nb = []
            for k, ins in enumerate(body):
                v, l = req[k]
                if ins.kind == 'waittag':
                    if v is not None: nb.append(Ins('s_waitcnt vmcnt(%d)' % min(v, 63)))
                    continue
                if v is not None or l is not None:
                    t = 's_waitcnt' + (' vmcnt(%d)' % min(v, 63) if v is not None else '') + (' lgkmcnt(%d)' % min(l, 15) if l is not None else '')
                    nb.append(Ins(t))
                nb.append(ins)
            nl_ = Loop(it.label, nb, None)
            out.append(nl_)
            st = s
        else:
            ins = it
            if ins.kind == 'wait':
                st.apply_wait(*parse_wait(ins.text)); out.append(ins); continue
            v, l = st.need(ins)
            if v is not None: v = min(v, 63)
            if l is not None: l = min(l, 15)
            if ins.kind == 'waittag':
                if v is not None:
                    out.append(Ins('s_waitcnt vmcnt(%d)' % v)); st.apply_wait(v, None)
                continue
            if v is not None or l is not None:
                t = 's_waitcnt' + (' vmcnt(%d)' % v if v is not None else '') + (' lgkmcnt(%d)' % l if l is not None else '')
                out.append(Ins(t)); st.apply_wait(v, l)
            out.append(ins); st.issue(ins)
    return out, st

def isv(r): return r[0] in ('v','a')

def hazard_need(prev, ins):
    n = 0
    VAL = ('valu','trans','dpp')
    pw = prev.writes
    if prev.kind in VAL:
        vw = set(r for r in pw if isv(r))
        sw = set(r for r in pw if r[0] == 's' or r == ('x','vcc'))
        if ins.kind == 'mfma' and (vw & ins.reads): n = max(n, 2)
        if ins.kind == 'mfma' and ('x','exec') in pw: n = max(n, 4)
        if ins.op.startswith(('v_readfirstlane','v_readlane')) and (vw & ins.reads): n = max(n, 1)
        if ins.op.startswith('v_permlane') and (vw & ins.reads): n = max(n, 2)
        if ins.kind == 'dpp' and (vw & ins.reads): n = max(n, 2)
        if ins.kind == 'dpp' and ('x','exec') in pw: n = max(n, 5)
        if prev.kind == 'trans' and ins.kind in ('valu','dpp','mfma') and (vw & ins.reads): n = max(n, 1)
        if sw & ins.reads:
            if ins.kind in ('vload','vstore','dma'): n = max(n, 5)
            elif ins.kind in VAL: n = max(n, 2)
            if ins.op.startswith(('v_readlane','v_writelane')): n = max(n, 4)
            if ins.kind in ('salu','branch','smem'): n = max(n, 4)
        if ('x','exec') in pw and ins.op.startswith(('v_readlane','v_readfirstlane','v_writelane','v_permlane')): n = max(n, 4)
    if prev.kind == 'salu':
        if ('x','m0') in pw and ins.kind == 'dma': n = max(n, 1)
    if prev.kind == 'mfma':
        P = prev.mfma_passes
        tab_valu = {4: 8, 8: 12}[P]; tab_ab = {4: 8, 8: 12}[P]; tab_ovl = {4: 6, 8: 10}[P]; war = {4: 3, 8: 7}[P]
        if ins.kind == 'mfma':
            if pw & ins.srcAB: n = max(n, tab_ab)
            if pw & ins.srcC:
                if ins.srcC == pw and ins.mfma_passes == P: pass
                else: n = max(n, tab_ovl)
            if (pw & ins.writes) and not (ins.srcC == pw and ins.writes == pw):
                n = max(n, tab_valu)
        else:
            if ins.kind in VAL + ('vload','vstore','dma','dsread','dswrite'):
                if pw & (ins.reads | ins.writes): n = max(n, tab_valu)
            if ins.kind in VAL and (prev.srcC & ins.writes): n = max(n, war)
    if prev.kind == 'vstore' and prev.store_wide:
        if prev.store_data & ins.writes:
            n = max(n, 2 if ins.kind in VAL else 1)
    return n

def fix_hazards(items, ctx=None):
    hist = list(ctx or [])
    out = []
    def place(ins, hist, outl):
        need = 0; dist = 0
        for p in reversed(hist):
            h = hazard_need(p, ins)
            if h > dist: need = max(need, h - dist)
            dist += p.states()
            if dist > 24: break
        while need > 0:
            k = min(need, 16)
            nop = Ins('s_nop %d' % (k-1)); outl.append(nop); hist.append(nop); need -= k
        outl.append(ins); hist.append(ins)
        if len(hist) > 64: del hist[:32]
    for it in items:
        if isinstance(it, Loop):
            body = it.items
            for rounds in range(3):
                nb = []; h = list(hist)
                for ins in body: place(ins, h, nb)
                nb2 = []; h2 = list(h)
                for ins in nb: place(ins, h2, nb2)
                body = nb2
                if len(nb2) == len(nb) : break
            out.append(Loop(it.label, body, None))
            hist = list(flatten(body))[-40:]
        else:
            place(it, hist, out)
    return out

def render(items):
    lines = []
    for it in items:
        if isinstance(it, Loop):
            lines += render(it.items)
        else:
            lines.append(('' if it.kind == 'label' else '    ') + it.text)
    return lines

def finish(prog, stats=False):
    LG_SLACK[0] = getattr(prog, 'lg_slack', 0)
    items, st = insert_waits(prog.items, WState())
    items = fix_hazards(items)
    if stats:
        fl = flatten(items)
        from collections import Counter
        c = Counter(i.kind for i in fl)
        print(dict(c))
    return render(items)

def weave(mfmas, fillers, start=0, per_gap=1):
    n = len(mfmas)
    slots = [[] for _ in range(n)]
    for (pos, f) in fillers:
        slots[max(0, min(n-1, pos))].append(f)
    out = []
    for i in range(n):
        out.append(mfmas[i]); out += slots[i]
    return out
```

```python
import sys
from asmgen import *
from kern import *

STEP_LDS = 16896
IMG = 8448

def k1(name, U=8, D=None, dumpq=False, attn=True, stamps=False, fullunroll=False, wnt=True, pf2=True):
    p = Prog(); e = p.e
    if D is None: D = U - 1
    def accQ(nt, rt): return 16*nt + 4*rt
    def accH(nt, rt): return 128 + 16*nt + 4*rt
    V_TID, V_TR, V_DQ, V_D1, V_XO, V_T0, V_T1, V_T2, V_T3 = 240, 241, 242, 243, 244, 245, 246, 247, 248
    def wfrag(nt): return 4*nt
    def xfrag(step, rt): return 60 + 16*(step % U) + 4*rt
    S_WAVE = 3
    SRD_WQ, SRD_W1, SRD_WS, SRD_B1 = 8, 12, 16, 20
    S_XN, S_Q, S_1, S_MB, S_T0, S_T1, S_CG, S_RG, S_QMAX, S_1MAX, S_CNT = 24, 25, 26, 27, 28, 29, 30, 31, 32, 33, 34
    e("s_cmp_ge_u32 s2, 256")
    e("s_cbranch_scc1 %s_done" % name)
    st = Stamps(p, stamps)
    st.stamp(True); st.stamp()
    e("s_load_dwordx2 s[4:5], s[0:1], %d" % KA['wq'])
    e("s_load_dwordx4 s[36:39], s[0:1], %d" % KA['w1'])
    e("s_load_dwordx2 s[6:7], s[0:1], %d" % KA['ws'])
    e("v_mov_b32 v%d, v0" % V_TID)
    e("v_lshrrev_b32 v%d, 6, v0" % V_T0)
    e("v_and_b32 v%d, 63, v0" % V_TID)
    e("v_readfirstlane_b32 s%d, v%d" % (S_WAVE, V_T0))
    e("s_and_b32 s%d, s2, 7" % S_T0)
    e("s_lshr_b32 s%d, s2, 3" % S_T1)
    e("s_lshl_b32 s%d, s%d, 2" % (S_CG, S_T0))
    e("s_and_b32 s%d, s%d, 3" % (S_T0, S_T1))
    e("s_add_u32 s%d, s%d, s%d" % (S_CG, S_CG, S_T0))
    e("s_lshr_b32 s%d, s%d, 2" % (S_T1, S_T1))
    e("s_lshl_b32 s%d, s%d, 2" % (S_RG, S_T1))
    e("s_add_u32 s%d, s%d, s%d" % (S_RG, S_RG, S_WAVE))
    e("v_lshrrev_b32 v%d, 4, v%d" % (V_T0, V_TID))
    e("v_and_b32 v%d, 15, v%d" % (V_T1, V_TID))
    e("v_lshlrev_b32 v%d, 16, v%d" % (V_DQ, V_T0))
    e("v_lshl_add_u32 v%d, v%d, 4, v%d" % (V_DQ, V_T1, V_DQ))
    e("v_add_u32 v%d, 2, v%d" % (V_T2, V_T1))
    e("v_and_b32 v%d, 1, v%d" % (V_T3, V_T1))
    e("v_cmp_gt_u32 vcc, 12, v%d" % V_T1)
    e("v_cndmask_b32 v%d, v%d, v%d, vcc" % (V_T2, V_T3, V_T2))
    e("s_bitcmp1_b32 s%d, 0" % S_CG)
    e("s_cselect_b64 vcc, -1, 0")
    e("v_cndmask_b32 v%d, v%d, v%d, vcc" % (V_T2, V_T1, V_T2))
    e("v_mul_u32_u24 v%d, %d, v%d" % (V_D1, 8*7168, V_T0))
    e("v_lshl_add_u32 v%d, v%d, 4, v%d" % (V_D1, V_T2, V_D1))
    e("v_and_b32 v%d, 1, v%d" % (V_T2, V_T0))
    e("v_lshlrev_b32 v%d, 2, v%d" % (V_T2, V_T2))
    e("v_bfe_u32 v%d, v%d, 2, 2" % (V_T3, V_TID))
    e("v_add_u32 v%d, v%d, v%d" % (V_T2, V_T2, V_T3))
    e("v_mul_u32_u24 v%d, 1056, v%d" % (V_TR, V_T2))
    e("v_lshrrev_b32 v%d, 1, v%d" % (V_T2, V_T0))
    e("v_lshl_add_u32 v%d, v%d, 8, v%d" % (V_TR, V_T2, V_TR))
    e("v_and_b32 v%d, 3, v%d" % (V_T2, V_TID))
    e("v_lshl_add_u32 v%d, v%d, 3, v%d" % (V_TR, V_T2, V_TR))
    e("v_lshlrev_b32 v%d, 4, v%d" % (V_XO, V_TID))
    e("s_waitcnt lgkmcnt(0)")
    srd(p, SRD_WQ, 4, 8 << 20)
    srd(p, SRD_W1, 36, 7 << 20)
    srd(p, SRD_WS, 6, WS_SIZE)
    srd(p, SRD_B1, 38, 7168)
    e("s_lshl_b32 s%d, s%d, 17" % (S_XN, S_RG))
    e("s_lshl_b32 s%d, s%d, 8" % (S_Q, S_CG))
    e("s_lshl_b32 s%d, s%d, 14" % (S_T0, S_WAVE))
    e("s_add_u32 s%d, s%d, s%d" % (S_Q, S_Q, S_T0))
    e("s_add_u32 s%d, s%d, %d" % (S_QMAX, S_Q, 31*32*8192))
    e("s_mul_i32 s%d, s%d, 224" % (S_1, S_CG))
    e("s_mul_i32 s%d, s%d, %d" % (S_T0, S_WAVE, 2*7168))
    e("s_add_u32 s%d, s%d, s%d" % (S_1, S_1, S_T0))
    e("s_add_u32 s%d, s%d, %d" % (S_1MAX, S_1, 31*32*7168))
    e("s_mul_i32 s%d, s%d, %d" % (S_MB, S_WAVE, 2*1056))
    NT = " nt" if wnt else ""
    def dma_step(slot):
        b = slot*STEP_LDS
        return [
            ["s_add_u32 m0, s%d, %d" % (S_MB, b), "buffer_load_dwordx4 v%d, s[%d:%d], s%d offen%s lds" % (V_DQ, SRD_WQ, SRD_WQ+3, S_Q, NT)],
            ["s_add_u32 m0, s%d, %d" % (S_MB, b+1056), "s_add_u32 s%d, s%d, 8192" % (S_T0, S_Q), "buffer_load_dwordx4 v%d, s[%d:%d], s%d offen%s lds" % (V_DQ, SRD_WQ, SRD_WQ+3, S_T0, NT)],
            ["s_add_u32 m0, s%d, %d" % (S_MB, b+IMG), "buffer_load_dwordx4 v%d, s[%d:%d], s%d offen%s lds" % (V_D1, SRD_W1, SRD_W1+3, S_1, NT)],
            ["s_add_u32 m0, s%d, %d" % (S_MB, b+IMG+1056), "s_add_u32 s%d, s%d, 7168" % (S_T1, S_1), "buffer_load_dwordx4 v%d, s[%d:%d], s%d offen%s lds" % (V_D1, SRD_W1, SRD_W1+3, S_T1, NT)],
        ]
    adv_dma = ["s_add_u32 s%d, s%d, %d" % (S_Q, S_Q, 32*8192), "s_min_u32 s%d, s%d, s%d" % (S_Q, S_Q, S_QMAX),
               "s_add_u32 s%d, s%d, %d" % (S_1, S_1, 32*7168), "s_min_u32 s%d, s%d, s%d" % (S_1, S_1, S_1MAX)]
    def xn_loads(step):
        return ["buffer_load_dwordx4 a[%d:%d], v%d, s[%d:%d], s%d offen offset:%d" % (xfrag(step, rt), xfrag(step, rt)+3, V_XO, SRD_WS, SRD_WS+3, S_XN, rt*1024) for rt in range(4)]
    adv_xn = "s_add_u32 s%d, s%d, 4096" % (S_XN, S_XN)
    def tr_reads(step, nt):
        slot = step % U
        off = (slot % 4)*STEP_LDS + (IMG if nt >= 8 else 0) + ((nt - 8) if nt >= 8 else nt)*32
        return ["ds_read_b64_tr_b16 a[%d:%d], v%d offset:%d" % (wfrag(nt)+2*t, wfrag(nt)+2*t+1, V_TR, off + t*512) for t in range(2)]
    e("s_mul_i32 s%d, s%d, 224" % (S_T0, S_CG))
    e("v_lshrrev_b32 v%d, 4, v%d" % (V_T0, V_TID))
    e("v_lshlrev_b32 v%d, 3, v%d" % (V_T0, V_T0))
    e("s_and_b32 s%d, s%d, 1" % (S_T1, S_CG))
    e("s_lshl_b32 s%d, s%d, 5" % (S_T1, S_T1))
    e("s_add_u32 s%d, s%d, s%d" % (S_T1, S_T0, S_T1))
    for nt in range(6):
        e("buffer_load_dwordx2 v[%d:%d], v%d, s[%d:%d], s%d offen offset:%d" % (accH(nt, 3)+2, accH(nt, 3)+3, V_T0, SRD_B1, SRD_B1+3, S_T1, nt*32))
    e("s_bitcmp1_b32 s%d, 0" % S_CG)
    e("s_cselect_b32 s%d, 0, 192" % S_T1)
    e("s_add_u32 s%d, s%d, s%d" % (S_T1, S_T0, S_T1))
    e("buffer_load_dwordx2 v[%d:%d], v%d, s[%d:%d], s%d offen" % (accH(6, 3)+2, accH(6, 3)+3, V_T0, SRD_B1, SRD_B1+3, S_T1))
    st.stamp()
    for s in range(D):
        for grp in dma_step(s):
            for t in grp: e(t, tag=("dma", s % U) if t.startswith("buffer") else None)
        for t in adv_dma: e(t)
        for t in xn_loads(s): e(t)
        e(adv_xn)
    st.stamp()
    for i in range(128): e("v_mov_b32 v%d, 0" % i)
    for nt in range(7):
        b = accH(nt, 3)
        for rt in range(3):
            a = accH(nt, rt)
            e("v_lshlrev_b32 v%d, 16, v%d" % (a, b+2)); e("v_and_b32 v%d, 0xffff0000, v%d" % (a+1, b+2))
            e("v_lshlrev_b32 v%d, 16, v%d" % (a+2, b+3)); e("v_and_b32 v%d, 0xffff0000, v%d" % (a+3, b+3))
        e("v_lshlrev_b32 v%d, 16, v%d" % (b, b+2)); e("v_and_b32 v%d, 0xffff0000, v%d" % (b+1, b+2))
        e("v_lshlrev_b32 v%d, 16, v%d" % (b+2, b+3)); e("v_mov_b32 v%d, v%d" % (b+3, accH(nt, 2)+3))
    st.stamp()
    p.waitvm(("dma", 0))
    e("s_barrier")
    for nt in range(15):
        for t in tr_reads(0, nt): e(t)
    e("s_mov_b32 s%d, %d" % (S_CNT, 32//U))
    st.stamp()
    if not fullunroll:
        p.loop_begin("g1")
        e("%s_g1:" % name)
    for s in range(U if not fullunroll else 32):
        if fullunroll and s % 8 == 0 and s: st.stamp()
        p.waitvm(("dma", (s+1) % U))
        e("s_barrier")
        mf = []
        for nt in range(15):
            for rt in range(4):
                acc = accQ(nt, rt) if nt < 8 else accH(nt-8, rt)
                mf.append(Ins("v_mfma_f32_16x16x32_bf16 v[%d:%d], a[%d:%d], a[%d:%d], v[%d:%d]" % (acc, acc+3, wfrag(nt), wfrag(nt)+3, xfrag(s, rt), xfrag(s, rt)+3, acc, acc+3)))
        fill = []
        if (s+1) % 4 == 0:
            delta = 4*STEP_LDS if ((s+1) % U) // 4 == 1 else -(U-4)*STEP_LDS
            if U == 4: delta = 0
            if delta > 0: fill.append((0, Ins("v_add_u32 v%d, %d, v%d" % (V_TR, delta, V_TR))))
            elif delta < 0: fill.append((0, Ins("v_subrev_u32 v%d, %d, v%d" % (V_TR, -delta, V_TR))))
        for nt in range(15):
            r = tr_reads(s+1, nt)
            pos = 4*nt + 3
            fill.append((min(pos, 59), Ins(r[0])))
            fill.append((min(pos+1, 59), Ins(r[1])))
        dm = dma_step((s + D) % U)
        posd = [2, 10, 18, 26]
        for q, grp in enumerate(dm):
            for k_, t in enumerate(grp):
                fill.append((posd[q] - (len(grp)-1-k_), Ins(t, tag=("dma", (s+D) % U) if t.startswith("buffer") else None)))
        for q, t in enumerate(adv_dma): fill.append((30+q, Ins(t)))
        for q, t in enumerate(xn_loads(s + D)): fill.append((34+4*q, Ins(t)))
        fill.append((52, Ins(adv_xn)))
        fill.sort(key=lambda x: x[0])
        for ins in weave(mf, fill): p.add(ins)
    if not fullunroll:
        e("s_sub_u32 s%d, s%d, 1" % (S_CNT, S_CNT))
        e("s_cmp_lg_u32 s%d, 0" % S_CNT)
        e("s_cbranch_scc1 %s_g1" % name)
        p.loop_end()
    st.stamp()
    KV_SLOT = 16384
    S_KS, S_VS, S_MK = 41, 42, 43
    V_KV = V_TR
    def Oacc(dt, qt): return 16*dt + 4*qt
    def Sreg(par, kt2, qt): return 128 + 32*par + 16*kt2 + 4*qt
    def Preg(par, qt): return 192 + 16*par + 4*qt
    def negm(qt): return 224 + 4*qt
    def Qf(qt, u): return 16*qt + 4*u
    def Kf(kt2, u): return 64 + 16*kt2 + 4*u
    def Vf(dt): return 96 + 4*dt
    def Lacc(qt): return 128 + 4*qt
    ONES = 144
    S_RP = 45
    def kv_dma():
        return [["s_mov_b32 m0, s%d" % S_RP, "buffer_load_dwordx4 v%d, s[%d:%d], s%d offen lds" % (V_XO, SRD_WS, SRD_WS+3, S_KS)],
                ["buffer_load_dwordx4 v%d, s[%d:%d], s%d offen offset:1024 lds" % (V_XO, SRD_WS, SRD_WS+3, S_KS)],
                ["s_add_u32 m0, s%d, 8192" % S_RP, "buffer_load_dwordx4 v%d, s[%d:%d], s%d offen lds" % (V_XO, SRD_WS, SRD_WS+3, S_VS)],
                ["buffer_load_dwordx4 v%d, s[%d:%d], s%d offen offset:1024 lds" % (V_XO, SRD_WS, SRD_WS+3, S_VS)],
                ["s_add_u32 s%d, s%d, 8192" % (S_KS, S_KS), "s_add_u32 s%d, s%d, 8192" % (S_VS, S_VS)],
                ["s_add_u32 s%d, s%d, 16384" % (S_RP, S_RP), "s_and_b32 s%d, s%d, 0x1ffff" % (S_RP, S_RP)]]
    def tagkv(t, m): return ("kv", m) if t.startswith("buffer") else None
    if attn:
        e("s_barrier")
        e("s_lshr_b32 s%d, s%d, 3" % (S_T0, S_CG))
        e("s_lshl_b32 s%d, s%d, 17" % (S_T0, S_T0))
        e("s_lshl_b32 s%d, s%d, 11" % (S_RP, S_WAVE))
        e("s_add_u32 s%d, s%d, s%d" % (S_T0, S_T0, S_RP))
        e("s_add_u32 s%d, s%d, %d" % (S_KS, S_T0, WS_KP))
        e("s_add_u32 s%d, s%d, %d" % (S_VS, S_T0, WS_VP - 2*8192))
        for m in range(7):
            for grp in kv_dma():
                for t in grp: e(t, tag=tagkv(t, m))
        if pf2:
            e("s_load_dwordx2 s[46:47], s[0:1], %d" % KA['wo'])
            e("s_load_dwordx2 s[48:49], s[0:1], %d" % KA['w2'])
            e("s_waitcnt lgkmcnt(0)")
            srd(p, 52, 46, 8 << 20)
            srd(p, 56, 48, 7 << 20)
            e("s_lshl_b32 s50, s2, 15\ns_lshl_b32 s51, s%d, 13\ns_add_u32 s50, s50, s51" % S_WAVE)
            for r in range(8):
                e("buffer_load_dwordx4 a[148:151], v%d, s[52:55], s50 offen" % V_XO, tag="pf")
                if r < 7: e("s_add_u32 s50, s50, 1024")
            e("s_mul_i32 s50, s2, 28672\ns_mul_i32 s51, s%d, 7168\ns_add_u32 s50, s50, s51" % S_WAVE)
            for r in range(7):
                e("buffer_load_dwordx4 a[148:151], v%d, s[56:59], s50 offen" % V_XO, tag="pf")
                if r < 6: e("s_add_u32 s50, s50, 1024")
        for qt in range(4):
            for u in range(4):
                a, b = accQ(2*u, qt), accQ(2*u+1, qt)
                e("v_cvt_pk_bf16_f32 v%d, v%d, v%d" % (a, a, a+1))
                e("v_cvt_pk_bf16_f32 v%d, v%d, v%d" % (a+1, a+2, a+3))
                e("v_cvt_pk_bf16_f32 v%d, v%d, v%d" % (a+2, b, b+1))
                e("v_cvt_pk_bf16_f32 v%d, v%d, v%d" % (a+3, b+2, b+3))
                for r in range(4): e("v_accvgpr_write_b32 a%d, v%d" % (Qf(qt, u)+r, a+r))
    S_H0, S_H6 = 35, 40
    e("s_lshr_b32 s%d, s%d, 1" % (S_T0, S_CG))
    e("s_mul_i32 s%d, s%d, 7" % (S_T0, S_T0))
    e("s_and_b32 s%d, s%d, 1" % (S_T1, S_CG))
    e("s_lshl_b32 s%d, s%d, 2" % (S_H0, S_T1))
    e("s_add_u32 s%d, s%d, s%d" % (S_H0, S_H0, S_T0))
    e("s_lshl_b32 s%d, s%d, 11" % (S_H0, S_H0))
    e("s_add_u32 s%d, s%d, 3" % (S_H6, S_T0))
    e("s_lshl_b32 s%d, s%d, 11" % (S_H6, S_H6))
    e("s_lshl_b32 s%d, s%d, 3" % (S_T1, S_T1))
    e("s_add_u32 s%d, s%d, s%d" % (S_H6, S_H6, S_T1))
    e("s_mul_i32 s%d, s%d, %d" % (S_T0, S_RG, 2*112*2048))
    e("s_add_u32 s%d, s%d, %d" % (S_T0, S_T0, WS_HF))
    e("s_add_u32 s%d, s%d, s%d" % (S_H0, S_H0, S_T0))
    e("s_add_u32 s%d, s%d, s%d" % (S_H6, S_H6, S_T0))
    for rt in range(4):
        for nt in range(7):
            a = accH(nt, rt)
            for r in range(4):
                e("v_max_f32 v%d, 0, v%d" % (a+r, a+r))
            for r in range(4):
                e("v_mul_f32 v%d, v%d, v%d" % (a+r, a+r, a+r))
        for u in range(3):
            a, b = accH(2*u, rt), accH(2*u+1, rt)
            e("v_cvt_pk_bf16_f32 v%d, v%d, v%d" % (a, a, a+1))
            e("v_cvt_pk_bf16_f32 v%d, v%d, v%d" % (a+1, a+2, a+3))
            e("v_cvt_pk_bf16_f32 v%d, v%d, v%d" % (a+2, b, b+1))
            e("v_cvt_pk_bf16_f32 v%d, v%d, v%d" % (a+3, b+2, b+3))
            off = (rt >> 1)*112*2048 + (rt & 1)*1024 + u*2048
            e("s_add_u32 s%d, s%d, %d" % (S_T0, S_H0, off))
            e("buffer_store_dwordx4 v[%d:%d], v%d, s[%d:%d], s%d offen" % (a, a+3, V_XO, SRD_WS, SRD_WS+3, S_T0))
        a = accH(6, rt)
        e("v_cvt_pk_bf16_f32 v%d, v%d, v%d" % (a, a, a+1))
        e("v_cvt_pk_bf16_f32 v%d, v%d, v%d" % (a+1, a+2, a+3))
        off = (rt >> 1)*112*2048 + (rt & 1)*1024
        e("s_add_u32 s%d, s%d, %d" % (S_T0, S_H6, off))
        e("buffer_store_dwordx2 v[%d:%d], v%d, s[%d:%d], s%d offen" % (a, a+1, V_XO, SRD_WS, SRD_WS+3, S_T0))
    S_OB = 44
    e("s_lshl_b32 s%d, s%d, 19" % (S_T0, S_RG))
    e("s_lshl_b32 s%d, s%d, 13" % (S_T1, S_CG))
    e("s_add_u32 s%d, s%d, s%d" % (S_T0, S_T0, S_T1))
    e("s_add_u32 s%d, s%d, %d" % (S_OB, S_T0, WS_OF))
    if dumpq and not attn:
        for rt in range(4):
            for u in range(4):
                a, b = accQ(2*u, rt), accQ(2*u+1, rt)
                e("v_cvt_pk_bf16_f32 v%d, v%d, v%d" % (a, a, a+1))
                e("v_cvt_pk_bf16_f32 v%d, v%d, v%d" % (a+1, a+2, a+3))
                e("v_cvt_pk_bf16_f32 v%d, v%d, v%d" % (a+2, b, b+1))
                e("v_cvt_pk_bf16_f32 v%d, v%d, v%d" % (a+3, b+2, b+3))
                off = (rt >> 1)*128*2048 + (rt & 1)*1024 + u*2048
                e("s_add_u32 s%d, s%d, %d" % (S_T0, S_OB, off))
                e("buffer_store_dwordx4 v[%d:%d], v%d, s[%d:%d], s%d offen" % (a, a+3, V_XO, SRD_WS, SRD_WS+3, S_T0))
    if attn:
        st.stamp()
        def kread(kt2, u, rel=0):
            return "ds_read_b128 a[%d:%d], v%d offset:%d" % (Kf(kt2, u), Kf(kt2, u)+3, V_KV, rel*KV_SLOT + (4*kt2+u)*1024)
        def vread(dt, rel=0):
            return "ds_read_b128 a[%d:%d], v%d offset:%d" % (Vf(dt), Vf(dt)+3, V_KV, rel*KV_SLOT + 8192 + dt*1024)
        def qk_mfmas(par, first):
            out = []
            for kt2 in range(2):
                for u in range(4):
                    for qt in range(4):
                        s_ = Sreg(par, kt2, qt)
                        if u == 0: c = "0" if first else "v[%d:%d]" % (negm(qt), negm(qt)+3)
                        else: c = "v[%d:%d]" % (s_, s_+3)
                        out.append(Ins("v_mfma_f32_16x16x32_bf16 v[%d:%d], a[%d:%d], a[%d:%d], %s" % (s_, s_+3, Kf(kt2, u), Kf(kt2, u)+3, Qf(qt, u), Qf(qt, u)+3, c)))
            return out
        def pv_mfmas(par, first):
            out = []
            for dt in range(8):
                for qt in range(4):
                    o = Oacc(dt, qt)
                    c = "0" if first else "v[%d:%d]" % (o, o+3)
                    out.append(Ins("v_mfma_f32_16x16x32_bf16 v[%d:%d], a[%d:%d], v[%d:%d], %s" % (o, o+3, Vf(dt), Vf(dt)+3, Preg(par, qt), Preg(par, qt)+3, c)))
            for qt in range(4):
                l = Lacc(qt)
                c = "0" if first else "a[%d:%d]" % (l, l+3)
                out.append(Ins("v_mfma_f32_16x16x32_bf16 a[%d:%d], a[%d:%d], v[%d:%d], %s" % (l, l+3, ONES, ONES+3, Preg(par, qt), Preg(par, qt)+3, c)))
            return out
        def softmax_ops(par):
            ops = []
            for qt in range(4):
                for kt2 in range(2):
                    s_ = Sreg(par, kt2, qt)
                    for h in range(2):
                        ops.append(("exp", "v_exp_f32 v%d, v%d" % (s_+2*h, s_+2*h)))
                        ops.append(("exp", "v_exp_f32 v%d, v%d" % (s_+2*h+1, s_+2*h+1)))
                        ops.append(("cvt", "v_cvt_pk_bf16_f32 v%d, v%d, v%d" % (Preg(par, qt)+2*kt2+h, s_+2*h, s_+2*h+1)))
            return ops
        def step(j, qk, pv, pvfirst, sm, dma, rd_k, rd_v, dmatag=None):
            par = j & 1
            mf = []; fill = []
            kpos = {}; vpos = {}
            if qk:
                mf += qk_mfmas(1-par, False)
                for f in range(8): kpos[f] = 4*f + 3
            n0 = len(mf)
            if pv:
                mf += pv_mfmas(1-par, pvfirst)
                for f in range(8): vpos[f] = n0 + 4*f + 3
            n = len(mf)
            if rd_k:
                for f in range(8): fill.append((kpos[f], 1, Ins(kread(f//4, f % 4))))
            if rd_v:
                for f in range(8): fill.append((vpos.get(f, min(n-1, 2*f+1)), 1, Ins(vread(f))))
            if sm:
                k_ = 0
                for kind, t in softmax_ops(par):
                    if kind == "exp":
                        pos = (k_*(n-2))//32
                        k_ += 1; last = pos
                        fill.append((pos, 0, Ins(t)))
                    else:
                        fill.append((min(n-1, last+1), 2, Ins(t)))
            if dma:
                pos = 5
                for grp in kv_dma():
                    for q, t in enumerate(grp):
                        fill.append((min(n-1, pos - (len(grp)-1-q)), 3, Ins(t, tag=tagkv(t, dmatag))))
                    pos += 4
            if rd_k or rd_v:
                fill.append((n-1, 9, Ins("v_add_u32 v%d, %d, v%d" % (V_KV, KV_SLOT, V_KV))))
                fill.append((n-1, 9, Ins("v_and_b32 v%d, 0x1ffff, v%d" % (V_KV, V_KV))))
            fill.sort(key=lambda x: (x[0], x[1]))
            for ins in weave(mf, [(a, c) for a, b, c in fill]): p.add(ins)
        e("v_mov_b32 v%d, v%d" % (V_KV, V_XO))
        e("v_mov_b32 v%d, 0x3f803f80" % V_T0)
        for r in range(4): e("v_accvgpr_write_b32 a%d, v%d" % (ONES+r, V_T0))
        p.waitvm(("kv", 2))
        p.waitvm(("kv", 1))
        p.waitvm(("kv", 0))
        e("s_barrier")
        for f in range(8): e(kread(f//4, f % 4, 0))
        for ins in qk_mfmas(0, True): p.add(ins)
        for f in range(8): e(kread(f//4, f % 4, 1))
        e("v_add_u32 v%d, %d, v%d" % (V_KV, 2*KV_SLOT, V_KV))
        for qt in range(4):
            t0, t1 = V_T0, V_T1
            a, b = Sreg(0, 0, qt), Sreg(0, 1, qt)
            e("v_max3_f32 v%d, v%d, v%d, v%d" % (t0, a, a+1, a+2))
            e("v_max3_f32 v%d, v%d, v%d, v%d" % (t1, a+3, b, b+1))
            e("v_max3_f32 v%d, v%d, v%d, v%d" % (t0, t0, b+2, b+3))
            e("v_max_f32 v%d, v%d, v%d" % (t0, t0, t1))
            e("v_mov_b32 v%d, v%d" % (t1, t0))
            e("v_permlane32_swap_b32 v%d, v%d" % (t0, t1))
            e("v_max_f32 v%d, v%d, v%d" % (t0, t0, t1))
            e("v_mov_b32 v%d, v%d" % (t1, t0))
            e("v_permlane16_swap_b32 v%d, v%d" % (t0, t1))
            e("v_max_f32 v%d, v%d, v%d" % (t0, t0, t1))
            for r in range(4): e("v_sub_f32 v%d, 0, v%d" % (negm(qt)+r, t0))
            for r in range(4):
                e("v_sub_f32 v%d, v%d, v%d" % (a+r, a+r, t0))
                e("v_sub_f32 v%d, v%d, v%d" % (b+r, b+r, t0))
        st.stamp()
        step(0, True, False, False, True, True, True, True, dmatag=7)
        p.waitvm(("kv", 4)); p.waitvm(("kv", 3))
        e("s_barrier")
        step(1, True, True, True, True, True, True, True, dmatag=8)
        e("s_mov_b32 s%d, 6" % S_CNT)
        p.loop_begin("at")
        e("%s_at:" % name)
        step(2, True, True, False, True, True, True, True)
        e("s_waitcnt vmcnt(12)")
        e("s_barrier")
        step(3, True, True, False, True, True, True, True)
        e("s_sub_u32 s%d, s%d, 1" % (S_CNT, S_CNT))
        e("s_cmp_lg_u32 s%d, 0" % S_CNT)
        e("s_cbranch_scc1 %s_at" % name)
        p.loop_end()
        step(14, True, True, False, True, False, False, True)
        e("s_waitcnt vmcnt(12)")
        e("s_barrier")
        step(15, False, True, False, True, False, False, True)
        step(16, False, True, False, False, False, False, False)
        st.stamp()
        for qt in range(4):
            e("v_accvgpr_read_b32 v%d, a%d" % (negm(qt), Lacc(qt)))
        for qt in range(4):
            e("v_rcp_f32 v%d, v%d" % (negm(qt)+1, negm(qt)))
        for qt in range(4):
            e("v_fma_f32 v%d, -v%d, v%d, 2.0" % (negm(qt)+2, negm(qt), negm(qt)+1))
            e("v_mul_f32 v%d, v%d, v%d" % (negm(qt)+1, negm(qt)+1, negm(qt)+2))
        for qt in range(4):
            for u in range(4):
                a, b = Oacc(2*u, qt), Oacc(2*u+1, qt)
                for r in range(4):
                    e("v_mul_f32 v%d, v%d, v%d" % (a+r, a+r, negm(qt)+1))
                    e("v_mul_f32 v%d, v%d, v%d" % (b+r, b+r, negm(qt)+1))
                e("v_cvt_pk_bf16_f32 v%d, v%d, v%d" % (a, a, a+1))
                e("v_cvt_pk_bf16_f32 v%d, v%d, v%d" % (a+1, a+2, a+3))
                e("v_cvt_pk_bf16_f32 v%d, v%d, v%d" % (a+2, b, b+1))
                e("v_cvt_pk_bf16_f32 v%d, v%d, v%d" % (a+3, b+2, b+3))
                off = (qt >> 1)*128*2048 + (qt & 1)*1024 + u*2048
                e("s_add_u32 s%d, s%d, %d" % (S_T0, S_OB, off))
                e("buffer_store_dwordx4 v[%d:%d], v%d, s[%d:%d], s%d offen" % (a, a+3, V_XO, SRD_WS, SRD_WS+3, S_T0))
    st.stamp()
    e("s_waitcnt vmcnt(0)")
    st.stamp(); st.stamp(True)
    st.dump(SRD_WS, V_T0, 1)
    e("%s_done:" % name)
    e("s_endpgm")
    return p

if __name__ == "__main__":
    ks = [("prep_kernel", k0("prep", stamps=True, prefetch=("nopf" not in sys.argv)), 96, 102, 96), ("pa_kernel", k1("pa", dumpq=True, attn=("noattn" not in sys.argv), stamps=True, fullunroll=("fu" in sys.argv), D=int([a for a in sys.argv if a.startswith("D=")][0][2:]) if any(a.startswith("D=") for a in sys.argv) else None), 512, 102, 256)]
    ls = [("prep_kernel", (256,1,1), (512,1,1), 4096), ("pa_kernel", (256,1,1), (256,1,1), 8*STEP_LDS)]
    open("t1.s", "w").write(assemble(ks, ls))
    import build
    print(build.build("t1.s"))
```

```python
import sys, math
from asmgen import *

WS_XN = 0
WS_KP = 4 << 20
WS_VP = (4 << 20) + (512 << 10)
WS_OF = 8 << 20
WS_HF = 24 << 20
WS_G  = 40 << 20
WS_DBG = 48 << 20
WS_SIZE = 256 << 20
KA = dict(x=0, k=8, v=16, wq=24, wo=32, bx=40, w1=48, b1=56, w2=64, b2=72, out=80, dbg=88, ws=96)
CSCALE = math.log2(math.e) / math.sqrt(128.0)

def f2u(x):
    import struct
    return struct.unpack('<I', struct.pack('<f', x))[0]

def srd(p, d, base, nbytes, add=0):
    if add:
        p.e("s_add_u32 s%d, s%d, 0x%x" % (d, base, add))
        p.e("s_addc_u32 s%d, s%d, 0" % (d+1, base+1))
    else:
        p.e("s_mov_b32 s%d, s%d" % (d, base))
        p.e("s_mov_b32 s%d, s%d" % (d+1, base+1))
    p.e("s_mov_b32 s%d, 0x%x" % (d+2, nbytes))
    p.e("s_mov_b32 s%d, 0x20000" % (d+3))

class Stamps:
    def __init__(self, p, on): self.p = p; self.on = on; self.n = 0
    def stamp(self, real=False):
        if not self.on: return
        r = 64 + 2*self.n; self.n += 1
        self.p.e("%s s[%d:%d]" % ("s_memrealtime" if real else "s_memtime", r, r+1))
        self.p.e("s_waitcnt lgkmcnt(0)")
    def dump(self, srd_ws, vtmp, kidx):
        if not self.on: return
        e = self.p.e
        e("s_mov_b64 exec, 1")
        e("s_lshl_b32 s62, s2, 9")
        e("s_lshl_b32 s63, s3, 6")
        e("s_add_u32 s62, s62, s63")
        e("s_add_u32 s62, s62, 0x%x" % (WS_DBG + kidx*(1 << 20)))
        e("v_mov_b32 v%d, 0" % vtmp)
        for i in range(self.n):
            e("v_mov_b32 v%d, s%d" % (vtmp+1, 64+2*i))
            e("buffer_store_dword v%d, v%d, s[%d:%d], s62 offen offset:%d" % (vtmp+1, vtmp, srd_ws, srd_ws+3, 4*i))
        e("s_waitcnt vmcnt(0)")

def k0(name, prefetch=True, stamps=False):
    p = Prog(); e = p.e
    st = Stamps(p, stamps)
    e("s_cmp_ge_u32 s2, 256")
    e("s_cbranch_scc1 %s_done" % name)
    st.stamp(True)
    e("s_load_dwordx2 s[4:5], s[0:1], %d" % KA['x'])
    e("s_load_dwordx2 s[6:7], s[0:1], %d" % KA['ws'])
    e("s_load_dwordx4 s[24:27], s[0:1], %d" % KA['k'])
    e("s_load_dwordx2 s[28:29], s[0:1], %d" % KA['wq'])
    e("s_load_dwordx2 s[30:31], s[0:1], %d" % KA['w1'])
    e("v_and_b32 v1, 63, v0")
    e("v_lshrrev_b32 v2, 6, v0")
    e("v_and_b32 v3, 15, v1")
    e("v_lshrrev_b32 v4, 4, v1")
    e("v_readfirstlane_b32 s3, v2")
    def pf():
        if not prefetch: return
        srd(p, 32, 28, 8 << 20)
        srd(p, 36, 30, 7 << 20)
        e("s_and_b32 s40, s2, 7\ns_lshr_b32 s41, s2, 3")
        e("s_lshl_b32 s41, s41, 5\ns_lshl_b32 s42, s3, 2\ns_add_u32 s41, s41, s42")
        e("s_lshl_b32 s42, s41, 13\ns_lshl_b32 s43, s40, 10\ns_add_u32 s42, s42, s43")
        e("s_mul_i32 s43, s41, 7168\ns_mul_i32 s44, s40, 896\ns_add_u32 s43, s43, s44")
        e("v_lshlrev_b32 v88, 4, v1")
        e("v_min_u32 v89, 55, v1\nv_lshlrev_b32 v89, 4, v89")
        for r in range(4):
            e("buffer_load_dwordx4 v[84:87], v88, s[32:35], s42 offen nt", tag="pf")
            e("buffer_load_dwordx4 v[84:87], v89, s[36:39], s43 offen nt", tag="pf")
            if r < 3: e("s_add_u32 s42, s42, 8192\ns_add_u32 s43, s43, 7168")
    e("s_cmp_ge_u32 s2, 128")
    e("s_cbranch_scc1 %s_kv" % name)
    e("s_waitcnt lgkmcnt(0)")
    srd(p, 8, 4, 4 << 20)
    srd(p, 12, 6, 4 << 20, WS_XN)
    e("s_lshl_b32 s16, s2, 15")
    e("s_lshl_b32 s17, s3, 8")
    e("s_add_u32 s16, s16, s17")
    e("v_lshlrev_b32 v5, 11, v3")
    e("v_lshl_add_u32 v5, v4, 3, v5")
    for q in range(4):
        e("buffer_load_dwordx2 v[%d:%d], v5, s[8:11], s16 offen offset:%d nt" % (16+4*q, 17+4*q, q*64))
        e("buffer_load_dwordx2 v[%d:%d], v5, s[8:11], s16 offen offset:%d nt" % (18+4*q, 19+4*q, q*64+32))
    pf()
    e("v_mul_u32_u24 v6, 48, v3")
    e("s_lshl_b32 s18, s3, 2")
    e("v_add_u32 v7, s18, v6")
    for r in range(16):
        e("v_lshlrev_b32 v%d, 16, v%d" % (32+2*r, 16+r))
        e("v_and_b32 v%d, 0xffff0000, v%d" % (33+2*r, 16+r))
    def reduce_all(src, lds_off):
        e("v_mov_b32 v9, v%d" % src)
        e("v_permlane32_swap_b32 v%d, v9" % src)
        e("v_add_f32 v%d, v%d, v9" % (src, src))
        e("v_mov_b32 v9, v%d" % src)
        e("v_permlane16_swap_b32 v%d, v9" % src)
        e("v_add_f32 v%d, v%d, v9" % (src, src))
        e("ds_write_b32 v7, v%d offset:%d" % (src, lds_off))
        e("s_waitcnt lgkmcnt(0)")
        e("s_barrier")
        e("ds_read_b128 v[64:67], v6 offset:%d" % lds_off)
        e("ds_read_b128 v[68:71], v6 offset:%d" % (lds_off+16))
        e("v_add_f32 v64, v64, v65\nv_add_f32 v66, v66, v67\nv_add_f32 v68, v68, v69\nv_add_f32 v70, v70, v71")
        e("v_add_f32 v64, v64, v66\nv_add_f32 v68, v68, v70\nv_add_f32 v8, v64, v68")
    for i in range(4):
        e("v_add_f32 v%d, v%d, v%d" % (72+i, 32+i, 36+i))
    for r in range(8, 32):
        e("v_add_f32 v%d, v%d, v%d" % (72+(r % 4), 72+(r % 4), 32+r))
    e("v_add_f32 v72, v72, v73\nv_add_f32 v74, v74, v75\nv_add_f32 v72, v72, v74")
    reduce_all(72, 0)
    e("v_mul_f32 v10, 0x%x, v8" % f2u(1.0/1024))
    for r in range(32):
        e("v_sub_f32 v%d, v%d, v10" % (80+(r % 4), 32+r))
        if r < 4: e("v_mul_f32 v%d, v%d, v%d" % (72+r, 80+(r % 4), 80+(r % 4)))
        else: e("v_fmac_f32 v%d, v%d, v%d" % (72+(r % 4), 80+(r % 4), 80+(r % 4)))
    e("v_add_f32 v72, v72, v73\nv_add_f32 v74, v74, v75\nv_add_f32 v72, v72, v74")
    reduce_all(72, 1024)
    e("v_mul_f32 v11, 0x%x, v8" % f2u(1.0/1024))
    e("v_cvt_pk_bf16_f32 v12, v10, v11")
    e("v_and_b32 v11, 0xffff0000, v12")
    e("v_lshlrev_b32 v10, 16, v12")
    e("v_add_f32 v11, 0x%x, v11" % f2u(1e-5))
    e("v_cvt_pk_bf16_f32 v12, v11, v11")
    e("v_and_b32 v11, 0xffff0000, v12")
    e("v_sqrt_f32 v11, v11")
    e("v_cvt_pk_bf16_f32 v12, v11, v11")
    e("v_and_b32 v11, 0xffff0000, v12")
    e("v_rcp_f32 v13, v11")
    for r in range(16):
        a, b = 32+2*r, 33+2*r
        e("v_sub_f32 v%d, v%d, v10" % (a, a))
        e("v_sub_f32 v%d, v%d, v10" % (b, b))
        e("v_cvt_pk_bf16_f32 v%d, v%d, v%d" % (16+r, a, b))
        e("v_lshlrev_b32 v%d, 16, v%d" % (a, 16+r))
        e("v_and_b32 v%d, 0xffff0000, v%d" % (b, 16+r))
        e("v_mul_f32 v80, v%d, v13" % a)
        e("v_mul_f32 v81, v%d, v13" % b)
        e("v_fma_f32 v%d, -v80, v11, v%d" % (a, a))
        e("v_fma_f32 v%d, -v81, v11, v%d" % (b, b))
        e("v_fmac_f32 v80, v%d, v13" % a)
        e("v_fmac_f32 v81, v%d, v13" % b)
        e("v_cvt_pk_bf16_f32 v%d, v80, v81" % (16+r))
    e("s_lshr_b32 s16, s2, 2\ns_lshl_b32 s16, s16, 17")
    e("s_and_b32 s17, s2, 3\ns_lshl_b32 s17, s17, 10")
    e("s_add_u32 s16, s16, s17")
    e("s_lshl_b32 s17, s3, 14")
    e("s_add_u32 s16, s16, s17")
    e("v_lshlrev_b32 v5, 4, v1")
    for q in range(4):
        e("s_add_u32 s17, s16, %d" % (q*4096))
        e("buffer_store_dwordx4 v[%d:%d], v5, s[12:15], s17 offen" % (16+4*q, 19+4*q))
    def fin():
        if stamps:
            e("s_waitcnt vmcnt(0)")
            e("s_memrealtime s[66:67]")
            e("s_waitcnt lgkmcnt(0)")
            srd(p, 48, 6, WS_SIZE)
            n0 = st.n; st.n = 2
            st.dump(48, 90, 0)
            st.n = n0
    fin()
    e("s_endpgm")
    e("%s_kv:" % name)
    e("s_waitcnt lgkmcnt(0)")
    e("s_sub_u32 s16, s2, 128")
    e("s_lshl_b32 s16, s16, 3")
    e("s_add_u32 s16, s16, s3")
    e("s_and_b32 s17, s16, 511")
    e("s_lshr_b32 s18, s17, 7")
    e("s_lshr_b32 s19, s17, 3\ns_and_b32 s19, s19, 15")
    e("s_lshl_b32 s20, s18, 19")
    e("s_lshl_b32 s21, s19, 13")
    e("s_add_u32 s20, s20, s21")
    e("s_add_u32 s20, s20, %d" % (1536*256))
    e("s_lshl_b32 s22, s17, 10")
    e("v_lshlrev_b32 v5, 4, v1")
    e("s_cmp_ge_u32 s16, 512")
    e("s_cbranch_scc1 %s_v" % name)
    srd(p, 8, 24, 2 << 20)
    srd(p, 12, 6, 512 << 10, WS_KP)
    e("s_lshr_b32 s21, s17, 2\ns_and_b32 s21, s21, 1\ns_lshl_b32 s21, s21, 12")
    e("s_add_u32 s20, s20, s21")
    e("s_and_b32 s21, s17, 3\ns_lshl_b32 s21, s21, 6")
    e("s_add_u32 s20, s20, s21")
    e("v_lshlrev_b32 v6, 8, v3")
    e("v_lshl_add_u32 v6, v4, 3, v6")
    e("buffer_load_dwordx2 v[16:17], v6, s[8:11], s20 offen nt")
    e("buffer_load_dwordx2 v[18:19], v6, s[8:11], s20 offen offset:32 nt")
    pf()
    e("s_mov_b32 s23, 0x%x" % f2u(CSCALE))
    for r in range(4):
        e("v_lshlrev_b32 v20, 16, v%d" % (16+r))
        e("v_and_b32 v21, 0xffff0000, v%d" % (16+r))
        e("v_mul_f32 v20, s23, v20")
        e("v_mul_f32 v21, s23, v21")
        e("v_cvt_pk_bf16_f32 v%d, v20, v21" % (16+r))
    e("buffer_store_dwordx4 v[16:19], v5, s[12:15], s22 offen")
    fin()
    e("s_endpgm")
    e("%s_v:" % name)
    srd(p, 8, 26, 2 << 20)
    srd(p, 12, 6, 512 << 10, WS_VP)
    e("s_and_b32 s21, s17, 7\ns_lshl_b32 s21, s21, 5")
    e("s_add_u32 s20, s20, s21")
    e("s_add_u32 s21, s20, 4096")
    e("v_lshlrev_b32 v6, 1, v3")
    e("v_lshl_add_u32 v6, v4, 10, v6")
    for j in range(4):
        e("buffer_load_ushort v%d, v6, s[8:11], s20 offen offset:%d nt" % (24+j, j*256))
    for j in range(4):
        e("buffer_load_ushort v%d, v6, s[8:11], s21 offen offset:%d nt" % (28+j, j*256))
    pf()
    for r in range(4):
        e("v_lshl_or_b32 v%d, v%d, 16, v%d" % (16+r, 25+2*r, 24+2*r))
    e("buffer_store_dwordx4 v[16:19], v5, s[12:15], s22 offen")
    fin()
    e("%s_done:" % name)
    e("s_endpgm")
    return p

def assemble(kernels, launches, header=""):
    out = []
    if header: out.append(header.rstrip("\n"))
    for (n, g, b, l) in launches:
        out.append("; @launch kernel=%s grid=(%d,%d,%d) block=(%d,%d,%d) lds=%d" % (n, g[0], g[1], g[2], b[0], b[1], b[2], l))
    out.append('.amdgcn_target "amdgcn-amd-amdhsa--gfx950"')
    out.append(".text")
    for (n, prog, v, s, a) in kernels:
        out += [".globl %s" % n, ".p2align 8", ".type %s,@function" % n, "%s:" % n]
        out += finish(prog)
    out.append('.section .rodata,"a"')
    for (n, prog, v, s, a) in kernels:
        out += [".p2align 6", ".amdhsa_kernel %s" % n,
                "  .amdhsa_next_free_vgpr %d" % v, "  .amdhsa_next_free_sgpr %d" % s, "  .amdhsa_accum_offset %d" % a,
                "  .amdhsa_group_segment_fixed_size 0", "  .amdhsa_kernarg_size 104", "  .amdhsa_user_sgpr_count 2",
                "  .amdhsa_user_sgpr_kernarg_segment_ptr 1", "  .amdhsa_system_sgpr_workgroup_id_x 1",
                "  .amdhsa_float_denorm_mode_32 3", "  .amdhsa_float_denorm_mode_16_64 3",
                ".end_amdhsa_kernel"]
    return "\n".join(out) + "\n"

if __name__ == "__main__":
    ks = [("prep_kernel", k0("prep"), 96, 48, 96)]
    ls = [("prep_kernel", (256,1,1), (512,1,1), 4096)]
    open("t0.s", "w").write(assemble(ks, ls))
    import build
    print(build.build("t0.s"))
```

```python
import sys
from asmgen import *
from kern import *

IMG = 8448
def k2(name, DW=12, DA=12, BAR=4, stamps=False, same=0, noact=False, now=False, slack=4):
    p = Prog(); e = p.e
    st = Stamps(p, stamps)
    p.lg_slack = slack
    U = 16
    SRD_A = 56
    V_DW2 = 111
    def acc(nt, rt): return 8*nt + 4*rt
    V_PRE = 64
    V_TID, V_TR0, V_TR1, V_TR2, V_DW, V_XO, V_T0, V_T1, V_T2, V_T3, V_OUT = 100, 101, 102, 103, 104, 105, 106, 107, 108, 109, 110
    def wfrag(nt): return 4*nt
    def afrag(step, rt): return 32 + 8*(step % U) + 4*rt
    S_WAVE = 3
    SRD_W, SRD_WS, SRD_X, SRD_OUT, SRD_DBG = 8, 12, 16, 20, 24
    S_A, S_W, S_MB, S_T0, S_T1, S_ROLE, S_RT, S_CT, S_CNT, S_WMAX, S_G, S_PAIR = 28, 29, 30, 31, 32, 33, 34, 35, 36, 37, 38, 39
    e("s_cmp_ge_u32 s2, 256")
    e("s_cbranch_scc1 %s_done" % name)
    st.stamp(True); st.stamp()
    e("s_load_dwordx2 s[4:5], s[0:1], %d" % KA['wo'])
    e("s_load_dwordx4 s[40:43], s[0:1], %d" % KA['w2'])
    e("s_load_dwordx4 s[44:47], s[0:1], %d" % KA['out'])
    e("s_load_dwordx2 s[6:7], s[0:1], %d" % KA['ws'])
    e("s_load_dwordx2 s[48:49], s[0:1], %d" % KA['x'])
    e("v_lshrrev_b32 v%d, 6, v0" % V_T0)
    e("v_and_b32 v%d, 63, v0" % V_TID)
    e("v_readfirstlane_b32 s%d, v%d" % (S_WAVE, V_T0))
    e("s_bfe_u32 s%d, s2, 0x10002" % S_ROLE)
    e("s_and_b32 s%d, s2, 3" % S_T0)
    e("s_lshr_b32 s%d, s2, 3" % S_T1)
    e("s_lshr_b32 s%d, s%d, 1" % (S_RT, S_T0))
    e("s_lshl_b32 s%d, s%d, 3" % (S_RT, S_RT))
    e("s_lshr_b32 s%d, s%d, 2" % (S_CT, S_T1))
    e("s_add_u32 s%d, s%d, s%d" % (S_RT, S_RT, S_CT))
    e("s_and_b32 s%d, s%d, 1" % (S_CT, S_T0))
    e("s_lshl_b32 s%d, s%d, 2" % (S_CT, S_CT))
    e("s_and_b32 s%d, s%d, 3" % (S_T1, S_T1))
    e("s_add_u32 s%d, s%d, s%d" % (S_CT, S_CT, S_T1))
    if same & 1: e("s_mov_b32 s%d, 0" % S_RT)
    if same & 2: e("s_mov_b32 s%d, 0" % S_CT)
    e("s_lshl_b32 s%d, s%d, 3" % (S_PAIR, S_RT))
    e("s_add_u32 s%d, s%d, s%d" % (S_PAIR, S_PAIR, S_CT))
    e("v_lshrrev_b32 v%d, 4, v%d" % (V_T0, V_TID))
    e("v_and_b32 v%d, 15, v%d" % (V_T1, V_TID))
    e("v_lshlrev_b32 v%d, 14, v%d" % (V_DW, V_T0))
    e("v_lshl_add_u32 v%d, v%d, 4, v%d" % (V_DW, V_T1, V_DW))
    e("v_and_b32 v%d, 1, v%d" % (V_T2, V_T0))
    e("v_lshlrev_b32 v%d, 2, v%d" % (V_T2, V_T2))
    e("v_bfe_u32 v%d, v%d, 2, 2" % (V_T3, V_TID))
    e("v_add_u32 v%d, v%d, v%d" % (V_T2, V_T2, V_T3))
    e("v_mul_u32_u24 v%d, 1056, v%d" % (V_TR0, V_T2))
    e("v_lshrrev_b32 v%d, 1, v%d" % (V_T2, V_T0))
    e("v_lshl_add_u32 v%d, v%d, 8, v%d" % (V_TR0, V_T2, V_TR0))
    e("v_and_b32 v%d, 3, v%d" % (V_T2, V_TID))
    e("v_lshl_add_u32 v%d, v%d, 3, v%d" % (V_TR0, V_T2, V_TR0))
    e("v_add_u32 v%d, %d, v%d" % (V_DW2, 2048-1056, V_DW))
    e("v_add_u32 v%d, %d, v%d" % (V_TR1, 7*IMG, V_TR0))
    e("v_add_u32 v%d, %d, v%d" % (V_TR2, 14*IMG, V_TR0))
    e("v_lshlrev_b32 v%d, 4, v%d" % (V_XO, V_TID))
    e("v_lshlrev_b32 v%d, 11, v%d" % (V_OUT, V_T1))
    e("v_lshl_add_u32 v%d, v%d, 3, v%d" % (V_OUT, V_T0, V_OUT))
    e("s_waitcnt lgkmcnt(0)")
    def sel(d, x, y):
        e("s_mov_b32 s%d, 0x%x" % (d, y))
        e("s_cselect_b32 s%d, 0x%x, s%d" % (d, x, d))
    S_NU, S_AB = 51, 55
    e("s_cmp_eq_u32 s%d, 1" % S_ROLE)
    e("s_cselect_b32 s%d, s4, s40" % SRD_W)
    e("s_cselect_b32 s%d, s5, s41" % (SRD_W+1))
    sel(SRD_W+2, 8 << 20, 7 << 20)
    e("s_mov_b32 s%d, 0x20000" % (SRD_W+3))
    sel(S_NU, 128*2048, 112*2048)
    sel(S_AB, WS_OF, WS_HF)
    e("s_cselect_b32 s%d, 8, 7" % S_CNT)
    srd(p, SRD_WS, 6, WS_SIZE)
    srd(p, SRD_OUT, 44, 4 << 20)
    srd(p, SRD_DBG, 46, 256)
    e("s_lshl_b32 s%d, s%d, 2" % (S_T0, S_RT))
    e("s_add_u32 s%d, s%d, s%d" % (S_T0, S_T0, S_WAVE))
    e("s_mul_i32 s%d, s%d, s%d" % (S_A, S_T0, S_NU))
    e("s_add_u32 s%d, s%d, s%d" % (S_A, S_A, S_AB))
    e("s_add_u32 s%d, s6, s%d" % (SRD_A, S_A))
    e("s_addc_u32 s%d, s7, 0" % (SRD_A+1))
    e("s_mov_b32 s%d, s%d" % (SRD_A+2, S_NU))
    e("s_mov_b32 s%d, 0x20000" % (SRD_A+3))
    e("s_mov_b32 s%d, 0" % S_A)
    e("s_lshl_b32 s%d, s%d, 8" % (S_W, S_CT))
    e("s_lshl_b32 s%d, s%d, 12" % (S_T0, S_WAVE))
    e("s_add_u32 s%d, s%d, s%d" % (S_W, S_W, S_T0))
    e("s_mul_i32 s%d, s%d, %d" % (S_MB, S_WAVE, 2*1056))
    e("s_lshl_b32 s%d, s%d, 15" % (S_G, S_PAIR))
    e("s_lshl_b32 s%d, s%d, 13" % (S_T0, S_WAVE))
    e("s_add_u32 s%d, s%d, s%d" % (S_G, S_G, S_T0))
    e("s_add_u32 s%d, s%d, 0x%x" % (S_G, S_G, WS_G))
    S_XB = 50
    e("s_lshl_b32 s%d, s%d, 18" % (S_XB, S_RT))
    e("s_lshl_b32 s%d, s%d, 16" % (S_T0, S_WAVE))
    e("s_add_u32 s%d, s%d, s%d" % (S_XB, S_XB, S_T0))
    e("s_lshl_b32 s%d, s%d, 8" % (S_T0, S_CT))
    e("s_add_u32 s%d, s%d, s%d" % (S_XB, S_XB, S_T0))
    V_PRE_O, S_P0, S_P1 = 113, 58+2, 58+3
    e("s_cmp_eq_u32 s%d, 1" % S_ROLE)
    e("s_cselect_b32 s%d, s48, s42" % SRD_X)
    e("s_cselect_b32 s%d, s49, s43" % (SRD_X+1))
    sel(SRD_X+2, 4 << 20, 2048)
    e("s_mov_b32 s%d, 0x20000" % (SRD_X+3))
    e("s_lshl_b32 s%d, s%d, 8" % (S_T0, S_CT))
    e("s_cmp_eq_u32 s%d, 1" % S_ROLE)
    e("s_cselect_b32 s%d, s%d, s%d" % (S_P0, S_XB, S_T0))
    e("s_cselect_b32 s%d, 0x8000, 0" % S_T0)
    e("s_cselect_b64 vcc, -1, 0")
    e("s_add_u32 s%d, s%d, s%d" % (S_P1, S_P0, S_T0))
    e("v_lshrrev_b32 v%d, 4, v%d" % (V_T0, V_TID))
    e("v_lshlrev_b32 v%d, 3, v%d" % (V_T0, V_T0))
    e("v_cndmask_b32 v%d, v%d, v%d, vcc" % (V_PRE_O, V_T0, V_OUT))
    def preload():
        for nt in range(8):
            e("buffer_load_dwordx2 v[%d:%d], v%d, s[%d:%d], s%d offen offset:%d nt" % (V_PRE+4*nt, V_PRE+4*nt+1, V_PRE_O, SRD_X, SRD_X+3, S_P0, nt*32), tag="optional")
            e("buffer_load_dwordx2 v[%d:%d], v%d, s[%d:%d], s%d offen offset:%d nt" % (V_PRE+4*nt+2, V_PRE+4*nt+3, V_PRE_O, SRD_X, SRD_X+3, S_P1, nt*32), tag="optional")
    def dma_step(slot):
        b = slot*IMG
        return [["s_add_u32 m0, s%d, %d" % (S_MB, b), "buffer_load_dwordx4 v%d, s[%d:%d], s%d offen lds" % (V_DW, SRD_W, SRD_W+3, S_W)],
                ["buffer_load_dwordx4 v%d, s[%d:%d], s%d offen offset:1056 lds" % (V_DW2, SRD_W, SRD_W+3, S_W)]]
    adv_w = ["s_add_u32 s%d, s%d, %d" % (S_W, S_W, 32*2048)]
    def a_loads(step):
        return ["buffer_load_dwordx4 a[%d:%d], v%d, s[%d:%d], s%d offen offset:%d" % (afrag(step, rt), afrag(step, rt)+3, V_XO, SRD_A, SRD_A+3, S_A, (step % 2)*2048 + rt*1024) for rt in range(2)]
    adv_a = "s_add_u32 s%d, s%d, 4096" % (S_A, S_A)
    def tr_reads(step, nt):
        slot = step % U
        v, o = (V_TR0, slot) if slot < 7 else (V_TR1, slot-7) if slot < 14 else (V_TR2, slot-14)
        return ["ds_read_b64_tr_b16 a[%d:%d], v%d offset:%d" % (wfrag(nt)+2*t, wfrag(nt)+2*t+1, v, o*IMG + nt*32 + t*512) for t in range(2)]
    DM = max(DW, DA)
    for s in range(DM):
        if s < DW:
            for grp in dma_step(s):
                for t in grp: e(t, tag=("w", s) if t.startswith("buffer") else None)
            for t in adv_w: e(t)
        if s < DA:
            for t in a_loads(s): e(t)
            if s % 2 == 1: e(adv_a)
        if s == 1:
            for i in range(64): e("v_mov_b32 v%d, 0" % i)
    st.stamp()
    p.waitvm(("w", 0))
    e("s_barrier")
    for nt in range(8):
        for t in tr_reads(0, nt): e(t)
    st.stamp()
    p.loop_begin("g2")
    e("%s_g2:" % name)
    e("s_cmp_lg_u32 s%d, 1" % S_CNT)
    e("s_cbranch_scc1 %s_nopre" % name)
    preload()
    e("%s_nopre:" % name)
    for s in range(U):
        if s % BAR == 0:
            p.waitvm(("w", (s+BAR) % U))
            e("s_barrier")
        mf = []
        for nt in range(8):
            for rt in range(2):
                a = acc(nt, rt)
                mf.append(Ins("v_mfma_f32_16x16x32_bf16 v[%d:%d], a[%d:%d], a[%d:%d], v[%d:%d]" % (a, a+3, wfrag(nt), wfrag(nt)+3, afrag(s, rt), afrag(s, rt)+3, a, a+3)))
        fill = []
        for nt in range(8):
            r = tr_reads(s+1, nt)
            fill.append((min(2*nt+1, 15), Ins(r[0])))
            fill.append((min(2*nt+2, 15), Ins(r[1])))
        dm = dma_step((s + DW) % U)
        posd = [2, 8]
        for q, grp in enumerate(dm):
            for k_, t in enumerate(grp):
                if now and t.startswith("buffer"): continue
                fill.append((posd[q] - (len(grp)-1-k_), Ins(t, tag=("w", (s+DW) % U) if t.startswith("buffer") else None)))
        for q, t in enumerate(adv_w): fill.append((10+q, Ins(t)))
        for q, t in enumerate(a_loads(s + DA)):
            if not noact: fill.append((4+8*q, Ins(t)))
        if (s + DA) % 2 == 1: fill.append((14, Ins(adv_a)))
        fill.sort(key=lambda x: x[0])
        for ins in weave(mf, fill): p.add(ins)
    e("s_sub_u32 s%d, s%d, 1" % (S_CNT, S_CNT))
    e("s_cmp_lg_u32 s%d, 0" % S_CNT)
    e("s_cbranch_scc1 %s_g2" % name)
    p.loop_end()
    st.stamp()
    e("s_waitcnt vmcnt(0) lgkmcnt(0)")
    e("s_cmp_eq_u32 s%d, 1" % S_ROLE)
    e("s_cbranch_scc1 %s_epis" % name)
    LOG2E = f2u(1.4426950408889634)
    def rnd(a, b, t):
        e("v_cvt_pk_bf16_f32 v%d, v%d, v%d" % (t, a, b))
        e("v_lshlrev_b32 v%d, 16, v%d" % (a, t))
        e("v_and_b32 v%d, 0xffff0000, v%d" % (b, t))
    e("s_mov_b32 s52, 0x%x" % LOG2E)
    for nt in range(8):
        b = V_PRE + 4*nt
        e("v_lshlrev_b32 v96, 16, v%d\nv_and_b32 v97, 0xffff0000, v%d\nv_lshlrev_b32 v98, 16, v%d\nv_and_b32 v99, 0xffff0000, v%d" % (b, b, b+1, b+1))
        for rt in range(2):
            a = acc(nt, rt)
            rnd(a, a+1, V_T0); rnd(a+2, a+3, V_T0)
            for r in range(4): e("v_add_f32 v%d, v%d, v%d" % (a+r, a+r, 96+r))
            rnd(a, a+1, V_T0); rnd(a+2, a+3, V_T0)
            for r in range(4): e("v_mul_f32 v%d, s52, v%d" % (112+r, a+r))
            for r in range(4): e("v_exp_f32 v%d, -v%d" % (112+r, 112+r))
            for r in range(4): e("v_add_f32 v%d, 1.0, v%d" % (112+r, 112+r))
            for r in range(4): e("v_rcp_f32 v%d, v%d" % (112+r, 112+r))
            for r in range(4): e("v_mul_f32 v%d, v%d, v%d" % (a+r, a+r, 112+r))
    for u in range(4):
        for rt in range(2):
            a, b = acc(2*u, rt), acc(2*u+1, rt)
            d = 116 + 4*((2*u+rt) % 4)
            e("v_cvt_pk_bf16_f32 v%d, v%d, v%d" % (d, a, a+1))
            e("v_cvt_pk_bf16_f32 v%d, v%d, v%d" % (d+1, a+2, a+3))
            e("v_cvt_pk_bf16_f32 v%d, v%d, v%d" % (d+2, b, b+1))
            e("v_cvt_pk_bf16_f32 v%d, v%d, v%d" % (d+3, b+2, b+3))
            e("s_add_u32 s%d, s%d, %d" % (S_T0, S_G, (2*u+rt)*1024))
            e("buffer_store_dwordx4 v[%d:%d], v%d, s[%d:%d], s%d offen sc1" % (d, d+3, V_XO, SRD_WS, SRD_WS+3, S_T0))
    e("s_waitcnt vmcnt(0)")
    e("s_barrier")
    e("s_cmp_lg_u32 s%d, 0" % S_WAVE)
    e("s_cbranch_scc1 %s_fin" % name)
    e("s_lshr_b32 s%d, s%d, 1" % (S_T0, S_PAIR))
    e("s_lshl_b32 s%d, s%d, 2" % (S_T0, S_T0))
    e("s_and_b32 s%d, s%d, 1" % (S_T1, S_PAIR))
    e("s_lshl_b32 s%d, s%d, 4" % (S_T1, S_T1))
    e("s_lshl_b32 s%d, 1, s%d" % (S_T1, S_T1))
    e("s_mov_b64 exec, 1")
    e("v_mov_b32 v%d, s%d" % (V_T0, S_T1))
    e("v_mov_b32 v%d, 0" % V_T1)
    e("buffer_atomic_add v%d, v%d, s[%d:%d], s%d offen sc1" % (V_T0, V_T1, SRD_DBG, SRD_DBG+3, S_T0))
    e("s_waitcnt vmcnt(0)")
    e("s_branch %s_fin" % name)
    e("%s_epis:" % name)
    e("s_cmp_lg_u32 s%d, 0" % S_WAVE)
    e("s_cbranch_scc1 %s_polled" % name)
    e("s_lshr_b32 s%d, s%d, 1" % (S_T0, S_PAIR))
    e("s_lshl_b32 s%d, s%d, 2" % (S_T0, S_T0))
    e("s_and_b32 s%d, s%d, 1" % (S_T1, S_PAIR))
    e("s_lshl_b32 s%d, s%d, 4" % (S_T1, S_T1))
    e("s_lshl_b32 s%d, 1, s%d" % (S_T1, S_T1))
    e("v_mov_b32 v%d, 0" % V_T1)
    e("s_mov_b32 s53, 0x400000")
    e("%s_poll:" % name)
    e("buffer_load_dword v%d, v%d, s[%d:%d], s%d offen sc1" % (V_T0, V_T1, SRD_DBG, SRD_DBG+3, S_T0))
    e("s_waitcnt vmcnt(0)")
    e("v_readfirstlane_b32 s54, v%d" % V_T0)
    e("s_and_b32 s54, s54, s%d" % S_T1)
    e("s_cbranch_scc1 %s_polled" % name)
    e("s_sleep 2")
    e("s_sub_u32 s53, s53, 1")
    e("s_cmp_lg_u32 s53, 0")
    e("s_cbranch_scc1 %s_poll" % name)
    e("%s_polled:" % name)
    e("s_barrier")
    for k_ in range(8):
        e("s_add_u32 s%d, s%d, %d" % (S_T0, S_G, k_*1024))
        e("buffer_load_dwordx4 v[%d:%d], v%d, s[%d:%d], s%d offen sc1" % (128+4*k_, 128+4*k_+3, V_XO, SRD_WS, SRD_WS+3, S_T0))
    e("s_add_u32 s%d, s%d, 32768" % (S_T1, S_XB))
    for u in range(4):
        for rt in range(2):
            gq = 128 + 4*(2*u+rt)
            for half in range(2):
                nt = 2*u + half
                a = acc(nt, rt)
                xr = V_PRE + 4*nt + 2*rt
                rnd(a, a+1, V_T0); rnd(a+2, a+3, V_T0)
                e("v_lshlrev_b32 v112, 16, v%d\nv_and_b32 v113, 0xffff0000, v%d\nv_lshlrev_b32 v114, 16, v%d\nv_and_b32 v115, 0xffff0000, v%d" % (gq+2*half, gq+2*half, gq+2*half+1, gq+2*half+1))
                for r in range(4): e("v_mul_f32 v%d, v%d, v%d" % (a+r, a+r, 112+r))
                rnd(a, a+1, V_T0); rnd(a+2, a+3, V_T0)
                e("v_lshlrev_b32 v112, 16, v%d\nv_and_b32 v113, 0xffff0000, v%d\nv_lshlrev_b32 v114, 16, v%d\nv_and_b32 v115, 0xffff0000, v%d" % (xr, xr, xr+1, xr+1))
                for r in range(4): e("v_add_f32 v%d, v%d, v%d" % (a+r, a+r, 112+r))
                e("v_cvt_pk_bf16_f32 v%d, v%d, v%d" % (a, a, a+1))
                e("v_cvt_pk_bf16_f32 v%d, v%d, v%d" % (a+1, a+2, a+3))
                e("buffer_store_dwordx2 v[%d:%d], v%d, s[%d:%d], s%d offen offset:%d" % (a, a+1, V_OUT, SRD_OUT, SRD_OUT+3, S_XB if rt == 0 else S_T1, nt*32))
    e("%s_fin:" % name)
    if stamps:
        e("s_waitcnt vmcnt(0)")
        e("s_mov_b64 exec, -1")
        st.stamp(); st.stamp(True)
        st.dump(SRD_WS, V_T0, 2)
    e("%s_done:" % name)
    e("s_endpgm")
    return p

if __name__ == "__main__":
    from k1 import k1, STEP_LDS
    stamps = "stamps" in sys.argv
    def arg(n, d):
        for a in sys.argv:
            if a.startswith(n + "="): return int(a[len(n)+1:])
        return d
    ks = [("prep_kernel", k0("prep", stamps=stamps), 96, 102, 96),
          ("pa_kernel", k1("pa", D=3, stamps=stamps), 512, 102, 256),
          ("pb_kernel", k2("pb", DW=arg("DW", 12), DA=arg("DA", 12), BAR=arg("BAR", 4), stamps=stamps, same=arg("same", 0), noact=bool(arg("noact", 0)), now=bool(arg("now", 0)), slack=arg("slack", 4)), 512, 102, 256)]
    ls = [("prep_kernel", (256,1,1), (512,1,1), 4096), ("pa_kernel", (256,1,1), (256,1,1), 8*STEP_LDS), ("pb_kernel", (256,1,1), (256,1,1), 16*IMG)]
    out = arg("o", None)
    fn = ([a[3:] for a in sys.argv if a.startswith("fn=")] + ["t2"])[0] + ".s"
    hdr = open("recurrent_scan__sliding_block_cached__dense_activation_squared_relu__prompt.s.ref").read().split("; Override")[0]
    open(fn, "w").write(assemble(ks, ls, header=hdr))
    import build
    print(build.build(fn))
```

```python
import re

def regs_of(tok):
    tok = tok.strip()
    neg = tok.lstrip('-')
    m = re.fullmatch(r'abs\((.*)\)|\|(.*)\|', neg)
    if m: neg = (m.group(1) or m.group(2))
    m = re.fullmatch(r'([vas])(\d+)', neg)
    if m: return [(m.group(1), int(m.group(2)))]
    m = re.fullmatch(r'([vas])\[(\d+):(\d+)\]', neg)
    if m: return [(m.group(1), i) for i in range(int(m.group(2)), int(m.group(3))+1)]
    if neg == 'vcc': return [('x','vcc')]
    if neg in ('vcc_lo','vcc_hi'): return [('x','vcc')]
    if neg == 'exec': return [('x','exec')]
    if neg == 'm0': return [('x','m0')]
    if neg == 'scc': return [('x','scc')]
    return []

TRANS = ('v_exp_f32','v_log_f32','v_rcp_f32','v_rsq_f32','v_sqrt_f32','v_sin_f32','v_cos_f32','v_rcp_iflag_f32')
SALU_NODST = ('s_cmp_','s_cbranch','s_branch','s_waitcnt','s_barrier','s_nop','s_setprio','s_endpgm','s_sleep','s_bitcmp')
SCC_W = ('s_add_','s_addc_','s_sub_','s_subb_','s_cmp_','s_and_','s_or_','s_xor_','s_lshl_','s_lshr_','s_ashr_','s_andn2_','s_orn2_','s_not_','s_min_','s_max_','s_addk_','s_bitcmp','s_bfe_','s_and_saveexec','s_or_saveexec','s_mul_hi' )
SCC_R = ('s_addc_','s_subb_','s_cselect_','s_cbranch_scc','s_cmov')

class Ins:
    __slots__ = ('text','op','kind','reads','writes','tag','lds','nops','mfma_passes','srcC','srcAB','store_wide','store_data','note','loadregs','noslack')
    def __init__(self, text, tag=None):
        self.text = text.strip()
        self.tag = tag
        self.noslack = False
        t = self.text.split(';')[0].strip()
        parts = t.split(None, 1)
        self.op = op = parts[0]
        rest = parts[1] if len(parts) > 1 else ''
        ops = [o.strip() for o in re.split(r',(?![^\[]*\])', rest)] if rest else []
        mods = []
        if ops:
            l = ops[-1].split()
            if l:
                ops[-1] = l[0]; mods = l[1:]
        self.reads = set(); self.writes = set(); self.lds = False; self.nops = 0
        self.mfma_passes = 0; self.srcC = set(); self.srcAB = set(); self.store_wide = False; self.store_data = set(); self.loadregs = set()
        R = lambda toks: set(r for tk in toks for r in regs_of(tk))
        if op.endswith(':') and not rest:
            self.kind = 'label'
        elif op.startswith('.'):
            self.kind = 'dir'
        elif op.startswith('v_mfma'):
            self.kind = 'mfma'
            self.writes = R(ops[:1]); self.srcAB = R(ops[1:3]); self.srcC = R(ops[3:4])
            self.reads = self.srcAB | self.srcC | {('x','exec')}
            self.mfma_passes = 4 if '16x16x32' in op else 8 if '32x32x16' in op else None
            assert self.mfma_passes
        elif op.startswith('v_'):
            self.kind = 'trans' if op.replace('_e32','').replace('_e64','') in TRANS else 'valu'
            if op.startswith('v_cmp'):
                self.writes = R(ops[:1]); self.reads = R(ops[1:])
                if op.startswith('v_cmpx'): self.writes.add(('x','exec'))
            elif op.startswith(('v_add_co','v_sub_co','v_addc_co','v_subb_co','v_subrev_co')):
                self.writes = R(ops[:2]); self.reads = R(ops[2:])
            elif op.startswith(('v_permlane16_swap','v_permlane32_swap','v_swap')):
                self.writes = R(ops[:2]); self.reads = R(ops[:2])
            else:
                self.writes = R(ops[:1]); self.reads = R(ops[1:])
                if op.startswith(('v_fmac','v_dot2c','v_pk_fmac','v_writelane','v_mac')): self.reads |= self.writes
                if op.startswith('v_cndmask') and len(ops) == 3: self.reads.add(('x','vcc'))
                if 'dpp' in op or any(m.startswith(('row_','quad_perm','wave_','bank_mask')) for m in mods):
                    self.kind = 'dpp'; self.reads |= self.writes
            self.reads.add(('x','exec'))
        elif op.startswith('s_load') or op.startswith('s_buffer_load') or op in ('s_memtime','s_memrealtime'):
            self.kind = 'smem'
            self.writes = R(ops[:1]); self.reads = R(ops[1:]); self.loadregs = set(self.writes)
        elif op == 's_waitcnt':
            self.kind = 'wait'
        elif op == 's_nop':
            self.kind = 'nop'; self.nops = int(ops[0], 0)
        elif op == 's_barrier':
            self.kind = 'barrier'
        elif op.startswith(('s_branch','s_cbranch','s_endpgm','s_setpc')):
            self.kind = 'branch'
            if op.startswith('s_cbranch_scc'): self.reads = {('x','scc')}
            if op.startswith('s_cbranch_vcc'): self.reads = {('x','vcc')}
            if op.startswith('s_cbranch_exec'): self.reads = {('x','exec')}
        elif op.startswith('s_'):
            self.kind = 'salu'
            if op.startswith(SALU_NODST): self.reads = R(ops)
            else:
                self.writes = R(ops[:1]); self.reads = R(ops[1:])
                if op.startswith(('s_addk','s_mulk','s_cmov')): self.reads |= self.writes
            if op.startswith(SCC_W): self.writes.add(('x','scc'))
            if op.startswith(SCC_R): self.reads.add(('x','scc'))
            if 'saveexec' in op: self.writes.add(('x','exec')); self.reads.add(('x','exec'))
            if op in ('s_getreg_b32', 's_getpc_b64'): self.reads = set()
        elif op.startswith(('buffer_load','global_load')):
            if 'lds' in mods or op.startswith('global_load_lds'):
                self.kind = 'dma'; self.reads = R(ops) | {('x','m0')}
            else:
                self.kind = 'vload'; self.writes = R(ops[:1]); self.reads = R(ops[1:]); self.loadregs = set(self.writes)
                if 'd16' in op: pass
            self.reads.add(('x','exec'))
        elif op.startswith(('buffer_store','global_store')):
            self.kind = 'vstore'; self.reads = R(ops) | {('x','exec')}
            data = ops[0] if op.startswith('buffer') else ops[1]
            self.store_data = R([data])
            self.store_wide = op.endswith(('x3','x4'))
        elif op.startswith(('buffer_atomic','global_atomic')):
            self.kind = 'vstore'; self.reads = R(ops) | {('x','exec')}
            if 'sc0' in mods:
                self.kind = 'vload'; self.writes = R(ops[:1]); self.loadregs = set(self.writes)
        elif op.startswith('buffer_inv') or op.startswith('buffer_wbl2'):
            self.kind = 'vstore'
        elif op.startswith('ds_read') or op.startswith('ds_bpermute') or op.startswith('ds_swizzle'):
            self.kind = 'dsread'; self.writes = R(ops[:1]); self.reads = R(ops[1:]) | {('x','exec')}; self.loadregs = set(self.writes)
        elif op.startswith('ds_write'):
            self.kind = 'dswrite'; self.reads = R(ops) | {('x','exec')}
        else:
            raise ValueError("unknown instruction: " + text)
    def states(self):
        if self.kind in ('label','dir'): return 0
        if self.kind == 'nop': return self.nops + 1
        return 1

def RawWait(text):
    i = Ins(text); i.kind = 'nop'; i.nops = 0
    i.reads = set(); i.writes = set(); i.loadregs = set()
    return i

class Loop:
    def __init__(self, label, body_items, tail):
        self.label = label; self.items = body_items; self.tail = tail

class Prog:
    def __init__(self):
        self.items = []
        self.stack = [self.items]
    def e(self, text, tag=None):
        for l in text.split('\n'):
            l = l.strip()
            if not l or l.startswith(';'): continue
            self.stack[-1].append(Ins(l, tag))
    def add(self, ins):
        self.stack[-1].append(ins)
    def waitvm(self, tag):
        i = Ins('s_waitcnt vmcnt(0)'); i.kind = 'waittag'; i.tag = tag; self.stack[-1].append(i)
    def drain(self):
        self.e('s_waitcnt vmcnt(0) lgkmcnt(0)')
    def loop_begin(self, label):
        l = Loop(label, [], None)
        self.stack[-1].append(l)
        self.stack.append(l.items)
        return l
    def loop_end(self):
        self.stack.pop()

VMK = ('vload','vstore','dma')
LGK = ('dsread','dswrite','smem')

def parse_wait(text):
    vm = re.search(r'vmcnt\((\d+)\)', text); lg = re.search(r'lgkmcnt\((\d+)\)', text)
    return (int(vm.group(1)) if vm else None, int(lg.group(1)) if lg else None)

LG_SLACK = [0]
class WState:
    def __init__(self):
        self.vm = []
        self.lg = []
    def copy(self):
        s = WState(); s.vm = list(self.vm); s.lg = list(self.lg); return s
    def apply_wait(self, vm, lg):
        if vm is not None and len(self.vm) > vm: self.vm = self.vm[len(self.vm)-vm:] if vm else []
        if lg is not None:
            if any(i.kind == 'smem' for i in self.lg):
                if lg == 0: self.lg = []
            elif len(self.lg) > lg: self.lg = self.lg[len(self.lg)-lg:] if lg else []
    def need(self, ins):
        vm = lg = None
        touch = ins.reads | ins.writes
        if ins.kind == 'waittag':
            for p, o in enumerate(self.vm):
                if o.tag == ins.tag:
                    n = len(self.vm) - 1 - p
                    vm = n if vm is None else min(vm, n)
            return vm, None
        for p, o in enumerate(self.vm):
            if o.loadregs & touch:
                if ins.kind == 'vload' and not (o.loadregs & ins.reads) and ins.tag == 'pf' and o.tag == 'pf':
                    continue
                n = len(self.vm) - 1 - p
                vm = n if vm is None else min(vm, n)
        for p, o in enumerate(self.lg):
            if o.loadregs & touch:
                n = len(self.lg) - 1 - p
                if any(x.kind == 'smem' for x in self.lg): n = 0
                if n > 0 and ins.kind == 'mfma' and not ins.noslack: n = max(0, min(n, 15) - LG_SLACK[0])
                lg = n if lg is None else min(lg, n)
        return vm, lg
    def issue(self, ins):
        if ins.tag == 'optional': return
        if ins.kind in VMK: self.vm.append(ins)
        elif ins.kind in LGK: self.lg.append(ins)

def flatten(items):
    out = []
    for it in items:
        if isinstance(it, Loop): out += flatten(it.items)
        else: out.append(it)
    return out

def insert_waits(items, st):
    out = []
    for it in items:
        if isinstance(it, Loop):
            body = it.items
            assert not any(isinstance(b, Loop) for b in body), "nested loops: not supported in wait pass"
            req = [(None, None)]*len(body)
            def mn(a, b): return b if a is None else a if b is None else min(a, b)
            for rounds in range(4):
                s = st.copy(); changed = False
                for p in range(3):
                    for k, ins in enumerate(body):
                        if ins.kind == 'wait':
                            s.apply_wait(*parse_wait(ins.text)); continue
                        v, l = s.need(ins)
                        nv, nl = mn(req[k][0], v), mn(req[k][1], l)
                        if (nv, nl) != req[k]: req[k] = (nv, nl); changed = True
                        s.apply_wait(None if req[k][0] is None else min(req[k][0], 63), None if req[k][1] is None else min(req[k][1], 15))
                        s.issue(ins)
                if not changed: break
            nb = []
            for k, ins in enumerate(body):
                v, l = req[k]
                if ins.kind == 'waittag':
                    if v is not None: nb.append(Ins('s_waitcnt vmcnt(%d)' % min(v, 63)))
                    continue
                if v is not None or l is not None:
                    t = 's_waitcnt' + (' vmcnt(%d)' % min(v, 63) if v is not None else '') + (' lgkmcnt(%d)' % min(l, 15) if l is not None else '')
                    nb.append(Ins(t))
                nb.append(ins)
            nl_ = Loop(it.label, nb, None)
            out.append(nl_)
            st = s
        else:
            ins = it
            if ins.kind == 'wait':
                st.apply_wait(*parse_wait(ins.text)); out.append(ins); continue
            v, l = st.need(ins)
            if v is not None: v = min(v, 63)
            if l is not None: l = min(l, 15)
            if ins.kind == 'waittag':
                if v is not None:
                    out.append(Ins('s_waitcnt vmcnt(%d)' % v)); st.apply_wait(v, None)
                continue
            if v is not None or l is not None:
                t = 's_waitcnt' + (' vmcnt(%d)' % v if v is not None else '') + (' lgkmcnt(%d)' % l if l is not None else '')
                out.append(Ins(t)); st.apply_wait(v, l)
            out.append(ins); st.issue(ins)
    return out, st

def isv(r): return r[0] in ('v','a')

def hazard_need(prev, ins):
    n = 0
    VAL = ('valu','trans','dpp')
    pw = prev.writes
    if prev.kind in VAL:
        vw = set(r for r in pw if isv(r))
        sw = set(r for r in pw if r[0] == 's' or r == ('x','vcc'))
        if ins.kind == 'mfma' and (vw & ins.reads): n = max(n, 2)
        if ins.kind == 'mfma' and ('x','exec') in pw: n = max(n, 4)
        if ins.op.startswith(('v_readfirstlane','v_readlane')) and (vw & ins.reads): n = max(n, 1)
        if ins.op.startswith('v_permlane') and (vw & ins.reads): n = max(n, 2)
        if ins.kind == 'dpp' and (vw & ins.reads): n = max(n, 2)
        if ins.kind == 'dpp' and ('x','exec') in pw: n = max(n, 5)
        if prev.kind == 'trans' and ins.kind in ('valu','dpp','mfma') and (vw & ins.reads): n = max(n, 1)
        if sw & ins.reads:
            if ins.kind in ('vload','vstore','dma'): n = max(n, 5)
            elif ins.kind in VAL: n = max(n, 2)
            if ins.op.startswith(('v_readlane','v_writelane')): n = max(n, 4)
            if ins.kind in ('salu','branch','smem'): n = max(n, 5)
        if ('x','exec') in pw and ins.op.startswith(('v_readlane','v_readfirstlane','v_writelane','v_permlane')): n = max(n, 4)
    if prev.kind == 'salu':
        if ('x','m0') in pw and ins.kind == 'dma': n = max(n, 1)
    if prev.kind == 'mfma':
        P = prev.mfma_passes
        tab_valu = {4: 8, 8: 12}[P]; tab_ab = {4: 8, 8: 12}[P]; tab_ovl = {4: 6, 8: 10}[P]; war = {4: 3, 8: 7}[P]
        if ins.kind == 'mfma':
            if pw & ins.srcAB: n = max(n, tab_ab)
            if pw & ins.srcC:
                if ins.srcC == pw and ins.mfma_passes == P: pass
                else: n = max(n, tab_ovl)
            if (pw & ins.writes) and not (ins.srcC == pw and ins.writes == pw):
                n = max(n, tab_valu)
        else:
            if ins.kind in VAL + ('vload','vstore','dma','dsread','dswrite'):
                if pw & (ins.reads | ins.writes): n = max(n, tab_valu)
            if ins.kind in VAL and (prev.srcC & ins.writes): n = max(n, war)
    if prev.kind == 'vstore' and prev.store_wide:
        if prev.store_data & ins.writes:
            n = max(n, 2 if ins.kind in VAL else 1)
    return n

def fix_hazards(items, ctx=None):
    hist = list(ctx or [])
    out = []
    def place(ins, hist, outl):
        need = 0; dist = 0
        for p in reversed(hist):
            h = hazard_need(p, ins)
            if h > dist: need = max(need, h - dist)
            dist += p.states()
            if dist > 24: break
        while need > 0:
            k = min(need, 16)
            nop = Ins('s_nop %d' % (k-1)); outl.append(nop); hist.append(nop); need -= k
        outl.append(ins); hist.append(ins)
        if len(hist) > 64: del hist[:32]
    for it in items:
        if isinstance(it, Loop):
            body = it.items
            for rounds in range(3):
                nb = []; h = list(hist)
                for ins in body: place(ins, h, nb)
                nb2 = []; h2 = list(h)
                for ins in nb: place(ins, h2, nb2)
                body = nb2
                if len(nb2) == len(nb) : break
            out.append(Loop(it.label, body, None))
            hist = list(flatten(body))[-40:]
        else:
            place(it, hist, out)
    return out

def render(items):
    lines = []
    for it in items:
        if isinstance(it, Loop):
            lines += render(it.items)
        else:
            lines.append(('' if it.kind == 'label' else '    ') + it.text)
    return lines

def finish(prog, stats=False):
    LG_SLACK[0] = getattr(prog, 'lg_slack', 0)
    items, st = insert_waits(prog.items, WState())
    items = fix_hazards(items)
    if stats:
        fl = flatten(items)
        from collections import Counter
        c = Counter(i.kind for i in fl)
        print(dict(c))
    return render(items)

def weave(mfmas, fillers, start=0, per_gap=1):
    n = len(mfmas)
    slots = [[] for _ in range(n)]
    for (pos, f) in fillers:
        slots[max(0, min(n-1, pos))].append(f)
    out = []
    for i in range(n):
        out.append(mfmas[i]); out += slots[i]
    return out

class Sched:
    def __init__(self, mfmas):
        self.mf = mfmas
        self.n = len(mfmas)
        self.vec = [[] for _ in range(self.n)]
        self.pre = [[] for _ in range(self.n)]
        self.post = [[] for _ in range(self.n)]
    def free(self, lo, hi=None):
        hi = self.n - 1 if hi is None else min(hi, self.n - 1)
        for g in range(max(0, lo), hi + 1):
            if not self.vec[g]: return g
        return None
    def put(self, ins, lo, hi=None, force_gap=None):
        if isinstance(ins, str): ins = Ins(ins)
        g = force_gap if force_gap is not None else self.free(lo, hi)
        if g is None:
            hi2 = self.n - 1 if hi is None else min(hi, self.n - 1)
            lo2 = min(max(0, lo), hi2)
            g = min(range(lo2, hi2 + 1), key=lambda x: (len(self.vec[x]), -x))
        self.vec[g].append(ins)
        return g
    def scalar(self, ins, g, post=True):
        if isinstance(ins, str): ins = Ins(ins)
        g = max(0, min(self.n - 1, g))
        (self.post if post else self.pre)[g].append(ins)
    def emit(self, p):
        for i in range(self.n):
            p.add(self.mf[i])
            for x in self.pre[i] + self.vec[i] + self.post[i]: p.add(x)
```

```python
import sys
from asmgen import *
from kern import *

STEP_LDS = 16896
IMG = 8448
KV_SLOT = 16384

def k1(name, U=8, D=3, BAR=1, stamps=False, wnt=True, pf2=True, slack=6, force_slow=False, thr_log2=30, tl=False, fused=False, psleep=4, diag0=False, pf3=False, pfnt=False, xnt0=True, tail=None, st=None, sch=None, sco=None, hspread=False, p0v=2, refine=True, codepf=False, spin=0x80000, cpos=1, kvchk=1, wflag=0, dg=1):
    p = Prog(); e = p.e
    p.lg_slack = slack
    st = Stamps(p, stamps)
    one = tail is not None
    if one: assert fused and not tl
    SCO = " sc1" if (one or sco) else ""
    SCH = " sc1" if (one or sch) else ""
    def stamp1():
        if not one: st.stamp()
    assert BAR < D <= U - BAR
    def accQ(nt, rt): return 16*nt + 4*rt
    def accH(nt, rt): return 128 + 16*nt + 4*rt
    V_TID, V_TR, V_DQ, V_D1, V_XO, V_T0, V_T1, V_T2, V_T3, V_DQ2, V_D12 = 240, 241, 242, 243, 244, 245, 246, 247, 248, 249, 250
    def wfrag(nt): return 4*nt
    def xfrag(step, rt): return 60 + 16*(step % U) + 4*rt
    V_NONCE = 251
    S_WAVE = 3
    SRD_WQ, SRD_W1, SRD_WS, SRD_B1, SRD_XN, SRD_K, SRD_V, SRD_PO, SRD_P2 = 8, 12, 16, 20, 24, 28, 32, 52, 56
    S_XN, S_Q, S_1, S_MB, S_T0, S_T1, S_CG, S_RG, S_CNT, S_H0, S_H6, S_KS, S_RP, S_OB, S_KVR, S_PF0, S_PF1 = 36, 37, 38, 39, 40, 41, 42, 43, 44, 45, 46, 47, 48, 49, 50, 51, 60
    NT = " nt" if wnt else ""
    e("%s_start:" % name)
    e("s_cmp_ge_u32 s2, 256")
    e("s_cbranch_scc1 %s_done" % name)
    st.stamp(True); st.stamp()
    if tl: tl_start(p)
    e("s_load_dwordx2 s[4:5], s[0:1], %d" % KA['wq'])
    e("s_load_dwordx4 s[88:91], s[0:1], %d" % KA['w1'])
    e("s_load_dwordx2 s[6:7], s[0:1], %d" % KA['ws'])
    e("s_load_dwordx2 s[92:93], s[0:1], %d" % KA['wo'])
    e("s_load_dwordx2 s[94:95], s[0:1], %d" % KA['w2'])
    if fused:
        e("s_load_dwordx2 s[96:97], s[0:1], %d" % KA['x'])
        e("s_load_dwordx4 s[52:55], s[0:1], %d" % KA['k'])
        e("s_load_dwordx2 s[56:57], s[0:1], %d" % KA['dbg'])
    e("v_lshrrev_b32 v%d, 6, v0" % V_T0)
    e("v_and_b32 v%d, 63, v0" % V_TID)
    e("v_readfirstlane_b32 s%d, v%d" % (S_WAVE, V_T0))
    START = "%s_start" % name
    def first_codepf(d, so):
        code_srd(p, d, so, START)
        e("v_lshlrev_b32 v%d, 4, v%d" % (V_T1, V_TID))
        e("buffer_load_dwordx4 v[124:127], v%d, s[%d:%d], s%d offen" % (V_T1, d, d+3, so), tag="pf")
    if codepf and cpos == 0: first_codepf(60, S_T0)
    e("s_and_b32 s%d, s2, 7" % S_T0)
    e("s_lshr_b32 s%d, s2, 3" % S_T1)
    e("s_lshl_b32 s%d, s%d, 2" % (S_CG, S_T0))
    e("s_and_b32 s%d, s%d, 3" % (S_T0, S_T1))
    e("s_add_u32 s%d, s%d, s%d" % (S_CG, S_CG, S_T0))
    e("s_lshr_b32 s%d, s%d, 2" % (S_T1, S_T1))
    e("s_lshl_b32 s%d, s%d, 2" % (S_RG, S_T1))
    e("s_add_u32 s%d, s%d, s%d" % (S_RG, S_RG, S_WAVE))
    e("v_lshrrev_b32 v%d, 4, v%d" % (V_T0, V_TID))
    e("v_and_b32 v%d, 15, v%d" % (V_T1, V_TID))
    e("v_lshlrev_b32 v%d, 16, v%d" % (V_DQ, V_T0))
    e("v_lshl_add_u32 v%d, v%d, 4, v%d" % (V_DQ, V_T1, V_DQ))
    e("v_add_u32 v%d, 2, v%d" % (V_T2, V_T1))
    e("v_and_b32 v%d, 1, v%d" % (V_T3, V_T1))
    e("v_cmp_gt_u32 vcc, 12, v%d" % V_T1)
    e("v_cndmask_b32 v%d, v%d, v%d, vcc" % (V_T2, V_T3, V_T2))
    e("s_bitcmp1_b32 s%d, 0" % S_CG)
    e("s_cselect_b64 vcc, -1, 0")
    e("v_cndmask_b32 v%d, v%d, v%d, vcc" % (V_T2, V_T1, V_T2))
    e("v_mul_u32_u24 v%d, %d, v%d" % (V_D1, 8*7168, V_T0))
    e("v_lshl_add_u32 v%d, v%d, 4, v%d" % (V_D1, V_T2, V_D1))
    e("v_add_u32 v%d, %d, v%d" % (V_DQ2, 8192-1056, V_DQ))
    e("v_add_u32 v%d, %d, v%d" % (V_D12, 7168-1056, V_D1))
    e("v_and_b32 v%d, 1, v%d" % (V_T2, V_T0))
    e("v_lshlrev_b32 v%d, 2, v%d" % (V_T2, V_T2))
    e("v_bfe_u32 v%d, v%d, 2, 2" % (V_T3, V_TID))
    e("v_add_u32 v%d, v%d, v%d" % (V_T2, V_T2, V_T3))
    e("v_mul_u32_u24 v%d, 1056, v%d" % (V_TR, V_T2))
    e("v_lshrrev_b32 v%d, 1, v%d" % (V_T2, V_T0))
    e("v_lshl_add_u32 v%d, v%d, 8, v%d" % (V_TR, V_T2, V_TR))
    e("v_and_b32 v%d, 3, v%d" % (V_T2, V_TID))
    e("v_lshl_add_u32 v%d, v%d, 3, v%d" % (V_TR, V_T2, V_TR))
    e("v_lshlrev_b32 v%d, 4, v%d" % (V_XO, V_TID))
    e("v_lshlrev_b32 v%d, 3, v%d" % (V_T0, V_T0))
    e("s_lshl_b32 s%d, s%d, 8" % (S_Q, S_CG))
    e("s_lshl_b32 s%d, s%d, 14" % (S_T0, S_WAVE))
    e("s_add_u32 s%d, s%d, s%d" % (S_Q, S_Q, S_T0))
    e("s_mul_i32 s%d, s%d, 224" % (S_1, S_CG))
    e("s_mul_i32 s%d, s%d, %d" % (S_T0, S_WAVE, 2*7168))
    e("s_add_u32 s%d, s%d, s%d" % (S_H0, S_1, S_T0))
    e("s_mul_i32 s%d, s%d, %d" % (S_MB, S_WAVE, 2*1056))
    e("s_mul_i32 s%d, s%d, %d" % (S_T0, S_RG, XN_RG))
    e("s_and_b32 s%d, s%d, 1" % (S_T1, S_CG))
    e("s_lshl_b32 s%d, s%d, 5" % (S_T1, S_T1))
    e("s_add_u32 s%d, s%d, s%d" % (S_H6, S_1, S_T1))
    e("s_bitcmp1_b32 s%d, 0" % S_CG)
    e("s_cselect_b32 s%d, 0, 192" % S_T1)
    e("s_add_u32 s%d, s%d, s%d" % (S_T1, S_1, S_T1))
    e("s_mov_b32 s%d, s%d" % (S_1, S_H0))
    e("s_mov_b32 s%d, 0" % S_XN)
    e("s_waitcnt lgkmcnt(0)")
    SC = " sc1" if fused else ""
    if fused:
        SRD_T0, SRD_T1 = 60, 28
        S_NONCE = 100
        V_L8, V_B3, V_B4, V_B5, V_A = 100, 101, 102, 103, 104
        e("s_mov_b32 s72, s56\ns_mov_b32 s73, s57\ns_mov_b32 s74, 256\ns_mov_b32 s75, 0x20000") if False else None
        e("v_and_b32 v%d, 7, v%d" % (V_L8, V_TID))
        e("v_bfe_u32 v%d, v%d, 3, 1" % (V_B3, V_TID))
        e("v_bfe_u32 v%d, v%d, 4, 1" % (V_B4, V_TID))
        e("v_lshrrev_b32 v%d, 5, v%d" % (V_B5, V_TID))
        e("v_lshlrev_b32 v%d, 11, v%d" % (V_A, V_L8))
        e("v_lshl_add_u32 v%d, v%d, 6, v%d" % (V_A, V_B4, V_A))
        e("v_lshl_add_u32 v%d, v%d, 4, v%d" % (V_A, V_B3, V_A))
        e("v_lshl_add_u32 v%d, v%d, 5, v%d" % (V_A, V_B5, V_A))
        srd(p, SRD_T0, 96, 4 << 20)
        e("s_lshr_b32 s47, s2, 5")
        e("s_lshl_b32 s48, s47, 8\ns_lshl_b32 s49, s%d, 3\ns_add_u32 s48, s48, s49" % S_CG)
        e("s_lshl_b32 s48, s48, 11\ns_lshl_b32 s49, s%d, 9\ns_add_u32 s48, s48, s49" % S_WAVE)
        for q in range(4):
            e("buffer_load_dwordx4 v[%d:%d], v%d, s[%d:%d], s48 offen offset:%d%s" % (16+4*q, 19+4*q, V_A, SRD_T0, SRD_T0+3, q*128, " nt" if xnt0 else ""))
        e("s_mov_b32 s32, s56\ns_mov_b32 s33, s57\ns_mov_b32 s34, 256\ns_mov_b32 s35, 0x20000")
        e("v_mov_b32 v121, 0")
        e("s_or_b32 s49, s2, s%d" % S_WAVE)
        e("s_cmp_lg_u32 s49, 0")
        e("s_cbranch_scc1 %s_nonce" % name)
        e("s_memrealtime s[50:51]")
        e("s_waitcnt lgkmcnt(0)")
        e("s_or_b32 s50, s50, 1")
        e("v_mov_b32 v120, s50")
        e("buffer_store_dword v120, v121, s[32:35], 0 offen sc1", tag="optional")
        e("%s_nonce:" % name)
        e("s_lshl_b32 s49, s2, 2\ns_add_u32 s49, s49, s%d" % S_WAVE)
        e("s_and_b32 s50, s49, 511")
        e("s_lshr_b32 s51, s50, 7\ns_lshl_b32 s51, s51, 19")
        e("s_lshr_b32 s%d, s50, 3\ns_and_b32 s%d, s%d, 15\ns_lshl_b32 s%d, s%d, 13" % (S_T0, S_T0, S_T0, S_T0, S_T0))
        e("s_add_u32 s51, s51, s%d\ns_add_u32 s51, s51, %d" % (S_T0, 1536*256))
        e("s_cmp_ge_u32 s49, 512")
        e("s_cselect_b32 s%d, s54, s52" % SRD_T1)
        e("s_cselect_b32 s%d, s55, s53" % (SRD_T1+1))
        e("s_mov_b32 s%d, %d" % (SRD_T1+2, 2 << 20))
        e("s_mov_b32 s%d, 0x20000" % (SRD_T1+3))
        e("s_cbranch_scc1 %s_ldv" % name)
        e("s_lshr_b32 s%d, s50, 2\ns_and_b32 s%d, s%d, 1\ns_lshl_b32 s%d, s%d, 12\ns_add_u32 s51, s51, s%d" % (S_T0, S_T0, S_T0, S_T0, S_T0, S_T0))
        e("s_and_b32 s%d, s50, 3\ns_lshl_b32 s%d, s%d, 6\ns_add_u32 s51, s51, s%d" % (S_T0, S_T0, S_T0, S_T0))
        e("v_and_b32 v106, 15, v%d\nv_lshlrev_b32 v106, 8, v106\nv_lshrrev_b32 v105, 4, v%d\nv_lshl_add_u32 v106, v105, 4, v106" % (V_TID, V_TID))
        e("s_branch %s_ldj" % name)
        e("%s_ldv:" % name)
        e("s_and_b32 s%d, s50, 7\ns_lshl_b32 s%d, s%d, 5\ns_add_u32 s51, s51, s%d" % (S_T0, S_T0, S_T0, S_T0))
        e("v_lshrrev_b32 v106, 1, v%d\nv_lshlrev_b32 v106, 8, v106\nv_and_b32 v105, 1, v%d\nv_lshl_add_u32 v106, v105, 4, v106" % (V_TID, V_TID))
        e("%s_ldj:" % name)
        e("buffer_load_dwordx4 v[108:111], v106, s[%d:%d], s51 offen nt" % (SRD_T1, SRD_T1+3))
        if codepf and cpos == 1: first_codepf(60, S_T0)
        e("s_cmp_lg_u32 s%d, 0" % S_WAVE)
        e("s_cbranch_scc1 %s_nl" % name)
        e("buffer_load_dword v%d, v121, s[32:35], 0 offen sc1" % V_NONCE, tag="optional")
        e("%s_nl:" % name)
    if fused:
        e("s_mul_i32 s%d, s%d, %d" % (S_T0, S_RG, XN_RG))
    srd(p, SRD_B1, 90, 7168)
    def bias_loads():
        for nt in range(6):
            e("buffer_load_dwordx2 v[%d:%d], v%d, s[%d:%d], s%d offen offset:%d" % (accH(nt, 3)+2, accH(nt, 3)+3, V_T0, SRD_B1, SRD_B1+3, S_H6, nt*32), tag="bias")
        e("buffer_load_dwordx2 v[%d:%d], v%d, s[%d:%d], s%d offen" % (accH(6, 3)+2, accH(6, 3)+3, V_T0, SRD_B1, SRD_B1+3, S_T1 if not (fused and p0v == 3) else S_CNT), tag="bias")
    if not (fused and p0v == 3): bias_loads()
    else: e("s_mov_b32 s%d, s%d" % (S_CNT, S_T1))
    srd(p, SRD_WQ, 4, 8 << 20)
    srd(p, SRD_W1, 88, 7 << 20)
    e("s_add_u32 s%d, s6, s%d" % (SRD_XN, S_T0))
    e("s_addc_u32 s%d, s7, 0" % (SRD_XN+1))
    e("s_mov_b32 s%d, 131072" % (SRD_XN+2))
    e("s_mov_b32 s%d, 0x20000" % (SRD_XN+3))
    def dma_step(slot):
        b = slot*STEP_LDS
        return [["s_add_u32 m0, s%d, %d" % (S_MB, b), "buffer_load_dwordx4 v%d, s[%d:%d], s%d offen%s lds" % (V_DQ, SRD_WQ, SRD_WQ+3, S_Q, NT)],
                ["buffer_load_dwordx4 v%d, s[%d:%d], s%d offen offset:1056%s lds" % (V_DQ2, SRD_WQ, SRD_WQ+3, S_Q, NT)],
                ["s_add_u32 m0, s%d, %d" % (S_MB, b+IMG), "buffer_load_dwordx4 v%d, s[%d:%d], s%d offen%s lds" % (V_D1, SRD_W1, SRD_W1+3, S_1, NT)],
                ["buffer_load_dwordx4 v%d, s[%d:%d], s%d offen offset:1056%s lds" % (V_D12, SRD_W1, SRD_W1+3, S_1, NT)]]
    adv_dma = ["s_add_u32 s%d, s%d, %d" % (S_Q, S_Q, 32*8192), "s_add_u32 s%d, s%d, %d" % (S_1, S_1, 32*7168)]
    def xn_loads(step):
        return ["buffer_load_dwordx4 a[%d:%d], v%d, s[%d:%d], s%d offen offset:%d" % (xfrag(step, rt), xfrag(step, rt)+3, V_XO, SRD_XN, SRD_XN+3, S_XN, rt*1024) + SC for rt in range(4)]
    adv_xn = "s_add_u32 s%d, s%d, 4096" % (S_XN, S_XN)
    def tr_reads(step, nt):
        slot = step % U
        off = (slot % 4)*STEP_LDS + (IMG if nt >= 8 else 0) + ((nt - 8) if nt >= 8 else nt)*32
        return ["ds_read_b64_tr_b16 a[%d:%d], v%d offset:%d" % (wfrag(nt)+2*t, wfrag(nt)+2*t+1, V_TR, off + t*512) for t in range(2)]
    init = ["v_mov_b32 v%d, 0" % i for i in range(128)]
    NZ = len(init)
    for nt in range(7):
        b = accH(nt, 3)
        for rt in range(3):
            a = accH(nt, rt)
            init += ["v_lshlrev_b32 v%d, 16, v%d" % (a, b+2), "v_and_b32 v%d, 0xffff0000, v%d" % (a+1, b+2),
                     "v_lshlrev_b32 v%d, 16, v%d" % (a+2, b+3), "v_and_b32 v%d, 0xffff0000, v%d" % (a+3, b+3)]
        init += ["v_lshlrev_b32 v%d, 16, v%d" % (b, b+2), "v_and_b32 v%d, 0xffff0000, v%d" % (b+1, b+2),
                 "v_lshlrev_b32 v%d, 16, v%d" % (b+2, b+3), "v_mov_b32 v%d, v%d" % (b+3, accH(nt, 2)+3)]
    if not fused:
        nvm = 8*D; per = -(-len(init)//nvm); ii = 0
        for s in range(D):
            seq = []
            for grp in dma_step(s): seq.append([(t, ("dma", s % U) if t.startswith("buffer") else None) for t in grp])
            for t in xn_loads(s): seq.append([(t, None)])
            for grp in seq:
                for t, tg in grp: e(t, tag=tg)
                for t in init[ii:ii+per]: e(t)
                ii += per
            for t in adv_dma: e(t)
            e(adv_xn)
        for t in init[ii:]: e(t)
    else:
        if p0v != 3:
            for s_ in range(D if p0v != 4 else 1):
                for grp in dma_step(s_):
                    for t in grp: e(t, tag=("dma", s_ % U) if t.startswith("buffer") else None)
                for t in adv_dma: e(t)
        srd(p, SRD_WS, 6, WS_SIZE)
        LNS = 8*STEP_LDS
        def kv_block(nwait):
            e("s_lshl_b32 s51, s50, 10")
            e("s_cmp_ge_u32 s49, 512")
            e("s_cbranch_scc1 %s_stv" % name)
            e("s_mov_b32 s%d, 0x%x" % (S_T1, f2u(CSCALE)))
            for r in range(4):
                e("v_lshlrev_b32 v112, 16, v%d\nv_and_b32 v113, 0xffff0000, v%d" % (108+r, 108+r))
                e("v_mul_f32 v112, s%d, v112\nv_mul_f32 v113, s%d, v113" % (S_T1, S_T1))
                e("v_cvt_pk_bf16_f32 v%d, v112, v113" % (108+r))
            e("v_permlane32_swap_b32 v108, v110")
            e("v_permlane32_swap_b32 v109, v111")
            e("v_and_b32 v114, 15, v%d\nv_lshlrev_b32 v114, 4, v114\nv_lshl_add_u32 v114, v%d, 9, v114\nv_lshl_add_u32 v114, v%d, 8, v114" % (V_TID, V_B4, V_B5))
            e("s_add_u32 s51, s51, %d" % WS_KP)
            e("s_branch %s_stj" % name)
            e("%s_stv:" % name)
            e("s_waitcnt vmcnt(%d)" % nwait)
            e("s_lshl_b32 s%d, s%d, 10\ns_add_u32 s%d, s%d, %d" % (S_T1, S_WAVE, S_T1, S_T1, LNS + 512))
            e("v_add_u32 v114, s%d, v%d" % (S_T1, V_XO))
            e("ds_write_b128 v114, v[108:111]")
            e("v_lshrrev_b32 v115, 2, v%d\nv_lshlrev_b32 v115, 5, v115\nv_and_b32 v116, 3, v%d\nv_lshl_add_u32 v115, v116, 3, v115\nv_add_u32 v115, s%d, v115" % (V_TID, V_TID, S_T1))
            e("s_waitcnt lgkmcnt(0)")
            e("ds_read_b64_tr_b16 v[108:109], v115")
            e("ds_read_b64_tr_b16 v[110:111], v115 offset:512")
            e("s_waitcnt lgkmcnt(0)")
            e("v_mov_b32 v114, v%d" % V_XO)
            e("s_add_u32 s51, s51, %d" % WS_VP)
            e("%s_stj:" % name)
            e("buffer_store_dwordx4 v[108:111], v114, s[%d:%d], s51 offen sc1" % (SRD_WS, SRD_WS+3), tag="p0st" if p0v != 4 else None)
        if p0v == 4: kv_block(7 + 4 + (1 if codepf and cpos == 1 else 0))
        for r in range(16):
            e("v_lshlrev_b32 v%d, 16, v%d" % (32+2*r, 16+r))
            e("v_and_b32 v%d, 0xffff0000, v%d" % (33+2*r, 16+r))
        if diag0: st.stamp()
        e("v_lshlrev_b32 v6, 4, v%d" % V_L8)
        e("v_add_u32 v6, %d, v6" % LNS)
        e("s_lshl_b32 s%d, s%d, 2" % (S_T1, S_WAVE))
        e("v_add_u32 v7, s%d, v6" % S_T1)
        def pk(op, d, a_, b_, c_=None):
            t = "v_pk_%s_f32 v[%d:%d], v[%d:%d], v[%d:%d]" % (op, d, d+1, a_, a_+1, b_, b_+1)
            if c_ is not None: t += ", v[%d:%d]" % (c_, c_+1)
            e(t)
        def reduce_all(src, off):
            e("v_add_f32_dpp v%d, v%d, v%d row_ror:8 row_mask:0xf bank_mask:0xf" % (src, src, src))
            e("v_mov_b32 v9, v%d" % src)
            e("v_permlane16_swap_b32 v%d, v9" % src)
            e("v_add_f32 v%d, v%d, v9" % (src, src))
            e("v_mov_b32 v9, v%d" % src)
            e("v_permlane32_swap_b32 v%d, v9" % src)
            e("v_add_f32 v%d, v%d, v9" % (src, src))
            e("ds_write_b32 v7, v%d offset:%d" % (src, off))
            e("s_waitcnt lgkmcnt(0)")
            e("s_barrier")
            e("ds_read_b128 v[64:67], v6 offset:%d" % off)
            e("v_add_f32 v64, v64, v65\nv_add_f32 v66, v66, v67\nv_add_f32 v8, v64, v66")
        for i in range(4): pk("add", 72+2*i, 32+2*i, 40+2*i)
        for r in range(8, 16): pk("add", 72+2*(r % 4), 72+2*(r % 4), 32+2*r)
        pk("add", 72, 72, 74); pk("add", 76, 76, 78); pk("add", 72, 72, 76)
        e("v_add_f32 v72, v72, v73")
        reduce_all(72, 0)
        e("v_mul_f32 v10, 0x%x, v8" % f2u(-1.0/1024))
        e("v_mov_b32 v11, v10")
        for r in range(16):
            pk("add", 80+2*(r % 4), 32+2*r, 10)
            if r < 4: pk("mul", 72+2*r, 80+2*(r % 4), 80+2*(r % 4))
            else: pk("fma", 72+2*(r % 4), 80+2*(r % 4), 80+2*(r % 4), 72+2*(r % 4))
        pk("add", 72, 72, 74); pk("add", 76, 76, 78); pk("add", 72, 72, 76)
        e("v_add_f32 v72, v72, v73")
        reduce_all(72, 128)
        e("v_mul_f32 v12, 0x%x, v8" % f2u(1.0/1024))
        e("v_cvt_pk_bf16_f32 v14, v10, v12")
        e("v_and_b32 v12, 0xffff0000, v14")
        e("v_lshlrev_b32 v10, 16, v14")
        e("v_add_f32 v12, 0x%x, v12" % f2u(1e-5))
        e("v_mov_b32 v11, v10")
        e("v_cvt_pk_bf16_f32 v14, v12, v12")
        e("v_and_b32 v12, 0xffff0000, v14")
        e("v_sqrt_f32 v12, v12")
        e("v_cvt_pk_bf16_f32 v14, v12, v12")
        e("v_and_b32 v12, 0xffff0000, v14")
        e("v_rcp_f32 v14, v12")
        e("v_sub_f32 v12, 0, v12")
        e("v_mov_b32 v15, v14")
        e("v_mov_b32 v13, v12")
        e("s_lshl_b32 s48, s47, 2\ns_lshr_b32 s%d, s%d, 3\ns_add_u32 s48, s48, s%d\ns_mul_i32 s48, s48, %d" % (S_T1, S_CG, S_T1, XN_RG))
        e("s_lshr_b32 s%d, s%d, 1\ns_and_b32 s%d, s%d, 3\ns_lshl_b32 s%d, s%d, 10\ns_add_u32 s48, s48, s%d" % (S_T1, S_CG, S_T1, S_T1, S_T1, S_T1, S_T1))
        e("s_and_b32 s%d, s%d, 1\ns_lshl_b32 s%d, s%d, 7\ns_add_u32 s48, s48, s%d" % (S_T1, S_CG, S_T1, S_T1, S_T1))
        e("s_lshl_b32 s%d, s%d, 15\ns_add_u32 s48, s48, s%d" % (S_T1, S_WAVE, S_T1))
        e("v_lshlrev_b32 v5, 12, v%d" % V_B4)
        e("v_lshl_add_u32 v5, v%d, 9, v5" % V_B3)
        e("v_lshl_add_u32 v5, v%d, 8, v5" % V_B5)
        e("v_lshl_add_u32 v5, v%d, 4, v5" % V_L8)
        for q in range(4):
            for r in range(4*q, 4*q+4):
                a_ = 32+2*r
                pk("add", a_, a_, 10)
                e("v_cvt_pk_bf16_f32 v%d, v%d, v%d" % (16+r, a_, a_+1))
                e("v_lshlrev_b32 v%d, 16, v%d" % (a_, 16+r)); e("v_and_b32 v%d, 0xffff0000, v%d" % (a_+1, 16+r))
                t = 80 + 2*(r % 4)
                pk("mul", t, a_, 14)
                if refine:
                    pk("fma", a_, t, 12, a_)
                    pk("fma", t, a_, 14, t)
                e("v_cvt_pk_bf16_f32 v%d, v%d, v%d" % (16+r, t, t+1))
            e("v_permlane32_swap_b32 v%d, v%d" % (16+4*q, 18+4*q))
            e("v_permlane32_swap_b32 v%d, v%d" % (17+4*q, 19+4*q))
            e("buffer_store_dwordx4 v[%d:%d], v5, s[%d:%d], s48 offen sc1" % (16+4*q, 19+4*q, SRD_WS, SRD_WS+3), tag="p0st" if p0v == 4 else None)
            if q < 3: e("s_add_u32 s48, s48, 8192")
        if diag0: st.stamp()
        if p0v != 4: kv_block(4 if p0v == 3 else 4 + 7 + 4*D + (1 if codepf and cpos == 1 else 0))
        if p0v == 4:
            for t in init[:NZ]: e(t)
            if diag0: st.stamp()
            p.waitvm("p0st")
            if diag0: st.stamp()
            e("s_barrier")
        elif p0v != 3:
            for t in init: e(t)
            if diag0: st.stamp()
            e("s_waitcnt vmcnt(0)")
            if diag0: st.stamp()
            e("s_barrier")
        else:
            bias_loads()
            per = -(-NZ//(4*D)); ii = 0
            for s_ in range(D):
                for grp in dma_step(s_):
                    for t in grp: e(t, tag=("dma", s_ % U) if t.startswith("buffer") else None)
                    for t in init[ii:min(ii+per, NZ)]: e(t)
                    ii += per
                for t in adv_dma: e(t)
            if diag0: st.stamp()
            p.waitvm("p0st")
            if diag0: st.stamp()
            e("s_barrier")
        e("s_cmp_lg_u32 s%d, 0" % S_WAVE)
        e("s_cbranch_scc1 %s_xnf" % name)
        e("s_mov_b32 s48, 0x%x" % spin)
        e("%s_np:" % name)
        e("v_readfirstlane_b32 s%d, v%d" % (S_NONCE, V_NONCE))
        e("s_cmp_lg_u32 s%d, 0" % S_NONCE)
        e("s_cbranch_scc1 %s_nok" % name)
        e("v_mov_b32 v%d, 0" % V_T1)
        e("buffer_load_dword v%d, v%d, s[32:35], 0 offen sc1" % (V_NONCE, V_T1), tag="optional")
        p.add(RawWait("s_waitcnt vmcnt(0)"))
        e("s_sub_u32 s48, s48, 1")
        e("s_cmp_lg_u32 s48, 0")
        e("s_cbranch_scc1 %s_np" % name)
        e("%s_nok:" % name)
        e("s_lshl_b32 s48, s47, 5")
        e("s_add_u32 s49, s48, s%d" % S_CG)
        e("s_lshl_b32 s48, s48, 7\ns_add_u32 s48, s48, %d" % WS_FLAG)
        e("s_lshl_b32 s49, s49, 7\ns_add_u32 s49, s49, %d" % WS_FLAG)
        e("v_mov_b32 v%d, 0" % V_T1)
        e("v_mov_b32 v%d, s%d" % (V_T2, S_NONCE))
        e("s_mov_b64 exec, 1")
        e("buffer_store_dword v%d, v%d, s[%d:%d], s49 offen sc1" % (V_T2, V_T1, SRD_WS, SRD_WS+3), tag="optional")
        e("s_mov_b64 exec, -1")
        if one:
            e("v_mov_b32 v%d, %d" % (V_T1, LNS + 256))
            e("ds_write_b32 v%d, v%d" % (V_T1, V_T2))
            e("s_waitcnt lgkmcnt(0)")
        e("%s_xnf:" % name)
        if p0v == 4:
            for s_ in range(1, D):
                for grp in dma_step(s_):
                    for t in grp: e(t, tag=("dma", s_ % U) if t.startswith("buffer") else None)
                for t in adv_dma: e(t)
        if p0v in (3, 4):
            for t in init[NZ:]: e(t)
        e("s_cmp_lg_u32 s%d, 0" % S_WAVE)
        e("s_cbranch_scc1 %s_xnok" % name)
        e("s_mov_b64 exec, 0xffffffff")
        e("v_lshlrev_b32 v%d, 7, v%d" % (V_T3, V_TID))
        e("s_mov_b32 s49, 0x%x" % spin)
        e("%s_xnp:" % name)
        e("buffer_load_dword v%d, v%d, s[%d:%d], s48 offen sc1" % (V_T2, V_T3, SRD_WS, SRD_WS+3), tag="optional")
        p.add(RawWait("s_waitcnt vmcnt(0)"))
        e("v_cmp_ne_u32 vcc, s%d, v%d" % (S_NONCE, V_T2))
        e("s_cbranch_vccz %s_xnq" % name)
        if psleep: e("s_sleep %d" % psleep)
        e("s_sub_u32 s49, s49, 1")
        e("s_cmp_lg_u32 s49, 0")
        e("s_cbranch_scc1 %s_xnp" % name)
        e("%s_xnq:" % name)
        e("s_mov_b64 exec, -1")
        e("%s_xnok:" % name)
        if p0v in (3, 4): p.waitvm(("dma", 0))
        e("s_barrier")
        if diag0:
            st.stamp(); st.on = False
        if one and kvchk:
            e("v_mov_b32 v%d, %d" % (V_T1, LNS + 256))
            e("ds_read_b32 v%d, v%d" % (V_T2, V_T1))
        for s_ in range(D):
            for t in xn_loads(s_): e(t)
            e(adv_xn)
        if kvchk:
            e("v_and_b32 v%d, 31, v%d" % (V_T3, V_TID))
            e("v_lshlrev_b32 v%d, 7, v%d" % (V_T3, V_T3))
            e("v_lshrrev_b32 v%d, 5, v%d" % (V_T1, V_TID))
            e("v_lshl_add_u32 v%d, v%d, 14, v%d" % (V_T3, V_T1, V_T3))
            e("s_lshr_b32 s%d, s%d, 3\ns_lshl_b32 s%d, s%d, 12\ns_add_u32 s%d, s%d, %d" % (S_RP, S_CG, S_RP, S_RP, S_RP, S_RP, WS_FLAG))
            e("s_cmp_eq_u32 s%d, 0\ns_cselect_b32 s%d, 1, 0x7fff" % (S_WAVE, S_KS))
    if not fused: srd(p, SRD_WS, 6, WS_SIZE)
    stamp1()
    if not (fused and p0v in (3, 4)):
        p.waitvm(("dma", 0))
        e("s_barrier")
    for nt in range(15):
        for t in tr_reads(0, nt): e(t)
    if one and kvchk: e("v_readfirstlane_b32 s100, v%d" % V_T2)
    e("s_mov_b32 s%d, %d" % (S_CNT, 32//U))
    if codepf & 2: code_srd(p, 60, S_OB, START)
    st.stamp()
    p.loop_begin("g1")
    e("%s_g1:" % name)
    for s in range(U):
        if s % BAR == 0:
            p.waitvm(("dma", (s+BAR) % U))
            e("s_barrier")
        if fused and kvchk and s == 5:
            e("s_cmp_eq_u32 s%d, s%d" % (S_CNT, S_KS))
            e("s_cbranch_scc0 %s_kvl" % name)
            e("buffer_load_dword v252, v%d, s[%d:%d], s%d offen sc1" % (V_T3, SRD_WS, SRD_WS+3, S_RP), tag="optional")
            e("%s_kvl:" % name)
        mf = []
        for nt in range(15):
            for rt in range(4):
                acc = accQ(nt, rt) if nt < 8 else accH(nt-8, rt)
                mf.append(Ins("v_mfma_f32_16x16x32_bf16 v[%d:%d], a[%d:%d], a[%d:%d], v[%d:%d]" % (acc, acc+3, wfrag(nt), wfrag(nt)+3, xfrag(s, rt), xfrag(s, rt)+3, acc, acc+3)))
        sc = Sched(mf)
        if dg: sc.put(tr_reads(s, 14)[1], 0)
        if (s+1) % 4 == 0 and U > 4:
            delta = 4*STEP_LDS if ((s+1) % U) // 4 == 1 else -(U-4)*STEP_LDS
            sc.put("v_add_u32 v%d, %d, v%d" % (V_TR, delta, V_TR) if delta > 0 else "v_subrev_u32 v%d, %d, v%d" % (V_TR, -delta, V_TR), 0)
        for nt in range(15):
            r = tr_reads(s+1, nt)
            g = sc.put(r[0], min(4*nt+3, 59))
            if not (dg and nt == 14): sc.put(r[1], min(g+1, 59))
        pos = 1
        for grp in dma_step((s + D) % U):
            g = sc.put(Ins(grp[-1], tag=("dma", (s+D) % U)), pos)
            for t in grp[:-1]: sc.scalar(t, g-1)
            pos = g + 4
        for q, t in enumerate(adv_dma): sc.scalar(t, pos + q)
        pos = 30
        for t in xn_loads(s + D):
            g = sc.put(t, pos); pos = g + 4
        sc.scalar(adv_xn, pos)
        if (codepf & 2) and s == 2:
            sc.put(Ins("buffer_load_dwordx4 a[188:191], v%d, s[60:63], s%d offen" % (V_XO, S_OB), tag="pf"), 50)
        sc.emit(p)
    e("s_sub_u32 s%d, s%d, 1" % (S_CNT, S_CNT))
    e("s_cmp_lg_u32 s%d, 0" % S_CNT)
    e("s_cbranch_scc1 %s_g1" % name)
    p.loop_end()
    st.stamp()
    def Oacc(dt, qt): return 16*dt + 4*qt
    def Sreg(par, kt2, qt): return 128 + 32*par + 16*kt2 + 4*qt
    def Preg(par, qt): return 192 + 16*par + 4*qt
    def negm(qt): return 224 + 4*qt
    def Qf(qt, u): return 16*qt + 4*u
    def Kf(kt2, u): return 64 + 16*kt2 + 4*u
    def Vf(dt): return 96 + 4*dt
    def Lacc(qt): return 128 + 4*qt
    ONES = 144
    V_KV = V_TR
    def kv_dma():
        return [["s_mov_b32 m0, s%d" % S_RP, "buffer_load_dwordx4 v%d, s[%d:%d], s%d offen%s lds" % (V_XO, SRD_K, SRD_K+3, S_KS, SC)],
                ["buffer_load_dwordx4 v%d, s[%d:%d], s%d offen offset:1024%s lds" % (V_XO, SRD_K, SRD_K+3, S_KS, SC)],
                ["buffer_load_dwordx4 v%d, s[%d:%d], s%d offen offset:2048%s lds" % (V_XO, SRD_V, SRD_V+3, S_KS, SC)],
                ["buffer_load_dwordx4 v%d, s[%d:%d], s%d offen offset:3072%s lds" % (V_XO, SRD_V, SRD_V+3, S_KS, SC)]], \
               ["s_add_u32 s%d, s%d, 8192" % (S_KS, S_KS), "s_add_u32 s%d, s%d, %d" % (S_RP, S_RP, KV_SLOT), "s_and_b32 s%d, s%d, 0x1ffff" % (S_RP, S_RP)]
    def tagkv(t, m): return ("kv", m) if t.startswith("buffer") else None
    if one:
        if not kvchk:
            e("v_mov_b32 v%d, %d" % (V_T1, 8*STEP_LDS + 256))
            e("ds_read_b32 v%d, v%d" % (V_T2, V_T1))
            e("v_readfirstlane_b32 s100, v%d" % V_T2)
        e("s_lshr_b32 s101, s2, 5\ns_lshl_b32 s101, s101, 5\ns_add_u32 s101, s101, s%d\ns_lshl_b32 s101, s101, 7\ns_add_u32 s101, s101, 0x%x" % (S_CG, WS_FDW if wflag else WS_FD))
    if fused and kvchk:
        for s_ in range(U): p.waitvm(("dma", s_))
        e("s_cmp_lg_u32 s%d, 0" % S_WAVE)
        e("s_cbranch_scc1 %s_kvok" % name)
        e("s_mov_b32 s49, 0x%x" % spin)
        e("%s_kvp:" % name)
        e("v_cmp_ne_u32 vcc, s100, v252")
        e("s_cbranch_vccz %s_kvok" % name)
        e("s_sleep 1")
        e("buffer_load_dword v252, v%d, s[%d:%d], s%d offen sc1" % (V_T3, SRD_WS, SRD_WS+3, S_RP), tag="optional")
        p.add(RawWait("s_waitcnt vmcnt(0)"))
        e("s_sub_u32 s49, s49, 1")
        e("s_cmp_lg_u32 s49, 0")
        e("s_cbranch_scc1 %s_kvp" % name)
        e("%s_kvok:" % name)
    if fused and not kvchk:
        e("s_cmp_lg_u32 s%d, 0" % S_WAVE)
        e("s_cbranch_scc1 %s_kvok" % name)
        e("v_lshlrev_b32 v%d, 7, v%d" % (V_T3, V_TID))
        e("s_mov_b32 s49, 0x%x" % spin)
        e("%s_kvp:" % name)
        for q in range(4):
            e("s_mov_b32 s48, %d" % (WS_FLAG + q*64*128))
            e("buffer_load_dword v%d, v%d, s[%d:%d], s48 offen sc1" % (252+q, V_T3, SRD_WS, SRD_WS+3), tag="optional")
        p.add(RawWait("s_waitcnt vmcnt(0)"))
        e("v_cmp_ne_u32 vcc, s100, v252\nv_cmp_ne_u32 s[60:61], s100, v253\ns_or_b64 vcc, vcc, s[60:61]")
        e("v_cmp_ne_u32 s[60:61], s100, v254\ns_or_b64 vcc, vcc, s[60:61]\nv_cmp_ne_u32 s[60:61], s100, v255\ns_or_b64 vcc, vcc, s[60:61]")
        e("s_cmp_eq_u64 vcc, 0")
        e("s_cbranch_scc1 %s_kvok" % name)
        e("s_sleep 4")
        e("s_sub_u32 s49, s49, 1")
        e("s_cmp_lg_u32 s49, 0")
        e("s_cbranch_scc1 %s_kvp" % name)
        e("%s_kvok:" % name)
    for s_ in range(U): p.waitvm(("dma", s_))
    e("s_barrier")
    e("s_cmp_lg_u32 s%d, %d" % (S_WAVE, 0 if not one else 99))
    e("s_cbranch_scc1 %s_clr" % name)
    e("s_mov_b64 exec, 63")
    e("v_lshlrev_b32 v%d, 15, v%d" % (V_T0, V_TID))
    e("v_mov_b32 v%d, 0" % V_T1)
    e("s_lshl_b32 s%d, s2, 7" % S_T0)
    e("s_add_u32 s%d, s%d, 0x%x" % (S_T0, S_T0, WS_F2))
    e("buffer_store_dword v%d, v%d, s[%d:%d], s%d offen" % (V_T1, V_T0, SRD_WS, SRD_WS+3, S_T0), tag="optional")
    e("s_mov_b64 exec, -1")
    e("%s_clr:" % name)
    e("s_lshr_b32 s%d, s%d, 3" % (S_T0, S_CG))
    e("s_lshl_b32 s%d, s%d, 17" % (S_KVR, S_T0))
    e("s_lshl_b32 s%d, s%d, 11" % (S_T1, S_WAVE))
    e("s_add_u32 s%d, s%d, s%d" % (S_T0, S_KVR, S_T1))
    e("s_add_u32 s%d, s%d, %d" % (S_T1, S_T0, WS_KP))
    e("s_add_u32 s%d, s6, s%d" % (SRD_K, S_T1))
    e("s_addc_u32 s%d, s7, 0" % (SRD_K+1))
    e("s_mov_b32 s%d, %d" % (SRD_K+2, 16*8192))
    e("s_mov_b32 s%d, 0x20000" % (SRD_K+3))
    e("s_add_u32 s%d, s%d, %d" % (S_T1, S_T0, WS_VP - 2*8192 - 2048))
    e("s_add_u32 s%d, s6, s%d" % (SRD_V, S_T1))
    e("s_addc_u32 s%d, s7, 0" % (SRD_V+1))
    e("s_mov_b32 s%d, %d" % (SRD_V+2, 18*8192 + 2048))
    e("s_mov_b32 s%d, 0x20000" % (SRD_V+3))
    e("s_mov_b32 s%d, 0" % S_KS)
    e("s_lshl_b32 s%d, s%d, 12" % (S_RP, S_WAVE))
    valu = []
    for qt in range(4):
        for u in range(4):
            a, b = accQ(2*u, qt), accQ(2*u+1, qt)
            valu += ["v_cvt_pk_bf16_f32 v%d, v%d, v%d" % (a, a, a+1), "v_cvt_pk_bf16_f32 v%d, v%d, v%d" % (a+1, a+2, a+3),
                     "v_cvt_pk_bf16_f32 v%d, v%d, v%d" % (a+2, b, b+1), "v_cvt_pk_bf16_f32 v%d, v%d, v%d" % (a+3, b+2, b+3)]
            valu += ["v_accvgpr_write_b32 a%d, v%d" % (Qf(qt, u)+r, a+r) for r in range(4)]
    hs = []
    hs.append("s_lshr_b32 s%d, s%d, 1" % (S_T0, S_CG))
    hs.append("s_mul_i32 s%d, s%d, 7" % (S_T0, S_T0))
    hs.append("s_and_b32 s%d, s%d, 1" % (S_T1, S_CG))
    hs.append("s_lshl_b32 s%d, s%d, 2" % (S_H0, S_T1))
    hs.append("s_add_u32 s%d, s%d, s%d" % (S_H0, S_H0, S_T0))
    hs.append("s_lshl_b32 s%d, s%d, 11" % (S_H0, S_H0))
    hs.append("s_add_u32 s%d, s%d, 3" % (S_H6, S_T0))
    hs.append("s_lshl_b32 s%d, s%d, 11" % (S_H6, S_H6))
    hs.append("s_lshl_b32 s%d, s%d, 3" % (S_T1, S_T1))
    hs.append("s_add_u32 s%d, s%d, s%d" % (S_H6, S_H6, S_T1))
    hs.append("s_mul_i32 s%d, s%d, %d" % (S_T0, S_RG, 2*HF_RP))
    hs.append("s_add_u32 s%d, s%d, %d" % (S_T0, S_T0, WS_HF))
    hs.append("s_add_u32 s%d, s%d, s%d" % (S_H0, S_H0, S_T0))
    hs.append("s_add_u32 s%d, s%d, s%d" % (S_H6, S_H6, S_T0))
    hs.append("s_mul_i32 s%d, s%d, %d" % (S_T0, S_RG, 2*OF_RP))
    hs.append("s_lshl_b32 s%d, s%d, 13" % (S_T1, S_CG))
    hs.append("s_add_u32 s%d, s%d, s%d" % (S_T0, S_T0, S_T1))
    hs.append("s_add_u32 s%d, s%d, %d" % (S_OB, S_T0, WS_OF))
    valu += hs
    HPARK = 152
    hstores = []
    for rt in range(4):
        for nt in range(7):
            a = accH(nt, rt)
            valu += ["v_max_f32 v%d, 0, v%d" % (a+r, a+r) for r in range(4)]
            valu += ["v_pk_mul_f32 v[%d:%d], v[%d:%d], v[%d:%d]" % (a+2*h, a+2*h+1, a+2*h, a+2*h+1, a+2*h, a+2*h+1) for h in range(2)]
        for u in range(3):
            a, b = accH(2*u, rt), accH(2*u+1, rt)
            valu += ["v_cvt_pk_bf16_f32 v%d, v%d, v%d" % (a, a, a+1), "v_cvt_pk_bf16_f32 v%d, v%d, v%d" % (a+1, a+2, a+3),
                     "v_cvt_pk_bf16_f32 v%d, v%d, v%d" % (a+2, b, b+1), "v_cvt_pk_bf16_f32 v%d, v%d, v%d" % (a+3, b+2, b+3)]
            off = (rt >> 1)*HF_RP + (rt & 1)*1024 + u*2048
            if hspread:
                d = HPARK + 14*rt + 4*u + (14*rt) % 2
                d = HPARK + 16*rt + 4*u
                valu += ["v_accvgpr_write_b32 a%d, v%d" % (d+r, a+r) for r in range(4)]
                hstores.append(["s_add_u32 s%d, s%d, %d" % (S_T1, S_H0, off),
                                "buffer_store_dwordx4 a[%d:%d], v%d, s[%d:%d], s%d offen%s" % (d, d+3, V_XO, SRD_WS, SRD_WS+3, S_T1, SCH)])
                continue
            valu += ["s_add_u32 s%d, s%d, %d" % (S_T0, S_H0, off),
                     "buffer_store_dwordx4 v[%d:%d], v%d, s[%d:%d], s%d offen%s" % (a, a+3, V_XO, SRD_WS, SRD_WS+3, S_T0, SCH)]
        a = accH(6, rt)
        valu += ["v_cvt_pk_bf16_f32 v%d, v%d, v%d" % (a, a, a+1), "v_cvt_pk_bf16_f32 v%d, v%d, v%d" % (a+1, a+2, a+3)]
        off = (rt >> 1)*HF_RP + (rt & 1)*1024
        if hspread:
            d = HPARK + 16*rt + 12
            valu += ["v_accvgpr_write_b32 a%d, v%d" % (d+r, a+r) for r in range(2)]
            hstores.append(["s_add_u32 s%d, s%d, %d" % (S_T1, S_H6, off),
                            "buffer_store_dwordx2 a[%d:%d], v%d, s[%d:%d], s%d offen%s" % (d, d+1, V_XO, SRD_WS, SRD_WS+3, S_T1, SCH)])
            continue
        valu += ["s_add_u32 s%d, s%d, %d" % (S_T0, S_H6, off),
                 "buffer_store_dwordx2 v[%d:%d], v%d, s[%d:%d], s%d offen%s" % (a, a+1, V_XO, SRD_WS, SRD_WS+3, S_T0, SCH)]
    NPRO = 7
    per = len(valu)//(4*NPRO); ii = 0
    for m in range(NPRO):
        grps, advs = kv_dma()
        for grp in grps:
            for t in grp: e(t, tag=tagkv(t, m))
            for t in valu[ii:ii+per]: e(t)
            ii += per
        for t in advs: e(t)
    for t in valu[ii:]: e(t)
    if pf2:
        srd(p, SRD_PO, 92, 8 << 20)
        srd(p, SRD_P2, 94, 7 << 20)
        e("s_lshl_b32 s%d, s2, 15\ns_lshl_b32 s%d, s%d, 13\ns_add_u32 s%d, s%d, s%d" % (S_PF0, S_T0, S_WAVE, S_PF0, S_PF0, S_T0))
        e("s_mul_i32 s%d, s2, 28672\ns_mul_i32 s%d, s%d, 7168\ns_add_u32 s%d, s%d, s%d" % (S_PF1, S_T0, S_WAVE, S_PF1, S_PF1, S_T0))
    if pf3:
        e("s_mul_i32 s%d, s2, %d\ns_lshl_b32 s%d, s%d, 13\ns_add_u32 s%d, s%d, s%d\ns_add_u32 s%d, s%d, 0x%x" % (S_T0, EX_STRIDE, S_T1, S_WAVE, S_T0, S_T0, S_T1, S_T0, S_T0, WS_EX))
        e("s_add_u32 s%d, s6, s%d\ns_addc_u32 s%d, s7, 0\ns_mov_b32 s%d, 8192\ns_mov_b32 s%d, 0x20000" % (SRD_W1, S_T0, SRD_W1+1, SRD_W1+2, SRD_W1+3))
        e("s_lshl_b32 s%d, s2, 14\ns_lshl_b32 s%d, s%d, 12\ns_add_u32 s%d, s%d, s%d" % (S_T0, S_T1, S_WAVE, S_T0, S_T0, S_T1))
        e("s_add_u32 s%d, s96, s%d\ns_addc_u32 s%d, s97, 0\ns_mov_b32 s%d, 4096\ns_mov_b32 s%d, 0x20000" % (SRD_WQ, S_T0, SRD_WQ+1, SRD_WQ+2, SRD_WQ+3))
        e("s_mov_b32 s%d, 0\ns_mov_b32 s%d, 0" % (S_Q, S_1))
    if pf3 == 2:
        for j in range(8):
            e("s_mov_b32 s%d, %d" % (S_1, j*1024))
            e("buffer_store_dwordx4 v[0:3], v%d, s[%d:%d], s%d offen" % (V_XO, SRD_W1, SRD_W1+3, S_1))
    stamp1()
    def koff(f): return (f >> 1)*4096 + (f & 1)*1024
    def kread(f, rel=0):
        return "ds_read_b128 a[%d:%d], v%d offset:%d" % (Kf(f//4, f % 4), Kf(f//4, f % 4)+3, V_KV, rel*KV_SLOT + koff(f))
    def vread(dt, rel=0):
        return "ds_read_b128 a[%d:%d], v%d offset:%d" % (Vf(dt), Vf(dt)+3, V_KV, rel*KV_SLOT + 2048 + koff(dt))
    def qk_mfmas(par, first):
        out = []
        for kt2 in range(2):
            for u in range(4):
                for qt in range(4):
                    s_ = Sreg(par, kt2, qt)
                    if u == 0: c = "0" if first else "v[%d:%d]" % (negm(qt), negm(qt)+3)
                    else: c = "v[%d:%d]" % (s_, s_+3)
                    out.append(Ins("v_mfma_f32_16x16x32_bf16 v[%d:%d], a[%d:%d], a[%d:%d], %s" % (s_, s_+3, Kf(kt2, u), Kf(kt2, u)+3, Qf(qt, u), Qf(qt, u)+3, c)))
        return out
    def pv_mfmas(par, first):
        out = []
        for dt in range(8):
            for qt in range(4):
                o = Oacc(dt, qt)
                c = "0" if first else "v[%d:%d]" % (o, o+3)
                out.append(Ins("v_mfma_f32_16x16x32_bf16 v[%d:%d], a[%d:%d], v[%d:%d], %s" % (o, o+3, Vf(dt), Vf(dt)+3, Preg(par, qt), Preg(par, qt)+3, c)))
        for qt in range(4):
            l = Lacc(qt)
            c = "0" if first else "a[%d:%d]" % (l, l+3)
            out.append(Ins("v_mfma_f32_16x16x32_bf16 a[%d:%d], a[%d:%d], v[%d:%d], %s" % (l, l+3, ONES, ONES+3, Preg(par, qt), Preg(par, qt)+3, c)))
        return out
    def softmax_ops(par):
        ops = []
        for qt in range(4):
            for kt2 in range(2):
                s_ = Sreg(par, kt2, qt)
                for h in range(2):
                    ops.append(("exp", "v_exp_f32 v%d, v%d" % (s_+2*h, s_+2*h)))
                    ops.append(("exp", "v_exp_f32 v%d, v%d" % (s_+2*h+1, s_+2*h+1)))
                    ops.append(("cvt", "v_cvt_pk_bf16_f32 v%d, v%d, v%d" % (Preg(par, qt)+2*kt2+h, s_+2*h, s_+2*h+1)))
        return ops
    pfn = [0]
    def pf_load():
        return None
    def step(j, qk, pv, pvfirst, sm, dma, rd_k, rd_v, rel, adj, dmatag=None, pf=None, hs_=None):
        par = j & 1
        mf = []
        kpos = {}; vpos = {}
        if qk:
            mf += qk_mfmas(1-par, False)
            for f in range(8): kpos[f] = 4*f + 3
        n0 = len(mf)
        if pv:
            mf += pv_mfmas(1-par, pvfirst)
            for f in range(8): vpos[f] = n0 + 4*f + 3
        n = len(mf)
        sc = Sched(mf)
        lastrd = 0
        if rd_k:
            for f in range(8): lastrd = max(lastrd, sc.put(kread(f, rel), kpos[f], force_gap=kpos[f]))
        if rd_v:
            for f in range(8):
                g = vpos.get(f, None)
                lastrd = max(lastrd, sc.put(vread(f, rel), g if g is not None else 4*f+1, force_gap=g))
        if dma:
            grps, advs = kv_dma()
            pos = 1
            for grp in grps:
                g = sc.put(Ins(grp[-1], tag=tagkv(grp[-1], dmatag)), pos)
                for t in grp[:-1]: sc.scalar(t, g-1)
                pos = g + 12
            for q, t in enumerate(advs): sc.scalar(t, min(n-1, pos - 10 + 2*q))
        if pf is not None:
            for q, (srd_, sreg) in enumerate(pf):
                g = sc.put(Ins("buffer_load_dwordx4 a[148:151], v%d, s[%d:%d], s%d offen%s" % (V_XO, srd_, srd_+3, sreg, " nt" if pfnt else ""), tag="pf"), 8 + 30*q)
                if (srd_, sreg) != (SRD_WQ, S_Q) or pf3: sc.scalar("s_add_u32 s%d, s%d, 1024" % (sreg, sreg), g)
        if hs_ is not None:
            g = sc.put(Ins(hs_[1]), 20)
            sc.scalar(hs_[0], g-1)
        if adj:
            g = sc.put("v_add_u32 v%d, %d, v%d" % (V_KV, 2*KV_SLOT, V_KV), lastrd+1)
            sc.put("v_and_b32 v%d, 0x1ffff, v%d" % (V_KV, V_KV), g+1)
        if sm:
            pos = 0
            for kind, t in softmax_ops(par):
                g = sc.put(t, pos)
                pos = g if kind == "cvt" else g + (0 if False else 0)
                pos = g + 1 if kind == "exp" else g
        sc.emit(p)
    e("v_mov_b32 v%d, v%d" % (V_KV, V_XO))
    e("v_mov_b32 v%d, 0x3f803f80" % V_T0)
    for r in range(4): e("v_accvgpr_write_b32 a%d, v%d" % (ONES+r, V_T0))
    p.waitvm(("kv", 2)); p.waitvm(("kv", 1)); p.waitvm(("kv", 0))
    e("s_barrier")
    for f in range(8): e(kread(f, 0))
    sc = Sched(qk_mfmas(0, True))
    for f in range(8): sc.put(kread(f, 1), 4*f+3, force_gap=4*f+3)
    sc.emit(p)
    e("v_add_u32 v%d, %d, v%d" % (V_KV, 2*KV_SLOT, V_KV))
    def rowmax(qt, t0, t1):
        a, b = Sreg(0, 0, qt), Sreg(0, 1, qt)
        e("v_max3_f32 v%d, v%d, v%d, v%d" % (t0, a, a+1, a+2))
        e("v_max3_f32 v%d, v%d, v%d, v%d" % (t1, a+3, b, b+1))
        e("v_max3_f32 v%d, v%d, v%d, v%d" % (t0, t0, b+2, b+3))
        e("v_max_f32 v%d, v%d, v%d" % (t0, t0, t1))
    tm = [V_T0, V_T1, V_T2, V_T3]; tn = [251, 252, 253, 254]
    for qt in range(4): rowmax(qt, tm[qt], tn[qt])
    for qt in range(4): e("v_mov_b32 v%d, v%d" % (tn[qt], tm[qt]))
    for qt in range(4): e("v_permlane32_swap_b32 v%d, v%d" % (tm[qt], tn[qt]))
    for qt in range(4): e("v_max_f32 v%d, v%d, v%d" % (tm[qt], tm[qt], tn[qt]))
    for qt in range(4): e("v_mov_b32 v%d, v%d" % (tn[qt], tm[qt]))
    for qt in range(4): e("v_permlane16_swap_b32 v%d, v%d" % (tm[qt], tn[qt]))
    for qt in range(4): e("v_max_f32 v%d, v%d, v%d" % (tm[qt], tm[qt], tn[qt]))
    for qt in range(4):
        for r in range(4): e("v_sub_f32 v%d, 0, v%d" % (negm(qt)+r, tm[qt]))
    for qt in range(4):
        a, b = Sreg(0, 0, qt), Sreg(0, 1, qt)
        for r in range(4):
            e("v_sub_f32 v%d, v%d, v%d" % (a+r, a+r, tm[qt]))
            e("v_sub_f32 v%d, v%d, v%d" % (b+r, b+r, tm[qt]))
    stamp1()
    PO, P2 = [(SRD_PO, S_PF0)], [(SRD_P2, S_PF1)]
    if pf3 == 1: PO.append((SRD_W1, S_1)); P2.append((SRD_WQ, S_Q))
    pfs = lambda x: x if pf2 else None
    NPF = (2 if pf3 == 1 else 1) if pf2 else 0
    if codepf & 4: code_srd(p, SRD_WQ, S_Q, START)
    CP = [(SRD_WQ, S_Q)] if codepf & 4 else []
    NH = 1 if hspread else 0
    NV = 4 + NPF + NH
    H = (lambda j: hstores[j]) if hspread else (lambda j: None)
    step(0, True, False, False, True, True, True, True, 0, False, dmatag=7, pf=pfs(PO), hs_=H(0))
    p.waitvm(("kv", 4)); p.waitvm(("kv", 3))
    e("s_barrier")
    step(1, True, True, True, True, True, True, True, 1, True, dmatag=8, pf=pfs(P2), hs_=H(1))
    if not hspread:
        e("s_mov_b32 s%d, 6" % S_CNT)
        p.loop_begin("at")
        e("%s_at:" % name)
        step(2, True, True, False, True, True, True, True, 0, False, pf=pfs(PO))
        e("s_waitcnt vmcnt(%d)" % (3*NV))
        e("s_barrier")
        step(3, True, True, False, True, True, True, True, 1, True, pf=pfs(P2))
        e("s_sub_u32 s%d, s%d, 1" % (S_CNT, S_CNT))
        e("s_cmp_lg_u32 s%d, 0" % S_CNT)
        e("s_cbranch_scc1 %s_at" % name)
        p.loop_end()
    else:
        for j in range(2, 14, 2):
            step(j, True, True, False, True, True, True, True, 0, False, pf=pfs(PO + (CP if j in (4, 10) else [])), hs_=H(j))
            e("s_waitcnt vmcnt(%d)" % (3*NV))
            e("s_barrier")
            step(j+1, True, True, False, True, True, True, True, 1, True, pf=pfs(P2), hs_=H(j+1))
    step(14, True, True, False, True, False, False, True, 0, False, pf=pfs(PO), hs_=H(14))
    e("s_waitcnt vmcnt(%d)" % (3*NV + NPF + NH))
    e("s_barrier")
    step(15, False, True, False, True, False, False, True, 1, False, hs_=H(15))
    step(16, False, True, False, False, False, False, False, 0, False)
    st.stamp()
    for qt in range(4):
        e("v_accvgpr_read_b32 v%d, a%d" % (negm(qt), Lacc(qt)))
    e("s_mov_b32 s%d, 0x%x" % (S_T0, f2u(2.0**thr_log2) if not force_slow else 0))
    e("v_max3_f32 v%d, v%d, v%d, v%d" % (V_T0, negm(0), negm(1), negm(2)))
    e("v_cmp_gt_f32 vcc, s%d, v%d" % (S_T0, V_T0))
    e("v_cmp_gt_f32 s[62:63], s%d, v%d" % (S_T0, negm(3)))
    for qt in (0, 1, 2):
        pass
    e("v_cmp_o_f32 s[64:65], v%d, v%d" % (negm(0), negm(1)) if False else "s_nop 0")
    e("s_and_b64 vcc, vcc, s[62:63]")
    e("v_cmp_o_f32 s[62:63], v%d, v%d" % (negm(0), negm(1)))
    e("s_and_b64 vcc, vcc, s[62:63]")
    e("v_cmp_o_f32 s[62:63], v%d, v%d" % (negm(2), negm(3)))
    e("s_and_b64 vcc, vcc, s[62:63]")
    e("s_cmp_eq_u64 vcc, -1")
    e("s_cbranch_scc0 %s_slow" % name)
    e("%s_oepi:" % name)
    for qt in range(4):
        e("v_rcp_f32 v%d, v%d" % (negm(qt)+2, negm(qt)))
    for qt in range(4):
        e("v_fma_f32 v%d, -v%d, v%d, 2.0" % (negm(qt)+1, negm(qt), negm(qt)+2))
        e("v_mul_f32 v%d, v%d, v%d" % (negm(qt)+2, negm(qt)+1, negm(qt)+2))
        e("v_mov_b32 v%d, v%d" % (negm(qt)+3, negm(qt)+2))
    for qt in range(4):
        iv = negm(qt)+2
        for u in range(4):
            a, b = Oacc(2*u, qt), Oacc(2*u+1, qt)
            for h in range(2):
                e("v_pk_mul_f32 v[%d:%d], v[%d:%d], v[%d:%d]" % (a+2*h, a+2*h+1, a+2*h, a+2*h+1, iv, iv+1))
                e("v_pk_mul_f32 v[%d:%d], v[%d:%d], v[%d:%d]" % (b+2*h, b+2*h+1, b+2*h, b+2*h+1, iv, iv+1))
            e("v_cvt_pk_bf16_f32 v%d, v%d, v%d" % (a, a, a+1))
            e("v_cvt_pk_bf16_f32 v%d, v%d, v%d" % (a+1, a+2, a+3))
            e("v_cvt_pk_bf16_f32 v%d, v%d, v%d" % (a+2, b, b+1))
            e("v_cvt_pk_bf16_f32 v%d, v%d, v%d" % (a+3, b+2, b+3))
            off = (qt >> 1)*OF_RP + (qt & 1)*1024 + u*2048
            e("s_add_u32 s%d, s%d, %d" % (S_T0, S_OB, off))
            e("buffer_store_dwordx4 v[%d:%d], v%d, s[%d:%d], s%d offen%s" % (a, a+3, V_XO, SRD_WS, SRD_WS+3, S_T0, SCO), tag="ost")
    if diag0: st.on = True
    if one:
        p.waitvm(("kv", None))
        tail(p, st)
    else:
        st.stamp()
        if tl: tl_end(p)
        if stamps:
            e("s_waitcnt vmcnt(0)")
            st.stamp(); st.stamp(True)
            st.dump(SRD_WS, V_T0, 1)
    e("s_endpgm")
    e("%s_slow:" % name)
    e("s_waitcnt vmcnt(0) lgkmcnt(0)")
    for i in range(128): e("v_mov_b32 v%d, 0" % i)
    e("v_mov_b32 v%d, 0" % V_T0)
    for qt in range(4):
        for r in range(4): e("v_accvgpr_write_b32 a%d, v%d" % (Lacc(qt)+r, V_T0))
    M = [232, 233, 234, 235]
    for qt in range(4): e("v_mov_b32 v%d, 0xff7fffff" % M[qt])
    e("s_add_u32 s%d, s%d, %d" % (S_KS, S_KVR, WS_KP))
    e("s_add_u32 s%d, s%d, %d" % (S_RP, S_KVR, WS_VP))
    e("s_mov_b32 s%d, 16" % S_CNT)
    e("%s_sl:" % name)
    for f in range(8):
        e("s_add_u32 s%d, s%d, %d" % (S_T0, S_KS, f*1024))
        e("buffer_load_dwordx4 a[%d:%d], v%d, s[%d:%d], s%d offen" % (Kf(f//4, f % 4), Kf(f//4, f % 4)+3, V_XO, SRD_WS, SRD_WS+3, S_T0) + SC)
    for f in range(8):
        e("s_add_u32 s%d, s%d, %d" % (S_T0, S_RP, f*1024))
        e("buffer_load_dwordx4 a[%d:%d], v%d, s[%d:%d], s%d offen" % (Vf(f), Vf(f)+3, V_XO, SRD_WS, SRD_WS+3, S_T0) + SC)
    e("s_waitcnt vmcnt(0)")
    for ins in qk_mfmas(0, True): p.add(ins)
    e("s_nop 15")
    for qt in range(4):
        t0, t1, al = V_T0, V_T1, V_T2
        rowmax(qt, t0, t1)
        e("v_mov_b32 v%d, v%d" % (t1, t0))
        e("v_permlane32_swap_b32 v%d, v%d" % (t0, t1))
        e("v_max_f32 v%d, v%d, v%d" % (t0, t0, t1))
        e("v_mov_b32 v%d, v%d" % (t1, t0))
        e("v_permlane16_swap_b32 v%d, v%d" % (t0, t1))
        e("v_max3_f32 v%d, v%d, v%d, v%d" % (t0, t0, t1, M[qt]))
        e("v_sub_f32 v%d, v%d, v%d" % (al, M[qt], t0))
        e("v_exp_f32 v%d, v%d" % (al, al))
        e("v_mov_b32 v%d, v%d" % (M[qt], t0))
        a, b = Sreg(0, 0, qt), Sreg(0, 1, qt)
        for r in range(4):
            e("v_sub_f32 v%d, v%d, v%d" % (a+r, a+r, t0)); e("v_sub_f32 v%d, v%d, v%d" % (b+r, b+r, t0))
        for r in range(4):
            e("v_exp_f32 v%d, v%d" % (a+r, a+r)); e("v_exp_f32 v%d, v%d" % (b+r, b+r))
        e("v_cvt_pk_bf16_f32 v%d, v%d, v%d" % (Preg(0, qt), a, a+1))
        e("v_cvt_pk_bf16_f32 v%d, v%d, v%d" % (Preg(0, qt)+1, a+2, a+3))
        e("v_cvt_pk_bf16_f32 v%d, v%d, v%d" % (Preg(0, qt)+2, b, b+1))
        e("v_cvt_pk_bf16_f32 v%d, v%d, v%d" % (Preg(0, qt)+3, b+2, b+3))
        for dt in range(8):
            for r in range(4): e("v_mul_f32 v%d, v%d, v%d" % (Oacc(dt, qt)+r, Oacc(dt, qt)+r, al))
        e("v_accvgpr_read_b32 v%d, a%d" % (t1, Lacc(qt)))
        e("v_mul_f32 v%d, v%d, v%d" % (t1, t1, al))
        e("v_accvgpr_write_b32 a%d, v%d" % (Lacc(qt), t1))
    e("s_nop 3")
    for ins in pv_mfmas(0, False): p.add(ins)
    e("s_nop 15")
    e("s_add_u32 s%d, s%d, 8192" % (S_KS, S_KS))
    e("s_add_u32 s%d, s%d, 8192" % (S_RP, S_RP))
    e("s_sub_u32 s%d, s%d, 1" % (S_CNT, S_CNT))
    e("s_cmp_lg_u32 s%d, 0" % S_CNT)
    e("s_cbranch_scc1 %s_sl" % name)
    for qt in range(4):
        e("v_accvgpr_read_b32 v%d, a%d" % (negm(qt), Lacc(qt)))
    e("s_branch %s_oepi" % name)
    e("%s_done:" % name)
    e("s_endpgm")
    return p
```

```python
import sys
from asmgen import *
from kern import *

IMG = 8448
def k2(name, DW=12, DA=6, stamps=False, slack=6, xnt=True, noact=False, now=False, same=0, mapping=1, split=0, wlin=0, rot=0, tl=False, exp=0):
    p = Prog(); e = p.e
    st = Stamps(p, stamps)
    p.lg_slack = slack
    U = 8
    def acc(nt, i): return 16*nt + 4*i
    V_PRE = 192
    R = 128
    V_TID, V_TR0, V_TR1, V_DW, V_XA, V_XO, V_T0, V_T1, V_T2, V_T3, V_RM, V_DW2, V_FLAG, V_G8, V_LW, V_LR, V_Z = range(224, 241)
    def wfrag(nt): return 4*nt
    def afrag(ss, i): return 32 + 16*(ss % U) + 4*i
    S_WAVE = 3
    SRD_W, SRD_WS, SRD_X, SRD_OUT, SRD_DBG, SRD_A0, SRD_A1 = 8, 12, 16, 20, 24, 56, 84
    S_A, S_W, S_MB, S_T0, S_T1, S_ROLE, S_RT, S_CT, S_CNT, S_KH, S_G, S_PAIR, S_XB, S_NU, S_AB, S_FOFF, S_FMASK, S_RH = 28, 29, 30, 31, 32, 33, 34, 35, 36, 37, 38, 39, 50, 51, 55, 60, 61, 62
    S_SEG0, S_SEG1, S_COL = 88, 89, 90
    SRD_WB = 96
    S_W0, S_WEND, S_AEND, S_BIG, S_START = 63, 91, 92, 93, 94
    e("s_cmp_ge_u32 s2, 256")
    e("s_cbranch_scc1 %s_done" % name)
    st.stamp(True); st.stamp()
    if tl: tl_start(p)
    e("s_load_dwordx2 s[4:5], s[0:1], %d" % KA['wo'])
    e("s_load_dwordx4 s[40:43], s[0:1], %d" % KA['w2'])
    e("s_load_dwordx4 s[44:47], s[0:1], %d" % KA['out'])
    e("s_load_dwordx2 s[6:7], s[0:1], %d" % KA['ws'])
    e("s_load_dwordx2 s[48:49], s[0:1], %d" % KA['x'])
    e("v_lshrrev_b32 v%d, 6, v0" % V_T0)
    e("v_and_b32 v%d, 63, v0" % V_TID)
    e("v_readfirstlane_b32 s%d, v%d" % (S_WAVE, V_T0))
    e("s_bfe_u32 s%d, s2, 0x10002" % S_ROLE)
    e("s_and_b32 s%d, s2, 3" % S_T0)
    e("s_lshr_b32 s%d, s2, 3" % S_T1)
    if mapping == 0:
        e("s_lshr_b32 s%d, s%d, 1" % (S_RT, S_T0))
        e("s_lshl_b32 s%d, s%d, 3" % (S_RT, S_RT))
        e("s_lshr_b32 s%d, s%d, 2" % (S_CT, S_T1))
        e("s_add_u32 s%d, s%d, s%d" % (S_RT, S_RT, S_CT))
        e("s_and_b32 s%d, s%d, 1" % (S_CT, S_T0))
        e("s_lshl_b32 s%d, s%d, 2" % (S_CT, S_CT))
        e("s_and_b32 s%d, s%d, 3" % (S_T1, S_T1))
        e("s_add_u32 s%d, s%d, s%d" % (S_CT, S_CT, S_T1))
    elif mapping == 2:
        e("s_lshl_b32 s%d, s%d, 2" % (S_RT, S_T0))
        e("s_and_b32 s%d, s%d, 3" % (S_CT, S_T1))
        e("s_add_u32 s%d, s%d, s%d" % (S_RT, S_RT, S_CT))
        e("s_lshr_b32 s%d, s%d, 2" % (S_CT, S_T1))
    else:
        e("s_lshl_b32 s%d, s%d, 2" % (S_RT, S_T0))
        e("s_lshr_b32 s%d, s%d, 3" % (S_CT, S_T1))
        e("s_add_u32 s%d, s%d, s%d" % (S_RT, S_RT, S_CT))
        e("s_and_b32 s%d, s%d, 7" % (S_CT, S_T1))
    e("s_lshl_b32 s%d, s%d, 3" % (S_PAIR, S_RT))
    e("s_add_u32 s%d, s%d, s%d" % (S_PAIR, S_PAIR, S_CT))
    if same & 1: e("s_mov_b32 s%d, 0" % S_RT)
    if same & 2: e("s_mov_b32 s%d, %d" % (S_CT, same >> 4))
    e("s_lshr_b32 s%d, s%d, 1" % (S_KH, S_WAVE))
    e("s_and_b32 s%d, s%d, 1" % (S_RH, S_WAVE))
    e("v_lshrrev_b32 v%d, 4, v%d" % (V_T0, V_TID))
    e("v_and_b32 v%d, 15, v%d" % (V_T1, V_TID))
    e("v_lshlrev_b32 v%d, %d, v%d" % (V_DW, 14 if exp != 1 else 11, V_T0))
    if not split:
        e("v_lshl_add_u32 v%d, v%d, 4, v%d" % (V_DW, V_T1, V_DW))
    else:
        e("s_add_u32 s%d, s%d, 4" % (S_SEG1, S_CT))
        e("s_and_b32 s%d, s%d, 7" % (S_SEG1, S_SEG1))
        e("s_add_u32 s%d, s%d, 8" % (S_SEG1, S_SEG1))
        e("s_lshl_b32 s%d, s%d, 7" % (S_SEG1, S_SEG1))
        e("s_lshl_b32 s%d, s%d, 7" % (S_SEG0, S_CT))
        e("s_sub_u32 s%d, s%d, s%d" % (S_T0, S_SEG1, S_SEG0))
        e("v_and_b32 v%d, 7, v%d" % (V_T2, V_T1))
        e("v_lshl_add_u32 v%d, v%d, 4, v%d" % (V_DW, V_T2, V_DW))
        e("v_lshrrev_b32 v%d, 3, v%d" % (V_T2, V_T1))
        e("v_mul_lo_u32 v%d, v%d, s%d" % (V_T2, V_T2, S_T0))
        e("v_add_u32 v%d, v%d, v%d" % (V_DW, V_DW, V_T2))
    e("v_and_b32 v%d, 1, v%d" % (V_T2, V_T0))
    e("v_lshlrev_b32 v%d, 2, v%d" % (V_T2, V_T2))
    e("v_bfe_u32 v%d, v%d, 2, 2" % (V_T3, V_TID))
    e("v_add_u32 v%d, v%d, v%d" % (V_T2, V_T2, V_T3))
    e("v_mul_u32_u24 v%d, 1056, v%d" % (V_TR0, V_T2))
    e("v_lshrrev_b32 v%d, 1, v%d" % (V_T2, V_T0))
    e("v_lshl_add_u32 v%d, v%d, 8, v%d" % (V_TR0, V_T2, V_TR0))
    e("v_and_b32 v%d, 3, v%d" % (V_T2, V_TID))
    e("v_lshl_add_u32 v%d, v%d, 3, v%d" % (V_TR0, V_T2, V_TR0))
    e("s_mul_i32 s%d, s%d, %d" % (S_T0, S_KH, IMG))
    e("v_add_u32 v%d, s%d, v%d" % (V_TR0, S_T0, V_TR0))
    e("v_add_u32 v%d, %d, v%d" % (V_DW2, (2048 if exp != 1 else 8192)-1056, V_DW))
    e("v_add_u32 v%d, %d, v%d" % (V_TR1, 8*IMG, V_TR0))
    e("v_lshlrev_b32 v%d, 4, v%d" % (V_XO, V_TID))
    e("s_lshl_b32 s%d, s%d, 11" % (S_T0, S_KH))
    e("v_add_u32 v%d, s%d, v%d" % (V_XA, S_T0, V_XO))
    e("v_lshlrev_b32 v%d, 3, v%d" % (V_G8, V_T0))
    e("v_mov_b32 v%d, 0" % V_Z)
    e("v_mov_b32 v%d, 0" % V_FLAG)
    e("s_waitcnt lgkmcnt(0)")
    def sel(d, x, y):
        e("s_mov_b32 s%d, 0x%x" % (d, y))
        e("s_cselect_b32 s%d, 0x%x, s%d" % (d, x, d))
    e("s_cmp_eq_u32 s%d, 1" % S_ROLE)
    if not wlin:
        e("s_cselect_b32 s%d, s4, s40" % SRD_W)
        e("s_cselect_b32 s%d, s5, s41" % (SRD_W+1))
        sel(SRD_W+2, 8 << 20, 7 << 20)
        e("s_mov_b32 s%d, 0x20000" % (SRD_W+3))
    else:
        sel(91, WS_WO, WS_W2)
        sel(92, WO_CT, W2_CT)
        sel(93, 128*8192, 112*8192)
    sel(S_NU, 128*2048, 112*2048)
    sel(S_T1, OF_RP, HF_RP)
    sel(S_AB, WS_OF, WS_HF)
    e("s_cselect_b32 s%d, 8, 7" % S_CNT)
    e("s_cselect_b32 s%d, s48, s42" % SRD_X)
    e("s_cselect_b32 s%d, s49, s43" % (SRD_X+1))
    sel(SRD_X+2, 4 << 20, 2048)
    e("s_mov_b32 s%d, 0x20000" % (SRD_X+3))
    e("s_lshl_b32 s%d, s%d, 1" % (S_T0, S_RT))
    e("s_add_u32 s%d, s%d, s%d" % (S_T0, S_T0, S_RH))
    e("s_lshl_b32 s%d, s%d, 1" % (S_T0, S_T0))
    e("s_mul_i32 s%d, s%d, s%d" % (S_A, S_T0, S_T1))
    e("s_add_u32 s%d, s%d, s%d" % (S_A, S_A, S_AB))
    e("s_add_u32 s%d, s6, s%d" % (SRD_A0, S_A))
    e("s_addc_u32 s%d, s7, 0" % (SRD_A0+1))
    e("s_mov_b32 s%d, s%d" % (SRD_A0+2, S_NU))
    e("s_mov_b32 s%d, 0x20000" % (SRD_A0+3))
    e("s_add_u32 s%d, s%d, s%d" % (SRD_A1, SRD_A0, S_T1))
    e("s_addc_u32 s%d, s%d, 0" % (SRD_A1+1, SRD_A0+1))
    e("s_mov_b32 s%d, s%d" % (SRD_A1+2, S_NU))
    e("s_mov_b32 s%d, 0x20000" % (SRD_A1+3))
    e("s_mov_b32 s%d, 0" % S_A)
    if wlin:
        e("s_mul_i32 s%d, s%d, s92" % (S_T0, S_CT))
        e("s_add_u32 s%d, s%d, s91" % (S_T0, S_T0))
        e("s_add_u32 s%d, s6, s%d" % (SRD_W, S_T0))
        e("s_addc_u32 s%d, s7, 0" % (SRD_W+1))
        e("s_mov_b32 s%d, s93" % (SRD_W+2))
        e("s_mov_b32 s%d, 0x20000" % (SRD_W+3))
        e("s_sub_u32 s%d, s%d, 32" % (SRD_WB, SRD_W))
        e("s_subb_u32 s%d, s%d, 0" % (SRD_WB+1, SRD_W+1))
        e("s_add_u32 s%d, s93, 32" % (SRD_WB+2))
        e("s_mov_b32 s%d, 0x20000" % (SRD_WB+3))
        e("s_lshl_b32 s%d, s%d, 8" % (S_T1, S_CT))
        e("s_lshl_b32 s%d, s%d, 7" % (S_T0, S_KH))
        e("s_add_u32 s%d, s%d, s%d" % (S_COL, S_T1, S_T0))
        e("s_lshl_b32 s%d, s%d, 11" % (S_W, S_WAVE))
    elif not split:
        e("s_lshl_b32 s%d, s%d, 8" % (S_W, S_CT))
        e("s_lshl_b32 s%d, s%d, 7" % (S_T0, S_KH))
        e("s_add_u32 s%d, s%d, s%d" % (S_COL, S_W, S_T0))
    else:
        e("s_mov_b32 s%d, s%d" % (S_W, S_SEG0))
        e("s_cmp_eq_u32 s%d, 0" % S_KH)
        e("s_cselect_b32 s%d, s%d, s%d" % (S_COL, S_SEG0, S_SEG1))
    if not wlin:
        e("s_lshl_b32 s%d, s%d, %d" % (S_T0, S_WAVE, 12 if exp != 1 else 14))
        e("s_add_u32 s%d, s%d, s%d" % (S_W, S_W, S_T0))
    e("s_mul_i32 s%d, s%d, %d" % (S_MB, S_WAVE, 2*1056))
    WSTEP = 8192 if wlin else 32*2048
    if rot:
        if rot == 1:
            e("s_and_b32 s%d, s%d, 3" % (S_T0, S_RT))
            e("s_and_b32 s%d, s%d, 3" % (S_T1, S_CT))
            e("s_cmp_eq_u32 s%d, s%d" % (S_T0, S_T1))
            e("s_cselect_b32 s%d, 1, 0" % S_START)
        elif rot == 2:
            e("s_add_u32 s%d, s%d, s%d" % (S_T0, S_RT, S_CT))
            e("s_and_b32 s%d, s%d, 1" % (S_START, S_T0))
        elif rot == 3:
            e("s_add_u32 s%d, s%d, s%d" % (S_T0, S_RT, S_CT))
            e("s_and_b32 s%d, s%d, 3" % (S_START, S_T0))
        e("s_mov_b32 s%d, s%d" % (S_W0, S_W))
        e("s_mul_i32 s%d, s%d, %d" % (S_T0, S_CNT, 16*WSTEP))
        e("s_add_u32 s%d, s%d, s%d" % (S_WEND, S_W, S_T0))
        e("s_mul_i32 s%d, s%d, %d" % (S_T0, S_START, 16*WSTEP))
        e("s_add_u32 s%d, s%d, s%d" % (S_W, S_W, S_T0))
        e("s_mul_i32 s%d, s%d, %d" % (S_AEND, S_CNT, 8*4096))
        e("s_mul_i32 s%d, s%d, %d" % (S_A, S_START, 8*4096))
        e("s_mov_b32 s%d, 0x7f000000" % S_BIG)
    def dma_step(slot):
        b = slot*IMG
        if wlin:
            return [["s_add_u32 m0, s%d, %d" % (S_MB, b), "buffer_load_dwordx4 v%d, s[%d:%d], s%d offen lds" % (V_XO, SRD_W, SRD_W+3, S_W)],
                    ["buffer_load_dwordx4 v%d, s[%d:%d], s%d offen offset:1056 lds" % (V_XO, SRD_WB, SRD_WB+3, S_W)]]
        return [["s_add_u32 m0, s%d, %d" % (S_MB, b), "buffer_load_dwordx4 v%d, s[%d:%d], s%d offen lds" % (V_DW, SRD_W, SRD_W+3, S_W)],
                ["buffer_load_dwordx4 v%d, s[%d:%d], s%d offen offset:1056 lds" % (V_DW2, SRD_W, SRD_W+3, S_W)]]
    adv_w = "s_add_u32 s%d, s%d, %d" % (S_W, S_W, 8192 if wlin else 32*2048)
    def a_loads(ss):
        return ["buffer_load_dwordx4 a[%d:%d], v%d, s[%d:%d], s%d offen offset:%d" % (afrag(ss, i), afrag(ss, i)+3, V_XA, SRD_A0 if i < 2 else SRD_A1, (SRD_A0 if i < 2 else SRD_A1)+3, S_A, (i & 1)*1024) for i in range(4)]
    adv_a = "s_add_u32 s%d, s%d, 4096" % (S_A, S_A)
    def tr_reads(ss, nt):
        q = ss % U
        v, o = (V_TR0, q) if q < 4 else (V_TR1, q-4)
        return ["ds_read_b64_tr_b16 a[%d:%d], v%d offset:%d" % (wfrag(nt)+2*t, wfrag(nt)+2*t+1, v, o*2*IMG + nt*32 + t*512) for t in range(2)]
    setup = []
    setup += ["s_mov_b32 s%d, s6" % SRD_WS, "s_mov_b32 s%d, s7" % (SRD_WS+1), "s_mov_b32 s%d, 0x%x" % (SRD_WS+2, WS_SIZE), "s_mov_b32 s%d, 0x20000" % (SRD_WS+3)]
    setup += ["s_mov_b32 s%d, s44" % SRD_OUT, "s_mov_b32 s%d, s45" % (SRD_OUT+1), "s_mov_b32 s%d, 0x400000" % (SRD_OUT+2), "s_mov_b32 s%d, 0x20000" % (SRD_OUT+3)]
    setup += ["s_mov_b32 s%d, s46" % SRD_DBG, "s_mov_b32 s%d, s47" % (SRD_DBG+1), "s_mov_b32 s%d, 256" % (SRD_DBG+2), "s_mov_b32 s%d, 0x20000" % (SRD_DBG+3)]
    setup += ["s_lshl_b32 s%d, s%d, 15" % (S_G, S_PAIR), "s_lshl_b32 s%d, s%d, 13" % (S_T0, S_WAVE), "s_add_u32 s%d, s%d, s%d" % (S_G, S_G, S_T0), "s_add_u32 s%d, s%d, 0x%x" % (S_G, S_G, WS_G)]
    setup += ["s_lshl_b32 s%d, s%d, 18" % (S_XB, S_RT), "s_lshl_b32 s%d, s%d, 17" % (S_T0, S_RH), "s_add_u32 s%d, s%d, s%d" % (S_XB, S_XB, S_T0),
              "s_add_u32 s%d, s%d, s%d" % (S_XB, S_XB, S_COL)]
    setup += ["s_and_b32 s%d, s%d, 0x7c" % (S_FOFF, S_PAIR), "s_add_u32 s%d, s%d, 128" % (S_FOFF, S_FOFF), "s_and_b32 s%d, s%d, 3" % (S_T1, S_PAIR), "s_lshl_b32 s%d, s%d, 3" % (S_T1, S_T1), "s_lshl_b32 s%d, 1, s%d" % (S_FMASK, S_T1)]
    setup += ["v_lshlrev_b32 v%d, 11, v%d" % (V_RM, V_T1), "v_and_b32 v%d, 1, v%d" % (V_T2, V_T0), "v_lshl_add_u32 v%d, v%d, 5, v%d" % (V_RM, V_T2, V_RM),
              "v_lshrrev_b32 v%d, 1, v%d" % (V_T2, V_T0), "v_lshl_add_u32 v%d, v%d, 4, v%d" % (V_RM, V_T2, V_RM)]
    setup += ["v_mov_b32 v%d, 0" % i for i in range(128)]
    NP = max(DW//2, DA)
    nvm = 0
    seqs = []
    for ss in range(NP):
        if ss < DW//2:
            for h in range(2):
                for grp in dma_step(2*ss+h): seqs.append([(t, ("w", 2*ss+h) if t.startswith("buffer") else None) for t in grp])
                seqs[-1].append((adv_w, None))
        if ss < DA:
            for t in a_loads(ss): seqs.append([(t, None)])
            seqs[-1].append((adv_a, None))
    per = -(-len(setup)//(len(seqs)-1)); ii = 0
    for grp in seqs:
        for t, tg in grp: e(t, tag=tg)
        for t in setup[ii:ii+per]: e(t)
        ii += per
    for t in setup[ii:]: e(t)
    e("s_cmp_eq_u32 s%d, 1" % S_ROLE)
    e("s_cbranch_scc0 %s_preg" % name)
    for i in range(4):
        e("s_add_u32 s%d, s%d, %d" % (S_T0, S_XB, i*16*2048))
        for u in range(2):
            d = V_PRE + 4*(4*u+i)
            e("buffer_load_dwordx4 v[%d:%d], v%d, s[%d:%d], s%d offen offset:%d%s" % (d, d+3, V_RM, SRD_X, SRD_X+3, S_T0, u*64, " nt" if xnt else ""), tag="optional")
    e("s_branch %s_prej" % name)
    e("%s_preg:" % name)
    for nt in range(4):
        e("buffer_load_dwordx2 v[%d:%d], v%d, s[%d:%d], s%d offen offset:%d" % (V_PRE+2*nt, V_PRE+2*nt+1, V_G8, SRD_X, SRD_X+3, S_COL, nt*32), tag="optional")
    e("%s_prej:" % name)
    st.stamp()
    p.waitvm(("w", 1))
    e("s_barrier")
    for nt in range(8):
        for t in tr_reads(0, nt): e(t)
    st.stamp()
    p.loop_begin("g2")
    e("%s_g2:" % name)
    for ss in range(U):
        if ss % 2 == 0:
            p.waitvm(("w", (2*ss+5) % 16))
            e("s_barrier")
        if ss == 7:
            e("s_cmp_lg_u32 s%d, 1" % S_CNT)
            e("s_cbranch_scc1 %s_nofl" % name)
            e("buffer_load_dword v%d, v%d, s[%d:%d], s%d offen sc1" % (V_FLAG, V_Z, SRD_DBG, SRD_DBG+3, S_FOFF), tag="optional")
            e("%s_nofl:" % name)
        mf = []
        for nt in range(8):
            for i in range(4):
                a = acc(nt, i)
                mf.append(Ins("v_mfma_f32_16x16x32_bf16 v[%d:%d], a[%d:%d], a[%d:%d], v[%d:%d]" % (a, a+3, wfrag(nt), wfrag(nt)+3, afrag(ss, i), afrag(ss, i)+3, a, a+3)))
        if rot and 2*ss + DW == 16:
            e("s_cmp_eq_u32 s%d, s%d" % (S_W, S_WEND)); e("s_cselect_b32 s%d, s%d, s%d" % (S_W, S_W0, S_W))
            e("s_cmp_eq_u32 s%d, 1" % S_CNT); e("s_cselect_b32 s%d, s%d, s%d" % (S_W, S_BIG, S_W))
        if rot and ss + DA == 8:
            e("s_cmp_eq_u32 s%d, s%d" % (S_A, S_AEND)); e("s_cselect_b32 s%d, 0, s%d" % (S_A, S_A))
            e("s_cmp_eq_u32 s%d, 1" % S_CNT); e("s_cselect_b32 s%d, s%d, s%d" % (S_A, S_BIG, S_A))
        sc = Sched(mf)
        for nt in range(8):
            r = tr_reads(ss+1, nt)
            g = sc.put(r[0], min(4*nt+3, 31)); sc.put(r[1], min(g+1, 31))
        pos = 1
        for h in range(2):
            slot = (2*ss + DW + h) % 16
            for grp in dma_step(slot):
                if now: continue
                g = sc.put(Ins(grp[-1], tag=("w", slot)), pos)
                for t in grp[:-1]: sc.scalar(t, g-1)
                pos = g + 3
            sc.scalar(adv_w, pos - 2)
        pos = 2
        for t in a_loads(ss + DA):
            if noact: continue
            g = sc.put(t, pos); pos = g + 6
        sc.scalar(adv_a, 30)
        sc.emit(p)
    e("s_sub_u32 s%d, s%d, 1" % (S_CNT, S_CNT))
    e("s_cmp_lg_u32 s%d, 0" % S_CNT)
    e("s_cbranch_scc1 %s_g2" % name)
    p.loop_end()
    st.stamp()
    GQ = 64 + 128 + 32
    e("s_waitcnt vmcnt(0) lgkmcnt(0)")
    G0 = 241 - 241 + 0
    A_G = 160
    e("s_mov_b32 s54, 0")
    e("s_cmp_eq_u32 s%d, 1" % S_ROLE)
    e("s_cbranch_scc0 %s_nog" % name)
    e("v_readfirstlane_b32 s54, v%d" % V_FLAG)
    e("s_and_b32 s54, s54, s%d" % S_FMASK)
    e("s_cbranch_scc0 %s_nog" % name)
    def gloads():
        for k_ in range(8):
            e("s_add_u32 s%d, s%d, %d" % (S_T0, S_G, k_*1024))
            e("buffer_load_dwordx4 a[%d:%d], v%d, s[%d:%d], s%d offen sc1" % (A_G+4*k_, A_G+4*k_+3, V_XO, SRD_WS, SRD_WS+3, S_T0), tag="optional")
    gloads()
    e("%s_nog:" % name)
    st.stamp()
    e("s_barrier")
    e("s_lshl_b32 s%d, s%d, 14" % (S_T0, S_WAVE))
    e("v_add_u32 v%d, s%d, v%d" % (V_T0, S_T0, V_XO))
    e("s_xor_b32 s%d, s%d, 2" % (S_T1, S_WAVE))
    e("s_lshl_b32 s%d, s%d, 14" % (S_T1, S_T1))
    e("v_add_u32 v%d, s%d, v%d" % (V_T1, S_T1, V_XO))
    e("s_cmp_eq_u32 s%d, 0" % S_KH)
    e("s_cbranch_scc0 %s_red1" % name)
    for kh in range(2):
        if kh == 1: e("%s_red1:" % name)
        send0 = 64 if kh == 0 else 0; keep0 = 0 if kh == 0 else 64
        for j in range(16):
            e("ds_write_b128 v%d, v[%d:%d] offset:%d" % (V_T0, send0+4*j, send0+4*j+3, j*1024))
        e("s_waitcnt lgkmcnt(0)")
        e("s_barrier")
        for j in range(16):
            e("ds_read_b128 v[%d:%d], v%d offset:%d" % (R+4*j, R+4*j+3, V_T1, j*1024))
        for j in range(32):
            e("v_pk_add_f32 v[%d:%d], v[%d:%d], v[%d:%d]" % (R+2*j, R+2*j+1, R+2*j, R+2*j+1, keep0+2*j, keep0+2*j+1))
        if kh == 0: e("s_branch %s_redj" % name)
    e("%s_redj:" % name)
    st.stamp()
    def res(ntl, i): return R + 16*ntl + 4*i
    e("s_cmp_eq_u32 s%d, 1" % S_ROLE)
    e("s_cbranch_scc1 %s_epis" % name)
    LOG2E = f2u(1.4426950408889634)
    e("s_mov_b32 s52, 0x%x" % (LOG2E ^ 0x80000000))
    for ntl in range(4):
        b = V_PRE + 2*ntl
        e("v_lshlrev_b32 v%d, 16, v%d\nv_and_b32 v%d, 0xffff0000, v%d\nv_lshlrev_b32 v%d, 16, v%d\nv_and_b32 v%d, 0xffff0000, v%d" % (64+4*ntl, b, 65+4*ntl, b, 66+4*ntl, b+1, 67+4*ntl, b+1))
    for u in range(2):
        for i in range(4):
            d = 0 + 4*(4*u+i)
            T = 96
            tiles = [res(2*u, i), res(2*u+1, i)]
            for half in range(2):
                a = tiles[half]; ntl = 2*u + half
                for h in range(2): e("v_pk_add_f32 v[%d:%d], v[%d:%d], v[%d:%d]" % (a+2*h, a+2*h+1, a+2*h, a+2*h+1, 64+4*ntl+2*h, 64+4*ntl+2*h+1))
            for half in range(2):
                for r in range(4): e("v_mul_f32 v%d, s52, v%d" % (T+4*half+r, tiles[half]+r))
            for q in range(8): e("v_exp_f32 v%d, v%d" % (T+q, T+q))
            for q in range(8): e("v_add_f32 v%d, 1.0, v%d" % (T+q, T+q))
            for q in range(8): e("v_rcp_f32 v%d, v%d" % (T+q, T+q))
            for half in range(2):
                a = tiles[half]
                for h in range(2): e("v_pk_mul_f32 v[%d:%d], v[%d:%d], v[%d:%d]" % (a+2*h, a+2*h+1, a+2*h, a+2*h+1, T+4*half+2*h, T+4*half+2*h+1))
            for half in range(2):
                a = tiles[half]
                e("v_cvt_pk_bf16_f32 v%d, v%d, v%d" % (d+2*half, a, a+1))
                e("v_cvt_pk_bf16_f32 v%d, v%d, v%d" % (d+2*half+1, a+2, a+3))
            e("s_add_u32 s%d, s%d, %d" % (S_T0, S_G, (4*u+i)*1024))
            e("buffer_store_dwordx4 v[%d:%d], v%d, s[%d:%d], s%d offen sc1" % (d, d+3, V_XO, SRD_WS, SRD_WS+3, S_T0))
    st.stamp()
    st.n -= 1
    e("s_waitcnt vmcnt(0)")
    e("s_barrier")
    e("s_cmp_lg_u32 s%d, 0" % S_WAVE)
    e("s_cbranch_scc1 %s_fin" % name)
    e("s_mov_b64 exec, 1")
    e("v_mov_b32 v%d, s%d" % (V_T0, S_FMASK))
    e("buffer_atomic_add v%d, v%d, s[%d:%d], s%d offen sc1" % (V_T0, V_Z, SRD_DBG, SRD_DBG+3, S_FOFF))
    e("s_waitcnt vmcnt(0)")
    e("s_branch %s_fin" % name)
    e("%s_epis:" % name)
    e("s_cmp_lg_u32 s54, 0")
    e("s_cbranch_scc1 %s_haveg" % name)
    e("s_mov_b32 s53, 0x400000")
    e("%s_poll:" % name)
    e("buffer_load_dword v%d, v%d, s[%d:%d], s%d offen sc1" % (V_FLAG, V_Z, SRD_DBG, SRD_DBG+3, S_FOFF))
    e("s_waitcnt vmcnt(0)")
    e("v_readfirstlane_b32 s54, v%d" % V_FLAG)
    e("s_and_b32 s54, s54, s%d" % S_FMASK)
    e("s_cbranch_scc1 %s_polled" % name)
    e("s_sleep 1")
    e("s_sub_u32 s53, s53, 1")
    e("s_cmp_lg_u32 s53, 0")
    e("s_cbranch_scc1 %s_poll" % name)
    e("%s_polled:" % name)
    gloads()
    e("%s_haveg:" % name)
    for k_ in range(8):
        xr = V_PRE + 4*k_
        e("v_permlane16_swap_b32 v%d, v%d" % (xr, xr+2))
        e("v_permlane16_swap_b32 v%d, v%d" % (xr+1, xr+3))
    e("s_waitcnt vmcnt(0)")
    st.stamp()
    for k_ in range(8):
        for r in range(4): e("v_accvgpr_read_b32 v%d, a%d" % (4*k_+r, A_G+4*k_+r))
    for i in range(4):
        e("s_add_u32 s%d, s%d, %d" % (S_T0, S_XB, i*16*2048))
        for u in range(2):
            k_ = 4*u + i
            gq, xr, o = 4*k_, V_PRE + 4*k_, 32 + 4*k_
            for half in range(2):
                a = res(2*u+half, i); T = 96 + 8*half
                e("v_lshlrev_b32 v%d, 16, v%d\nv_and_b32 v%d, 0xffff0000, v%d\nv_lshlrev_b32 v%d, 16, v%d\nv_and_b32 v%d, 0xffff0000, v%d" % (T, gq+2*half, T+1, gq+2*half, T+2, gq+2*half+1, T+3, gq+2*half+1))
                e("v_lshlrev_b32 v%d, 16, v%d\nv_and_b32 v%d, 0xffff0000, v%d\nv_lshlrev_b32 v%d, 16, v%d\nv_and_b32 v%d, 0xffff0000, v%d" % (T+4, xr+2*half, T+5, xr+2*half, T+6, xr+2*half+1, T+7, xr+2*half+1))
            for half in range(2):
                a = res(2*u+half, i); T = 96 + 8*half
                for h in range(2): e("v_pk_fma_f32 v[%d:%d], v[%d:%d], v[%d:%d], v[%d:%d]" % (a+2*h, a+2*h+1, a+2*h, a+2*h+1, T+2*h, T+2*h+1, T+4+2*h, T+5+2*h))
            for half in range(2):
                a = res(2*u+half, i)
                e("v_cvt_pk_bf16_f32 v%d, v%d, v%d" % (o+2*half, a, a+1))
                e("v_cvt_pk_bf16_f32 v%d, v%d, v%d" % (o+2*half+1, a+2, a+3))
            e("v_permlane16_swap_b32 v%d, v%d" % (o, o+2))
            e("v_permlane16_swap_b32 v%d, v%d" % (o+1, o+3))
            e("buffer_store_dwordx4 v[%d:%d], v%d, s[%d:%d], s%d offen offset:%d" % (o, o+3, V_RM, SRD_OUT, SRD_OUT+3, S_T0, u*64))
    e("%s_fin:" % name)
    if tl:
        e("s_mov_b64 exec, -1")
        tl_end(p, last=True)
    if stamps:
        e("s_waitcnt vmcnt(0)")
        e("s_mov_b64 exec, -1")
        st.stamp(); st.stamp(True)
        st.dump(SRD_WS, V_T0, 2)
    e("%s_done:" % name)
    e("s_endpgm")
    return p
```

```python
import sys
from asmgen import *
from kern import *

IMG = 8448
def k2(name, DW=6, DA=3, BAR=2, stamps=False, slack=6, xnt=True, noact=False, now=False, tl=False, force_far=False, cmap=0, diag=0, exld=' sc1', exst='', PT=0, xlate=0, p=None, st=None, psleep=2, codepf=0, start=None, skew=0, ep2=0, wflag=0, osc='', dg=1):
    one = p is not None
    if not one:
        p = Prog(); st = Stamps(p, stamps)
    else: stamps = st.on
    e = p.e
    SCA = " sc1" if one else ""
    p.lg_slack = slack
    U = 8
    assert BAR < DW <= U - BAR or (now and noact)
    def acc(nt, i): return 16*nt + 4*i
    V_PRE = 192
    R = 128
    V_TID, V_TR0, V_SP, V_DW, V_XA, V_XO, V_T0, V_T1, V_T2, V_T3, V_RM, V_DW2, V_FLAG, V_G8, V_LW, V_LR, V_Z = range(224, 241)
    V_PX = 242
    S_TAG = 100
    def wfrag(nt): return 4*nt
    def afrag(ss, i): return 32 + 16*(ss % U) + 4*i
    S_WAVE = 3
    SRD_W, SRD_WS, SRD_X, SRD_OUT, SRD_A0, SRD_A1 = 8, 12, 16, 20, 56, 96
    S_A, S_W, S_MB, S_T0, S_T1, S_ROLE, S_RT, S_CT, S_CNT, S_KH, S_G, S_PAIR, S_XB, S_EXO, S_AB, S_FG, S_FP, S_FPP = 28, 29, 30, 31, 32, 33, 34, 35, 36, 37, 38, 39, 50, 51, 55, 60, 61, 62
    S_COL, S_EXI, S_FXP, S_XCC, S_NU, S_PT, S_4K = 90, 88, 89, 91, 92, 93, 94
    SRD_EX = 24
    A_PF = 192
    if not one:
        e("s_cmp_ge_u32 s2, 256")
        e("s_cbranch_scc1 %s_done" % name)
        st.stamp(True); st.stamp()
        if tl: tl_start(p)
        e("s_mov_b32 s%d, 1" % S_TAG)
    else:
        st.stamp()
    e("s_load_dwordx2 s[4:5], s[0:1], %d" % KA['wo'])
    e("s_load_dwordx4 s[40:43], s[0:1], %d" % KA['w2'])
    e("s_load_dwordx2 s[44:45], s[0:1], %d" % KA['out'])
    e("s_load_dwordx2 s[6:7], s[0:1], %d" % KA['ws'])
    e("s_load_dwordx2 s[48:49], s[0:1], %d" % KA['x'])
    e("s_getreg_b32 s%d, hwreg(HW_REG_XCC_ID, 0, 4)" % S_XCC)
    if not one:
        e("v_lshrrev_b32 v%d, 6, v0" % V_T0)
        e("v_and_b32 v%d, 63, v0" % V_TID)
        e("v_readfirstlane_b32 s%d, v%d" % (S_WAVE, V_T0))
    else:
        e("v_mov_b32 v%d, v240" % V_TID)
    e("s_bfe_u32 s%d, s2, 0x10002" % S_ROLE)
    e("s_and_b32 s%d, s2, 3" % S_T0)
    e("s_lshr_b32 s%d, s2, 3" % S_T1)
    e("s_lshr_b32 s%d, s2, 7" % S_KH)
    if cmap == 0:
        e("s_lshl_b32 s%d, s%d, 1" % (S_RT, S_T0))
        e("s_and_b32 s%d, s%d, 1" % (S_CT, S_T1))
        e("s_add_u32 s%d, s%d, s%d" % (S_RT, S_RT, S_CT))
        e("s_bfe_u32 s%d, s%d, 0x30001" % (S_CT, S_T1))
    else:
        e("s_lshr_b32 s%d, s%d, 1" % (S_RT, S_T0))
        e("s_lshl_b32 s%d, s%d, 2" % (S_RT, S_RT))
        e("s_and_b32 s%d, s%d, 3" % (S_CT, S_T1))
        e("s_add_u32 s%d, s%d, s%d" % (S_RT, S_RT, S_CT))
        e("s_and_b32 s%d, s%d, 1" % (S_CT, S_T0))
        e("s_lshl_b32 s%d, s%d, 2" % (S_CT, S_CT))
        e("s_bfe_u32 s%d, s%d, 0x20002" % (S_T0, S_T1))
        e("s_add_u32 s%d, s%d, s%d" % (S_CT, S_CT, S_T0))
    e("s_lshl_b32 s%d, s%d, 3" % (S_PAIR, S_RT))
    e("s_add_u32 s%d, s%d, s%d" % (S_PAIR, S_PAIR, S_CT))
    e("s_lshl_b32 s%d, s%d, 1" % (S_PAIR, S_PAIR))
    e("s_add_u32 s%d, s%d, s%d" % (S_PAIR, S_PAIR, S_KH))
    e("v_lshrrev_b32 v%d, 4, v%d" % (V_T0, V_TID))
    e("v_and_b32 v%d, 15, v%d" % (V_T1, V_TID))
    e("v_lshlrev_b32 v%d, 14, v%d" % (V_DW, V_T0))
    e("s_lshl_b32 s%d, s%d, 3" % (S_T0, S_KH))
    e("v_xor_b32 v%d, s%d, v%d" % (V_T2, S_T0, V_T1))
    e("v_lshl_add_u32 v%d, v%d, 4, v%d" % (V_DW, V_T2, V_DW))
    e("v_and_b32 v%d, 1, v%d" % (V_T2, V_T0))
    e("v_lshlrev_b32 v%d, 2, v%d" % (V_T2, V_T2))
    e("v_bfe_u32 v%d, v%d, 2, 2" % (V_T3, V_TID))
    e("v_add_u32 v%d, v%d, v%d" % (V_T2, V_T2, V_T3))
    e("v_mul_u32_u24 v%d, 1056, v%d" % (V_TR0, V_T2))
    e("v_lshrrev_b32 v%d, 1, v%d" % (V_T2, V_T0))
    e("v_lshl_add_u32 v%d, v%d, 8, v%d" % (V_TR0, V_T2, V_TR0))
    e("v_and_b32 v%d, 3, v%d" % (V_T2, V_TID))
    e("v_lshl_add_u32 v%d, v%d, 3, v%d" % (V_TR0, V_T2, V_TR0))
    e("v_add_u32 v%d, %d, v%d" % (V_DW2, 2048-1056, V_DW))
    e("v_lshlrev_b32 v%d, 4, v%d" % (V_XO, V_TID))
    e("v_lshlrev_b32 v%d, 3, v%d" % (V_G8, V_T0))
    e("v_mov_b32 v%d, 0" % V_Z)
    e("v_mov_b32 v%d, 0" % V_FLAG)
    e("v_mov_b32 v%d, 0" % V_PX)
    e("s_waitcnt lgkmcnt(0)")
    if one: e("s_barrier")
    def sel(d, x, y):
        e("s_mov_b32 s%d, 0x%x" % (d, y))
        e("s_cselect_b32 s%d, 0x%x, s%d" % (d, x, d))
    e("s_cmp_eq_u32 s%d, 1" % S_ROLE)
    e("s_cselect_b32 s%d, s4, s40" % SRD_W)
    e("s_cselect_b32 s%d, s5, s41" % (SRD_W+1))
    sel(SRD_W+2, 8 << 20, 7 << 20)
    e("s_mov_b32 s%d, 0x20000" % (SRD_W+3))
    sel(S_NU, 64*2048, 56*2048)
    sel(S_T1, OF_RP, HF_RP)
    sel(S_AB, WS_OF, WS_HF)
    e("s_cselect_b32 s%d, %d, %d" % (S_CNT, 8 - skew, 7 - skew))
    e("s_cselect_b32 s%d, s48, s42" % SRD_X)
    e("s_cselect_b32 s%d, s49, s43" % (SRD_X+1))
    sel(SRD_X+2, 4 << 20, 2048)
    e("s_mov_b32 s%d, 0x20000" % (SRD_X+3))
    e("s_lshl_b32 s%d, s%d, 2" % (S_T0, S_RT))
    e("s_add_u32 s%d, s%d, s%d" % (S_T0, S_T0, S_WAVE))
    e("s_lshl_b32 s%d, s%d, 1" % (S_T0, S_T0))
    e("s_mul_i32 s%d, s%d, s%d" % (S_A, S_T0, S_T1))
    e("s_add_u32 s%d, s%d, s%d" % (S_A, S_A, S_AB))
    e("s_mul_i32 s%d, s%d, s%d" % (S_T0, S_KH, S_NU))
    e("s_add_u32 s%d, s%d, s%d" % (S_A, S_A, S_T0))
    e("s_add_u32 s%d, s6, s%d" % (SRD_A0, S_A))
    e("s_addc_u32 s%d, s7, 0" % (SRD_A0+1))
    e("s_mov_b32 s%d, s%d" % (SRD_A0+2, S_NU))
    e("s_mov_b32 s%d, 0x20000" % (SRD_A0+3))
    e("s_add_u32 s%d, s%d, s%d" % (SRD_A1, SRD_A0, S_T1))
    e("s_addc_u32 s%d, s%d, 0" % (SRD_A1+1, SRD_A0+1))
    e("s_mov_b32 s%d, s%d" % (SRD_A1+2, S_NU))
    e("s_mov_b32 s%d, 0x20000" % (SRD_A1+3))
    e("s_mov_b32 s%d, 0" % S_A)
    e("s_lshl_b32 s%d, s%d, 5" % (S_T0, S_NU))
    e("s_mul_i32 s%d, s%d, s%d" % (S_T1, S_T0, S_KH))
    e("s_add_u32 s%d, s%d, s%d" % (SRD_W, SRD_W, S_T1))
    e("s_addc_u32 s%d, s%d, 0" % (SRD_W+1, SRD_W+1))
    e("s_mov_b32 s%d, s%d" % (SRD_W+2, S_T0))
    e("s_lshl_b32 s%d, s%d, 8" % (S_W, S_CT))
    e("s_lshl_b32 s%d, s%d, 7" % (S_T0, S_KH))
    e("s_add_u32 s%d, s%d, s%d" % (S_COL, S_W, S_T0))
    e("s_lshl_b32 s%d, s%d, 12" % (S_T0, S_WAVE))
    e("s_add_u32 s%d, s%d, s%d" % (S_W, S_W, S_T0))
    e("s_mul_i32 s%d, s%d, %d" % (S_MB, S_WAVE, 2*1056))
    def dma_step(slot):
        b = slot*IMG
        return [["s_add_u32 m0, s%d, %d" % (S_MB, b), "buffer_load_dwordx4 v%d, s[%d:%d], s%d offen lds" % (V_DW, SRD_W, SRD_W+3, S_W)],
                ["buffer_load_dwordx4 v%d, s[%d:%d], s%d offen offset:1056 lds" % (V_DW2, SRD_W, SRD_W+3, S_W)]]
    adv_w = "s_add_u32 s%d, s%d, %d" % (S_W, S_W, 32*2048)
    def a_loads(ss):
        return ["buffer_load_dwordx4 a[%d:%d], v%d, s[%d:%d], s%d offen offset:%d" % (afrag(ss, i), afrag(ss, i)+3, V_XO, SRD_A0 if i < 2 else SRD_A1, (SRD_A0 if i < 2 else SRD_A1)+3, S_A, (i & 1)*1024) + SCA for i in range(4)]
    adv_a = "s_add_u32 s%d, s%d, 2048" % (S_A, S_A)
    def tr_reads(ss, nt):
        return ["ds_read_b64_tr_b16 a[%d:%d], v%d offset:%d" % (wfrag(nt)+2*t, wfrag(nt)+2*t+1, V_TR0, (ss % U)*IMG + nt*32 + t*512) for t in range(2)]
    setup = []
    setup += ["s_mov_b32 s%d, s6" % SRD_WS, "s_mov_b32 s%d, s7" % (SRD_WS+1), "s_mov_b32 s%d, 0x%x" % (SRD_WS+2, WS_SIZE), "s_mov_b32 s%d, 0x20000" % (SRD_WS+3)]
    setup += ["s_mov_b32 s%d, s44" % SRD_OUT, "s_mov_b32 s%d, s45" % (SRD_OUT+1), "s_mov_b32 s%d, 0x400000" % (SRD_OUT+2), "s_mov_b32 s%d, 0x20000" % (SRD_OUT+3)]
    setup += ["s_lshl_b32 s%d, s%d, 15" % (S_G, S_PAIR), "s_lshl_b32 s%d, s%d, 13" % (S_T0, S_WAVE), "s_add_u32 s%d, s%d, s%d" % (S_G, S_G, S_T0), "s_add_u32 s%d, s%d, 0x%x" % (S_G, S_G, WS_G)]
    setup += ["s_lshl_b32 s%d, s%d, 19" % (S_XB, S_RT), "s_lshl_b32 s%d, s%d, 17" % (S_T0, S_WAVE), "s_add_u32 s%d, s%d, s%d" % (S_XB, S_XB, S_T0),
              "s_add_u32 s%d, s%d, s%d" % (S_XB, S_XB, S_COL)]
    if wflag:
        setup += ["s_lshl_b32 s%d, s%d, 2" % (S_FG, S_PAIR), "s_add_u32 s%d, s%d, s%d" % (S_FG, S_FG, S_WAVE)]
    else:
        setup += ["s_mov_b32 s%d, s%d" % (S_FG, S_PAIR)]
    setup += ["s_lshl_b32 s%d, s%d, 7" % (S_FG, S_FG), "s_add_u32 s%d, s%d, 0x%x" % (S_FG, S_FG, WS_F2 + 5*F2_STRIDE),
              "s_lshl_b32 s%d, s2, 7" % S_FP, "s_xor_b32 s%d, s%d, %d" % (S_FPP, S_FP, 128 << 7),
              "s_add_u32 s%d, s%d, 0x%x" % (S_FXP, S_FPP, WS_F2), "s_add_u32 s%d, s%d, 0x%x" % (S_T1, S_FP, WS_F2),
              "s_mul_i32 s%d, s%d, %d" % (S_T0, S_WAVE, F2_STRIDE), "s_add_u32 s%d, s%d, 0x%x" % (S_T0, S_T0, WS_F2 + F2_STRIDE),
              "s_add_u32 s%d, s%d, s%d" % (S_FP, S_FP, S_T0), "s_add_u32 s%d, s%d, s%d" % (S_FPP, S_FPP, S_T0),
              "v_mov_b32 v%d, s%d" % (V_PX+2, S_TAG), "v_mov_b32 v%d, s%d" % (V_PX+3, S_XCC)]
    setup += ["s_mul_i32 s%d, s2, %d" % (S_EXO, EX_STRIDE), "s_xor_b32 s%d, s2, 128" % S_EXI, "s_mul_i32 s%d, s%d, %d" % (S_EXI, S_EXI, EX_STRIDE),
              "s_lshl_b32 s%d, s%d, 13" % (S_T0, S_WAVE), "s_add_u32 s%d, s%d, 0x%x" % (S_T0, S_T0, WS_EX),
              "s_add_u32 s%d, s%d, s%d" % (S_EXO, S_EXO, S_T0), "s_add_u32 s%d, s%d, s%d" % (S_EXI, S_EXI, S_T0),
              "s_add_u32 s%d, s6, s%d" % (SRD_EX, S_EXO), "s_addc_u32 s%d, s7, 0" % (SRD_EX+1), "s_mov_b32 s%d, 8192" % (SRD_EX+2), "s_mov_b32 s%d, 0x20000" % (SRD_EX+3),
              "s_lshl_b32 s%d, s%d, 13" % (S_PT, S_CNT), "s_sub_u32 s%d, %d, s%d" % (S_PT, PT*1024, S_PT), "s_mov_b32 s%d, 4096" % S_4K]
    setup += ["v_lshlrev_b32 v%d, 11, v%d" % (V_RM, V_T1), "v_and_b32 v%d, 1, v%d" % (V_T2, V_T0), "v_lshl_add_u32 v%d, v%d, 5, v%d" % (V_RM, V_T2, V_RM),
              "v_lshrrev_b32 v%d, 1, v%d" % (V_T2, V_T0), "v_lshl_add_u32 v%d, v%d, 4, v%d" % (V_RM, V_T2, V_RM)]
    setup += ["v_mov_b32 v%d, 0" % i for i in range(128)]
    NP = max(DW, DA)
    seqs = []
    for ss in range(NP):
        if ss < DW:
            for grp in dma_step(ss): seqs.append([(t, ("w", ss) if t.startswith("buffer") else None) for t in grp])
            seqs[-1].append((adv_w, None))
        if ss < DA and not one:
            for t in a_loads(ss): seqs.append([(t, None)])
            seqs[-1].append((adv_a, None))
    per = -(-len(setup)//(len(seqs)-1)); ii = 0
    for grp in seqs:
        for t, tg in grp: e(t, tag=tg)
        for t in setup[ii:ii+per]: e(t)
        ii += per
    for t in setup[ii:]: e(t)
    if one and wflag:
        p.waitvm("ost")
        e("s_lshl_b32 s52, s%d, 15" % S_WAVE)
        e("s_add_u32 s53, s101, s52")
        e("s_mov_b64 exec, 1")
        e("buffer_store_dword v%d, v%d, s[%d:%d], s53 offen sc1" % (V_PX+2, V_Z, SRD_WS, SRD_WS+3))
        e("s_mov_b64 exec, 0xffff")
        e("v_lshlrev_b32 v%d, 7, v%d" % (V_T3, V_TID))
        e("s_lshl_b32 s53, s%d, 12" % S_RT)
        e("s_add_u32 s52, s52, s53")
        e("s_lshl_b32 s53, s%d, 11" % S_KH)
        e("s_add_u32 s52, s52, s53")
        e("s_add_u32 s52, s52, 0x%x" % WS_FDW)
        e("s_mov_b32 s53, 0x80000")
        e("%s_fdp:" % name)
        e("buffer_load_dword v%d, v%d, s[%d:%d], s52 offen sc1" % (V_T2, V_T3, SRD_WS, SRD_WS+3))
        e("s_waitcnt vmcnt(0)")
        e("v_cmp_ne_u32 vcc, s%d, v%d" % (S_TAG, V_T2))
        e("s_cbranch_vccz %s_fdq" % name)
        if psleep: e("s_sleep %d" % psleep)
        e("s_sub_u32 s53, s53, 1")
        e("s_cmp_lg_u32 s53, 0")
        e("s_cbranch_scc1 %s_fdp" % name)
        e("%s_fdq:" % name)
        e("s_mov_b64 exec, -1")
        st.stamp()
        for ss in range(DA):
            for t in a_loads(ss): e(t)
            e(adv_a)
        e("s_barrier")
    else:
        if one:
            p.waitvm("ost")
            e("s_barrier")
        e("s_cmp_lg_u32 s%d, 0" % S_WAVE)
        e("s_cbranch_scc1 %s_xpub" % name)
        e("s_mov_b64 exec, 1")
        if one:
            e("buffer_store_dword v%d, v%d, s[%d:%d], s101 offen sc1" % (V_PX+2, V_Z, SRD_WS, SRD_WS+3), tag="optional")
        if not skew: e("buffer_store_dwordx2 v[%d:%d], v%d, s[%d:%d], s%d offen sc1" % (V_PX+2, V_PX+3, V_Z, SRD_WS, SRD_WS+3, S_T1), tag="optional")
        e("s_mov_b64 exec, -1")
        e("%s_xpub:" % name)
        if one:
            p.waitvm(("w", 1))
            e("s_cmp_lg_u32 s%d, 0" % S_WAVE)
            e("s_cbranch_scc1 %s_fdr" % name)
            e("s_mov_b64 exec, 0xffffffff")
            e("v_lshlrev_b32 v%d, 7, v%d" % (V_T3, V_TID))
            e("s_lshl_b32 s52, s%d, 12" % S_RT)
            e("s_add_u32 s52, s52, 0x%x" % WS_FD)
            e("s_mov_b32 s53, 0x80000")
            e("%s_fdp:" % name)
            e("buffer_load_dword v%d, v%d, s[%d:%d], s52 offen sc1" % (V_T2, V_T3, SRD_WS, SRD_WS+3), tag="optional")
            e("s_waitcnt vmcnt(0)", tag=None) if False else p.add(RawWait("s_waitcnt vmcnt(0)"))
            e("v_cmp_ne_u32 vcc, s%d, v%d" % (S_TAG, V_T2))
            e("s_cbranch_vccz %s_fdq" % name)
            if psleep: e("s_sleep %d" % psleep)
            e("s_sub_u32 s53, s53, 1")
            e("s_cmp_lg_u32 s53, 0")
            e("s_cbranch_scc1 %s_fdp" % name)
            e("%s_fdq:" % name)
            e("s_mov_b64 exec, -1")
            e("%s_fdr:" % name)
            e("s_barrier")
            st.stamp()
            for ss in range(DA):
                for t in a_loads(ss): e(t)
                e(adv_a)
    def preload(lab):
        e("s_cmp_eq_u32 s%d, 1" % S_ROLE)
        e("s_cbranch_scc0 %s_preg%s" % (name, lab))
        for i in range(4):
            e("s_add_u32 s%d, s%d, %d" % (S_T0, S_XB, i*16*2048))
            for u in range(2):
                d = V_PRE + 4*(4*u+i)
                e("buffer_load_dwordx4 v[%d:%d], v%d, s[%d:%d], s%d offen offset:%d%s" % (d, d+3, V_RM, SRD_X, SRD_X+3, S_T0, u*64, " nt" if xnt else ""), tag="optional")
        e("s_branch %s_prej%s" % (name, lab))
        e("%s_preg%s:" % (name, lab))
        for nt in range(4):
            e("buffer_load_dwordx2 v[%d:%d], v%d, s[%d:%d], s%d offen offset:%d" % (V_PRE+2*nt, V_PRE+2*nt+1, V_G8, SRD_X, SRD_X+3, S_COL, nt*32), tag="optional")
        e("%s_prej%s:" % (name, lab))
    if not xlate: preload("a")
    if not one:
        if not diag: st.stamp()
        p.waitvm(("w", 0))
        e("s_barrier")
    for nt in range(8):
        for t in tr_reads(0, nt): e(t)
    if codepf & 8: code_srd(p, 40, 44, start)
    if not diag: st.stamp()
    p.loop_begin("g2")
    e("%s_g2:" % name)
    for ss in range(U):
        if ss % BAR == 0:
            p.waitvm(("w", (ss+BAR) % U))
            e("s_barrier")
        if ss == 6 and not skew:
            e("s_cmp_lg_u32 s%d, 1" % S_CNT)
            e("s_cbranch_scc1 %s_nofl" % name)
            e("buffer_load_dword v%d, v%d, s[%d:%d], s%d offen sc1" % (V_FLAG, V_Z, SRD_WS, SRD_WS+3, S_FG), tag="optional")
            e("buffer_load_dwordx2 v[%d:%d], v%d, s[%d:%d], s%d offen sc1" % (V_PX, V_PX+1, V_Z, SRD_WS, SRD_WS+3, S_FXP), tag="optional")
            e("%s_nofl:" % name)
        mf = []
        for nt in range(8):
            for i in range(4):
                a = acc(nt, i)
                mf.append(Ins("v_mfma_f32_16x16x32_bf16 v[%d:%d], a[%d:%d], a[%d:%d], v[%d:%d]" % (a, a+3, wfrag(nt), wfrag(nt)+3, afrag(ss, i), afrag(ss, i)+3, a, a+3)))
        sc = Sched(mf)
        if dg: sc.put(tr_reads(ss, 7)[1], 0)
        for nt in range(8):
            r = tr_reads(ss+1, nt)
            g = sc.put(r[0], min(4*nt+3, 31))
            if not (dg and nt == 7): sc.put(r[1], min(g+1, 31))
        pos = 1
        slot = (ss + DW) % U
        for grp in dma_step(slot):
            if now: continue
            g = sc.put(Ins(grp[-1], tag=("w", slot)), pos)
            for t in grp[:-1]: sc.scalar(t, g-1)
            pos = g + 3
        sc.scalar(adv_w, pos - 2)
        pos = 9
        for t in a_loads(ss + DA):
            if noact: continue
            g = sc.put(t, pos); pos = g + 4
        sc.scalar(adv_a, 30)
        if (codepf & 8) and ss == 3:
            sc.put(Ins("buffer_load_dwordx4 a[%d:%d], v%d, s[40:43], s44 offen" % (A_PF, A_PF+3, V_XO), tag="pf"), 26)
        if PT:
            g = sc.put(Ins("buffer_load_dwordx4 a[%d:%d], v%d, s[%d:%d], s%d offen" % (A_PF, A_PF+3, V_XO, SRD_EX, SRD_EX+3, S_PT), tag="pf"), 26)
            sc.scalar("s_add_u32 s%d, s%d, 1024" % (S_PT, S_PT), g)
        sc.emit(p)
    e("s_sub_u32 s%d, s%d, 1" % (S_CNT, S_CNT))
    e("s_cmp_lg_u32 s%d, 0" % S_CNT)
    e("s_cbranch_scc1 %s_g2" % name)
    p.loop_end()
    if not skew: st.stamp()
    def mfma(nt, w, ss, i):
        a_ = acc(nt, i)
        return Ins("v_mfma_f32_16x16x32_bf16 v[%d:%d], a[%d:%d], a[%d:%d], v[%d:%d]" % (a_, a_+3, w, w+3, afrag(ss, i), afrag(ss, i)+3, a_, a_+3))
    if skew:
        assert (DW, DA, BAR) == (6, 3, 2)
        BL = [((4, 5), j) for j in range(2, 8)] + [((6, 7), j) for j in range(2, 8)] + [((0, 1), j) for j in range(2, 8)] + [((2, 3), j) for j in range(2, 8)]
        def bl_reads(b_):
            pr, j = BL[b_]; base = 8*(b_ % 4)
            return ["ds_read_b64_tr_b16 a[%d:%d], v%d offset:%d" % (base+4*q+2*t, base+4*q+2*t+1, V_TR0, j*IMG + nt*32 + t*512) for q, nt in enumerate(pr) for t in range(2)]
        def bl_mfmas(b_):
            pr, j = BL[b_]; base = 8*(b_ % 4)
            r = [mfma(nt, base+4*q, j, i) for q, nt in enumerate(pr) for i in range(4)]
            for x in r: x.noslack = True
            return r
        def put_dma(sc, slot, pos):
            for grp in dma_step(slot):
                g = sc.put(Ins(grp[-1], tag=("w", slot)), pos)
                for t in grp[:-1]: sc.scalar(t, g-1)
                pos = g + 1
            sc.scalar(adv_w, pos - 1)
            return pos
        def put_a(sc, ss, pos, step=2):
            for t in a_loads(ss):
                g = sc.put(t, pos); pos = g + step
            sc.scalar(adv_a, pos - step)
            return pos
        p.waitvm(("w", 3))
        e("s_barrier")
        sc = Sched([mfma(nt, wfrag(nt), 0, i) for nt in range(8) for i in range(4)])
        if dg: sc.put(tr_reads(0, 7)[1], 0)
        for nt in range(8):
            r = tr_reads(1, nt)
            g = sc.put(r[0], min(4*nt+3, 31))
            if not (dg and nt == 7): sc.put(r[1], min(g+1, 31))
        pos = put_dma(sc, 6, 1); pos = put_dma(sc, 7, pos)
        pos = put_a(sc, 3, 2, 1); pos = put_a(sc, 4, pos, 1); pos = put_a(sc, 5, pos, 1)
        sc.emit(p)
        sc = Sched([mfma(nt, wfrag(nt), 1, i) for nt in range(8) for i in range(4)])
        if dg: sc.put(tr_reads(1, 7)[1], 0)
        pos = put_a(sc, 6, 0, 1); pos = put_a(sc, 7, pos, 1)
        pos = 9
        for t in bl_reads(0): pos = sc.put(t, pos) + 1
        pos = max(pos, 17)
        for t in bl_reads(1): pos = sc.put(t, pos) + 1
        sc.emit(p)
        p.waitvm(("w", 5))
        e("s_barrier")
        sc = Sched(bl_mfmas(0) + bl_mfmas(1))
        pos = 0
        for t in bl_reads(2) + bl_reads(3): pos = sc.put(t, pos) + 2
        sc.emit(p)
        p.waitvm(("w", 7))
        e("s_barrier")
        mf = []
        for b_ in range(2, 24): mf += bl_mfmas(b_)
        sc = Sched(mf)
        G0 = lambda b_: 8*(b_ - 2)
        for b_ in range(2, 22):
            for q, t in enumerate(bl_reads(b_ + 2)): sc.put(t, G0(b_) + 2*q)
        def send(k_, pos):
            a_, d = 64 + 8*k_, 64 + 4*k_
            for t in ["v_cvt_pk_bf16_f32 v%d, v%d, v%d" % (d, a_, a_+1), "v_cvt_pk_bf16_f32 v%d, v%d, v%d" % (d+1, a_+2, a_+3),
                      "v_cvt_pk_bf16_f32 v%d, v%d, v%d" % (d+2, a_+4, a_+5), "v_cvt_pk_bf16_f32 v%d, v%d, v%d" % (d+3, a_+6, a_+7)]:
                pos = sc.put(t, pos) + 1
            return sc.put(Ins("buffer_store_dwordx4 v[%d:%d], v%d, s[%d:%d], %s offen offset:%d sc1" % (d, d+3, V_XO, SRD_EX, SRD_EX+3, "0" if k_ < 4 else "s%d" % S_4K, (k_ & 3)*1024), tag="xst"), pos) + 1
        pos = G0(6) + 3
        for k_ in range(4): pos = send(k_, pos)
        pos = max(pos, G0(12) + 3)
        for k_ in range(4, 8): pos = send(k_, pos)
        sc.put(Ins("buffer_load_dword v%d, v%d, s[%d:%d], s%d offen sc1" % (V_FLAG, V_Z, SRD_WS, SRD_WS+3, S_FG)), G0(21) + 1)
        sc.emit(p)
        st.stamp()
        e("v_mov_b32 v%d, s%d" % (V_T0, S_TAG))
        p.waitvm("xst")
        e("s_mov_b64 exec, 1")
        e("buffer_store_dword v%d, v%d, s[%d:%d], s%d offen sc1" % (V_T0, V_Z, SRD_WS, SRD_WS+3, S_FP))
        e("s_mov_b64 exec, -1")
        e("v_readfirstlane_b32 s52, v%d" % V_FLAG)
        e("s_cmp_eq_u32 s52, s%d" % S_TAG)
        e("s_cselect_b32 s54, s%d, 0" % S_ROLE)
        e("s_cmp_lg_u32 s54, 0")
        e("s_cselect_b32 s55, s%d, 0x7f000000" % S_G)
        if diag: st.stamp()
        e("s_mov_b32 s53, 0x80000")
        e("%s_pp:" % name)
        e("buffer_load_dword v%d, v%d, s[%d:%d], s%d offen sc1" % (V_PX, V_Z, SRD_WS, SRD_WS+3, S_FPP))
        e("s_waitcnt vmcnt(0)")
        e("v_readfirstlane_b32 s52, v%d" % V_PX)
        e("s_cmp_eq_u32 s52, s%d" % S_TAG)
        e("s_cbranch_scc1 %s_pq" % name)
        e("s_sub_u32 s53, s53, 1")
        e("s_cmp_lg_u32 s53, 0")
        e("s_cbranch_scc1 %s_pp" % name)
        e("%s_pq:" % name)
        if diag: st.stamp()
        for k_ in range(8):
            e("s_add_u32 s%d, s%d, %d" % (S_T0, S_EXI, k_*1024))
            e("buffer_load_dwordx4 v[%d:%d], v%d, s[%d:%d], s%d offen sc1" % (96+4*k_, 96+4*k_+3, V_XO, SRD_WS, SRD_WS+3, S_T0))
        for k_ in range(8):
            e("s_add_u32 s%d, s55, %d" % (S_T0, k_*1024))
            e("buffer_load_dwordx4 v[%d:%d], v%d, s[%d:%d], s%d offen sc1" % (64+4*k_, 64+4*k_+3, V_XO, SRD_WS, SRD_WS+3, S_T0))
        if ep2:
            e("s_cmp_eq_u32 s%d, 1" % S_ROLE)
            e("s_cbranch_scc0 %s_wg" % name)
            for k_ in range(8):
                xr = V_PRE + 4*k_
                e("v_permlane16_swap_b32 v%d, v%d" % (xr, xr+2))
                e("v_permlane16_swap_b32 v%d, v%d" % (xr+1, xr+3))
            for j in range(32):
                e("v_lshlrev_b32 v%d, 16, v%d" % (128+2*j, V_PRE+j)); e("v_and_b32 v%d, 0xffff0000, v%d" % (129+2*j, V_PRE+j))
            e("s_branch %s_wj" % name)
            e("%s_wg:" % name)
            for ntl in range(4):
                b = V_PRE + 2*ntl
                e("v_lshlrev_b32 v%d, 16, v%d\nv_and_b32 v%d, 0xffff0000, v%d\nv_lshlrev_b32 v%d, 16, v%d\nv_and_b32 v%d, 0xffff0000, v%d" % (128+4*ntl, b, 129+4*ntl, b, 130+4*ntl, b+1, 131+4*ntl, b+1))
            for ntl in range(4):
                for i in range(4):
                    a_ = acc(ntl, i)
                    for h in range(2): e("v_pk_add_f32 v[%d:%d], v[%d:%d], v[%d:%d]" % (a_+2*h, a_+2*h+1, a_+2*h, a_+2*h+1, 128+4*ntl+2*h, 128+4*ntl+2*h+1))
            e("%s_wj:" % name)
            for j in range(32):
                t_ = V_PRE + 2*(j % 8)
                e("v_lshlrev_b32 v%d, 16, v%d" % (t_, 96+j)); e("v_and_b32 v%d, 0xffff0000, v%d" % (t_+1, 96+j))
                e("v_pk_add_f32 v[%d:%d], v[%d:%d], v[%d:%d]" % (2*j, 2*j+1, 2*j, 2*j+1, t_, t_+1))
        else:
            for j in range(32):
                e("v_lshlrev_b32 v%d, 16, v%d" % (R+2*j, 96+j)); e("v_and_b32 v%d, 0xffff0000, v%d" % (R+2*j+1, 96+j))
                e("v_pk_add_f32 v[%d:%d], v[%d:%d], v[%d:%d]" % (R+2*j, R+2*j+1, R+2*j, R+2*j+1, 2*j, 2*j+1))
        st.stamp()
        def gloads():
            for k_ in range(8):
                e("s_add_u32 s%d, s%d, %d" % (S_T0, S_G, k_*1024))
                e("buffer_load_dwordx4 v[%d:%d], v%d, s[%d:%d], s%d offen sc1" % (64+4*k_, 64+4*k_+3, V_XO, SRD_WS, SRD_WS+3, S_T0), tag="optional")
    else:
        A_G = 160
        e("s_waitcnt vmcnt(0) lgkmcnt(0)")
        if xlate: preload("b")
        e("s_mov_b32 s53, 0x80000")
        e("%s_xp:" % name)
        e("v_readfirstlane_b32 s54, v%d" % V_PX)
        e("s_cmp_eq_u32 s54, s%d" % S_TAG)
        e("s_cbranch_scc1 %s_xq" % name)
        e("s_sleep 1")
        e("buffer_load_dwordx2 v[%d:%d], v%d, s[%d:%d], s%d offen sc1" % (V_PX, V_PX+1, V_Z, SRD_WS, SRD_WS+3, S_FXP))
        e("s_waitcnt vmcnt(0)")
        e("s_sub_u32 s53, s53, 1")
        e("s_cmp_lg_u32 s53, 0")
        e("s_cbranch_scc1 %s_xp" % name)
        e("%s_xq:" % name)
        e("v_readfirstlane_b32 s54, v%d" % (V_PX+1))
        if force_far: e("s_mov_b32 s54, 99")
        e("v_mov_b32 v%d, s%d" % (V_T0, S_TAG))
        e("s_cmp_eq_u32 s54, s%d" % S_XCC)
        e("s_cbranch_scc0 %s_far" % name)
        for far in range(2):
            if far: e("%s_far:" % name)
            for k_ in range(8):
                a_, d = 64 + 8*k_, 64 + 4*k_
                e("v_cvt_pk_bf16_f32 v%d, v%d, v%d" % (d, a_, a_+1)); e("v_cvt_pk_bf16_f32 v%d, v%d, v%d" % (d+1, a_+2, a_+3))
                e("v_cvt_pk_bf16_f32 v%d, v%d, v%d" % (d+2, a_+4, a_+5)); e("v_cvt_pk_bf16_f32 v%d, v%d, v%d" % (d+3, a_+6, a_+7))
                e("buffer_store_dwordx4 v[%d:%d], v%d, s[%d:%d], %s offen offset:%d%s" % (d, d+3, V_XO, SRD_EX, SRD_EX+3, "0" if k_ < 4 else "s%d" % S_4K, (k_ & 3)*1024, " sc1" if far else exst))
            e("s_waitcnt vmcnt(0)")
            if diag and far == 0: st.stamp()
            if diag and far == 1:
                st.n -= 1; st.stamp()
            e("s_mov_b64 exec, 1")
            e("buffer_store_dword v%d, v%d, s[%d:%d], s%d offen%s" % (V_T0, V_Z, SRD_WS, SRD_WS+3, S_FP, " sc1" if far else ""), tag="optional")
            e("s_mov_b64 exec, -1")
            if not far: e("s_branch %s_sent" % name)
        e("%s_sent:" % name)
        if not diag and not one: st.stamp()
        e("s_mov_b32 s54, 0")
        e("s_cmp_eq_u32 s%d, 1" % S_ROLE)
        e("s_cbranch_scc0 %s_nog" % name)
        e("v_readfirstlane_b32 s52, v%d" % V_FLAG)
        e("s_cmp_eq_u32 s52, s%d" % S_TAG)
        e("s_cbranch_scc0 %s_nog" % name)
        e("s_mov_b32 s54, 1")
        def gloads():
            for k_ in range(8):
                e("s_add_u32 s%d, s%d, %d" % (S_T0, S_G, k_*1024))
                e("buffer_load_dwordx4 a[%d:%d], v%d, s[%d:%d], s%d offen sc1" % (A_G+4*k_, A_G+4*k_+3, V_XO, SRD_WS, SRD_WS+3, S_T0), tag="optional")
        gloads()
        e("%s_nog:" % name)
        e("s_mov_b32 s53, 0x80000")
        e("%s_pp:" % name)
        e("buffer_load_dword v%d, v%d, s[%d:%d], s%d offen sc1" % (V_PX, V_Z, SRD_WS, SRD_WS+3, S_FPP))
        e("s_waitcnt vmcnt(0)")
        e("v_readfirstlane_b32 s52, v%d" % V_PX)
        e("s_cmp_eq_u32 s52, s%d" % S_TAG)
        e("s_cbranch_scc1 %s_pq" % name)
        e("s_sub_u32 s53, s53, 1")
        e("s_cmp_lg_u32 s53, 0")
        e("s_cbranch_scc1 %s_pp" % name)
        e("%s_pq:" % name)
        if diag: st.stamp()
        for k_ in range(8):
            e("s_add_u32 s%d, s%d, %d" % (S_T0, S_EXI, k_*1024))
            e("buffer_load_dwordx4 v[%d:%d], v%d, s[%d:%d], s%d offen%s" % (96+4*k_, 96+4*k_+3, V_XO, SRD_WS, SRD_WS+3, S_T0, exld))
        if diag:
            e("s_waitcnt vmcnt(0)")
            st.stamp()
        if ep2:
            e("s_cmp_eq_u32 s%d, 1" % S_ROLE)
            e("s_cbranch_scc0 %s_wg" % name)
            for k_ in range(8):
                xr = V_PRE + 4*k_
                e("v_permlane16_swap_b32 v%d, v%d" % (xr, xr+2))
                e("v_permlane16_swap_b32 v%d, v%d" % (xr+1, xr+3))
            for j in range(32):
                e("v_lshlrev_b32 v%d, 16, v%d" % (128+2*j, V_PRE+j)); e("v_and_b32 v%d, 0xffff0000, v%d" % (129+2*j, V_PRE+j))
            e("s_branch %s_wj" % name)
            e("%s_wg:" % name)
            for ntl in range(4):
                b = V_PRE + 2*ntl
                e("v_lshlrev_b32 v%d, 16, v%d\nv_and_b32 v%d, 0xffff0000, v%d\nv_lshlrev_b32 v%d, 16, v%d\nv_and_b32 v%d, 0xffff0000, v%d" % (128+4*ntl, b, 129+4*ntl, b, 130+4*ntl, b+1, 131+4*ntl, b+1))
            for ntl in range(4):
                for i in range(4):
                    a_ = acc(ntl, i)
                    for h in range(2): e("v_pk_add_f32 v[%d:%d], v[%d:%d], v[%d:%d]" % (a_+2*h, a_+2*h+1, a_+2*h, a_+2*h+1, 128+4*ntl+2*h, 128+4*ntl+2*h+1))
            e("%s_wj:" % name)
            for j in range(32):
                t_ = V_PRE + 2*(j % 8)
                e("v_lshlrev_b32 v%d, 16, v%d" % (t_, 96+j)); e("v_and_b32 v%d, 0xffff0000, v%d" % (t_+1, 96+j))
                e("v_pk_add_f32 v[%d:%d], v[%d:%d], v[%d:%d]" % (2*j, 2*j+1, 2*j, 2*j+1, t_, t_+1))
        else:
            for j in range(32):
                e("v_lshlrev_b32 v%d, 16, v%d" % (R+2*j, 96+j)); e("v_and_b32 v%d, 0xffff0000, v%d" % (R+2*j+1, 96+j))
                e("v_pk_add_f32 v[%d:%d], v[%d:%d], v[%d:%d]" % (R+2*j, R+2*j+1, R+2*j, R+2*j+1, 2*j, 2*j+1))
        st.stamp()
    def res(ntl, i): return (0 if ep2 else R) + 16*ntl + 4*i
    e("s_cmp_eq_u32 s%d, 1" % S_ROLE)
    e("s_cbranch_scc1 %s_epis" % name)
    if skew and not ep2: e("s_waitcnt vmcnt(0)")
    LOG2E = f2u(1.4426950408889634)
    e("s_mov_b32 s52, 0x%x" % (LOG2E ^ 0x80000000))
    for ntl in range(4 if not ep2 else 0):
        b = V_PRE + 2*ntl
        e("v_lshlrev_b32 v%d, 16, v%d\nv_and_b32 v%d, 0xffff0000, v%d\nv_lshlrev_b32 v%d, 16, v%d\nv_and_b32 v%d, 0xffff0000, v%d" % (64+4*ntl, b, 65+4*ntl, b, 66+4*ntl, b+1, 67+4*ntl, b+1))
    for u in range(2):
        for i in range(4):
            d = (96 if ep2 else 0) + 4*(4*u+i)
            T = (V_PRE + 8*(i & 1)) if ep2 else 96
            tiles = [res(2*u, i), res(2*u+1, i)]
            for half in range(2 if not ep2 else 0):
                a = tiles[half]; ntl = 2*u + half
                for h in range(2): e("v_pk_add_f32 v[%d:%d], v[%d:%d], v[%d:%d]" % (a+2*h, a+2*h+1, a+2*h, a+2*h+1, 64+4*ntl+2*h, 64+4*ntl+2*h+1))
            for half in range(2):
                for r in range(4): e("v_mul_f32 v%d, s52, v%d" % (T+4*half+r, tiles[half]+r))
            for q in range(8): e("v_exp_f32 v%d, v%d" % (T+q, T+q))
            for q in range(8): e("v_add_f32 v%d, 1.0, v%d" % (T+q, T+q))
            for q in range(8): e("v_rcp_f32 v%d, v%d" % (T+q, T+q))
            for half in range(2):
                a = tiles[half]
                for h in range(2): e("v_pk_mul_f32 v[%d:%d], v[%d:%d], v[%d:%d]" % (a+2*h, a+2*h+1, a+2*h, a+2*h+1, T+4*half+2*h, T+4*half+2*h+1))
            for half in range(2):
                a = tiles[half]
                e("v_cvt_pk_bf16_f32 v%d, v%d, v%d" % (d+2*half, a, a+1))
                e("v_cvt_pk_bf16_f32 v%d, v%d, v%d" % (d+2*half+1, a+2, a+3))
            e("s_add_u32 s%d, s%d, %d" % (S_T0, S_G, (4*u+i)*1024))
            e("buffer_store_dwordx4 v[%d:%d], v%d, s[%d:%d], s%d offen sc1" % (d, d+3, V_XO, SRD_WS, SRD_WS+3, S_T0))
    if not one:
        st.stamp()
        st.n -= 1
    e("s_waitcnt vmcnt(0)")
    if not wflag:
        e("s_barrier")
        e("s_cmp_lg_u32 s%d, 0" % S_WAVE)
        e("s_cbranch_scc1 %s_fin" % name)
    e("s_mov_b64 exec, 1")
    e("v_mov_b32 v%d, s%d" % (V_T0, S_TAG))
    e("buffer_store_dword v%d, v%d, s[%d:%d], s%d offen sc1" % (V_T0, V_Z, SRD_WS, SRD_WS+3, S_FG))
    e("s_waitcnt vmcnt(0)")
    e("s_branch %s_fin" % name)
    e("%s_epis:" % name)
    e("s_cmp_lg_u32 s54, 0")
    e("s_cbranch_scc1 %s_haveg" % name)
    e("s_mov_b32 s53, 0x80000")
    e("%s_poll:" % name)
    e("buffer_load_dword v%d, v%d, s[%d:%d], s%d offen sc1" % (V_FLAG, V_Z, SRD_WS, SRD_WS+3, S_FG))
    e("s_waitcnt vmcnt(0)")
    e("v_readfirstlane_b32 s54, v%d" % V_FLAG)
    e("s_cmp_eq_u32 s54, s%d" % S_TAG)
    e("s_cbranch_scc1 %s_polled" % name)
    e("s_sleep 1")
    e("s_sub_u32 s53, s53, 1")
    e("s_cmp_lg_u32 s53, 0")
    e("s_cbranch_scc1 %s_poll" % name)
    e("%s_polled:" % name)
    gloads()
    e("%s_haveg:" % name)
    for k_ in range(8 if not ep2 else 0):
        xr = V_PRE + 4*k_
        e("v_permlane16_swap_b32 v%d, v%d" % (xr, xr+2))
        e("v_permlane16_swap_b32 v%d, v%d" % (xr+1, xr+3))
    e("s_waitcnt vmcnt(0)")
    if not one: st.stamp()
    if not skew:
        for k_ in range(8):
            for r in range(4): e("v_accvgpr_read_b32 v%d, a%d" % (4*k_+r, A_G+4*k_+r))
    for i in range(4):
        e("s_add_u32 s%d, s%d, %d" % (S_T0, S_XB, i*16*2048))
        for u in range(2):
            k_ = 4*u + i
            gq, xr, o = (64 if skew else 0) + 4*k_, V_PRE + 4*k_, (96 if ep2 else 32) + 4*k_
            TB = (V_PRE + 16*(u & 1)) if ep2 else 96
            for half in range(2):
                T = TB + 8*half
                e("v_lshlrev_b32 v%d, 16, v%d\nv_and_b32 v%d, 0xffff0000, v%d\nv_lshlrev_b32 v%d, 16, v%d\nv_and_b32 v%d, 0xffff0000, v%d" % (T, gq+2*half, T+1, gq+2*half, T+2, gq+2*half+1, T+3, gq+2*half+1))
                if not ep2:
                    e("v_lshlrev_b32 v%d, 16, v%d\nv_and_b32 v%d, 0xffff0000, v%d\nv_lshlrev_b32 v%d, 16, v%d\nv_and_b32 v%d, 0xffff0000, v%d" % (T+4, xr+2*half, T+5, xr+2*half, T+6, xr+2*half+1, T+7, xr+2*half+1))
            for half in range(2):
                a = res(2*u+half, i); T = TB + 8*half
                X = (128 + 8*k_ + 4*half) if ep2 else T + 4
                for h in range(2): e("v_pk_fma_f32 v[%d:%d], v[%d:%d], v[%d:%d], v[%d:%d]" % (a+2*h, a+2*h+1, a+2*h, a+2*h+1, T+2*h, T+2*h+1, X+2*h, X+1+2*h))
            for half in range(2):
                a = res(2*u+half, i)
                e("v_cvt_pk_bf16_f32 v%d, v%d, v%d" % (o+2*half, a, a+1))
                e("v_cvt_pk_bf16_f32 v%d, v%d, v%d" % (o+2*half+1, a+2, a+3))
            e("v_permlane16_swap_b32 v%d, v%d" % (o, o+2))
            e("v_permlane16_swap_b32 v%d, v%d" % (o+1, o+3))
            e("buffer_store_dwordx4 v[%d:%d], v%d, s[%d:%d], s%d offen offset:%d%s" % (o, o+3, V_RM, SRD_OUT, SRD_OUT+3, S_T0, u*64, osc))
    e("%s_fin:" % name)
    if tl:
        e("s_mov_b64 exec, -1")
        tl_end(p, last=True)
    if stamps:
        e("s_waitcnt vmcnt(0)")
        e("s_mov_b64 exec, -1")
        st.stamp(); st.stamp(True)
        st.dump(SRD_WS, V_T0, 2)
    if not one:
        e("%s_done:" % name)
        e("s_endpgm")
    return p
```

```python
import sys, math
from asmgen import *

WS_XN = 0
XN_RG = 131072 + 8192
OF_RP = 262144 + 8192
HF_RP = 229376 + 8192
WS_KP = 5 << 20
WS_VP = (5 << 20) + (512 << 10)
WS_OF = 8 << 20
WS_HF = 25 << 20
WS_G  = 40 << 20
WS_WO = 64 << 20
WS_W2 = 80 << 20
WO_CT = 128*8192 + 8192
W2_CT = 112*8192 + 8192
WS_FLAG = 47 << 20
WS_FD = (47 << 20) + (32 << 10)
WS_F2 = (47 << 20) + (64 << 10)
F2_STRIDE = 32 << 10
WS_FDW = 46 << 20
WS_EX = 96 << 20
EX_STRIDE = 32768 + 1024
WS_DBG = 48 << 20
WS_SIZE = 256 << 20
KA = dict(x=0, k=8, v=16, wq=24, wo=32, bx=40, w1=48, b1=56, w2=64, b2=72, out=80, dbg=88, ws=96)
CSCALE = math.log2(math.e) / math.sqrt(128.0)

def f2u(x):
    import struct
    return struct.unpack('<I', struct.pack('<f', x))[0]

def srd(p, d, base, nbytes, add=0):
    if add:
        p.e("s_add_u32 s%d, s%d, 0x%x" % (d, base, add))
        p.e("s_addc_u32 s%d, s%d, 0" % (d+1, base+1))
    else:
        p.e("s_mov_b32 s%d, s%d" % (d, base))
        p.e("s_mov_b32 s%d, s%d" % (d+1, base+1))
    p.e("s_mov_b32 s%d, 0x%x" % (d+2, nbytes))
    p.e("s_mov_b32 s%d, 0x20000" % (d+3))

def tl_start(p, sreg=98):
    p.e("s_memrealtime s[%d:%d]" % (sreg, sreg+1))
    p.e("s_waitcnt lgkmcnt(0)")
def tl_end(p, last=False, sreg=98, vt=250):
    e = p.e
    lab = "tlskip_%d" % (id(p) % 100000 + len(p.stack[-1]))
    e("s_waitcnt vmcnt(0) lgkmcnt(0)")
    e("s_lshr_b32 s70, s2, 5\ns_and_b32 s71, s2, 7\ns_cmp_eq_u32 s70, s71")
    e("s_cbranch_scc0 %s" % lab)
    e("s_cmp_eq_u32 s3, 0")
    e("s_cbranch_scc0 %s" % lab)
    e("s_load_dwordx2 s[72:73], s[0:1], %d" % KA['dbg'])
    e("s_memrealtime s[70:71]")
    e("s_waitcnt lgkmcnt(0)")
    e("s_mov_b32 s76, s72\ns_mov_b32 s77, s73\ns_mov_b32 s78, 256\ns_mov_b32 s79, 0x20000")
    e("s_mov_b64 exec, 1")
    e("v_mov_b32 v%d, 0\nv_mov_b32 v%d, s70\ns_not_b32 s71, s%d\nv_mov_b32 v%d, s71" % (vt, vt+1, sreg, vt+2))
    e("buffer_atomic_umax v%d, v%d, s[76:79], 0 offen sc1" % (vt+1, vt))
    e("buffer_atomic_umax v%d, v%d, s[76:79], 0 offen offset:4 sc1" % (vt+2, vt))
    if last:
        e("s_sub_u32 s72, s72, 1024\ns_subb_u32 s73, s73, 0")
        e("s_mov_b32 s76, s72\ns_mov_b32 s77, s73\ns_mov_b32 s78, 2048\ns_mov_b32 s79, 0x20000")
        e("buffer_load_dwordx2 v[%d:%d], v%d, s[76:79], 0 offen sc1" % (vt+2, vt+3, vt))
        e("s_waitcnt vmcnt(0)")
        e("buffer_store_dwordx2 v[%d:%d], v%d, s[76:79], 0 offen offset:1032 sc1" % (vt+2, vt+3, vt))
        e("buffer_load_dwordx2 v[%d:%d], v%d, s[76:79], 0 offen offset:512 sc1" % (vt+2, vt+3, vt))
        e("s_waitcnt vmcnt(0)")
        e("buffer_store_dwordx2 v[%d:%d], v%d, s[76:79], 0 offen offset:1040 sc1" % (vt+2, vt+3, vt))
    e("s_waitcnt vmcnt(0)")
    e("%s:" % lab)

_cpf = [0]
def code_srd(p, d, so, start, wave=3):
    _cpf[0] += 1
    lab = "%s_pc%d" % (start, _cpf[0])
    e = p.e
    e("s_getpc_b64 s[%d:%d]" % (d, d+1))
    e("%s:" % lab)
    e("s_sub_u32 s%d, s%d, %s-%s" % (d, d, lab, start))
    e("s_subb_u32 s%d, s%d, 0" % (d+1, d+1))
    e("s_mov_b32 s%d, code_end_label-%s" % (d+2, start))
    e("s_mov_b32 s%d, 0x20000" % (d+3))
    e("s_lshr_b32 s%d, s2, 3\ns_lshl_b32 s%d, s%d, 2\ns_add_u32 s%d, s%d, s%d\ns_lshl_b32 s%d, s%d, 10" % (so, so, so, so, so, wave, so, so))

class Stamps:
    def __init__(self, p, on): self.p = p; self.on = on; self.n = 0
    def stamp(self, real=False):
        if not self.on: return
        r = 64 + 2*self.n; self.n += 1
        self.p.e("%s s[%d:%d]" % ("s_memrealtime" if real else "s_memtime", r, r+1))
        self.p.e("s_waitcnt lgkmcnt(0)")
    def dump(self, srd_ws, vtmp, kidx):
        if not self.on: return
        e = self.p.e
        e("s_mov_b64 exec, 1")
        e("s_lshl_b32 s62, s2, 9")
        e("s_lshl_b32 s63, s3, 6")
        e("s_add_u32 s62, s62, s63")
        e("s_add_u32 s62, s62, 0x%x" % (WS_DBG + kidx*(1 << 20)))
        e("v_mov_b32 v%d, 0" % vtmp)
        for i in range(self.n):
            e("v_mov_b32 v%d, s%d" % (vtmp+1, 64+2*i))
            e("buffer_store_dword v%d, v%d, s[%d:%d], s62 offen offset:%d" % (vtmp+1, vtmp, srd_ws, srd_ws+3, 4*i))
        e("s_waitcnt vmcnt(0)")

def k0(name, prefetch=True, stamps=False, codepf=None, tl=False, sleep=0):
    p = Prog(); e = p.e
    st = Stamps(p, stamps)
    e("s_cmp_ge_u32 s2, 256")
    e("s_cbranch_scc1 %s_done" % name)
    st.stamp(True)
    if tl: tl_start(p)
    e("s_load_dwordx2 s[4:5], s[0:1], %d" % KA['x'])
    e("s_load_dwordx2 s[6:7], s[0:1], %d" % KA['ws'])
    e("s_load_dwordx4 s[24:27], s[0:1], %d" % KA['k'])
    e("s_load_dwordx2 s[28:29], s[0:1], %d" % KA['wq'])
    e("s_load_dwordx2 s[30:31], s[0:1], %d" % KA['w1'])
    e("v_and_b32 v1, 63, v0")
    e("v_lshrrev_b32 v2, 6, v0")
    e("v_and_b32 v3, 15, v1")
    e("v_lshrrev_b32 v4, 4, v1")
    e("v_readfirstlane_b32 s3, v2")
    def pf():
        if not prefetch: return
        srd(p, 32, 28, 8 << 20)
        srd(p, 36, 30, 7 << 20)
        e("s_and_b32 s40, s2, 7\ns_lshr_b32 s41, s2, 3")
        e("s_lshl_b32 s41, s41, 5\ns_lshl_b32 s42, s3, 2\ns_add_u32 s41, s41, s42")
        e("s_lshl_b32 s42, s41, 13\ns_lshl_b32 s43, s40, 10\ns_add_u32 s42, s42, s43")
        e("s_mul_i32 s43, s41, 7168\ns_mul_i32 s44, s40, 896\ns_add_u32 s43, s43, s44")
        e("v_lshlrev_b32 v88, 4, v1")
        e("v_min_u32 v89, 55, v1\nv_lshlrev_b32 v89, 4, v89")
        if codepf:
            lab = "%s_pc%d" % (name, len(p.items))
            e("s_getpc_b64 s[44:45]")
            e("%s:" % lab)
            e("s_add_u32 s44, s44, %s-%s" % (codepf[0], lab))
            e("s_addc_u32 s45, s45, 0")
            e("s_mov_b32 s46, %s-%s" % (codepf[1], codepf[0]))
            e("s_mov_b32 s47, 0x20000")
            e("s_lshl_b32 s48, s41, 6")
            e("v_lshlrev_b32 v90, 2, v1")
            e("buffer_load_dword v91, v90, s[44:47], s48 offen nt", tag="pf")
        for r in range(4):
            e("buffer_load_dwordx4 v[84:87], v88, s[32:35], s42 offen nt", tag="pf")
            e("buffer_load_dwordx4 v[84:87], v89, s[36:39], s43 offen nt", tag="pf")
            if r < 3: e("s_add_u32 s42, s42, 8192\ns_add_u32 s43, s43, 7168")
    e("s_cmp_ge_u32 s2, 128")
    e("s_cbranch_scc1 %s_kv" % name)
    e("s_waitcnt lgkmcnt(0)")
    srd(p, 8, 4, 4 << 20)
    srd(p, 12, 6, 32*XN_RG, WS_XN)
    e("s_lshl_b32 s16, s2, 15")
    e("s_lshl_b32 s17, s3, 8")
    e("s_add_u32 s16, s16, s17")
    e("v_lshlrev_b32 v5, 11, v3")
    e("v_lshl_add_u32 v5, v4, 3, v5")
    for q in range(4):
        e("buffer_load_dwordx2 v[%d:%d], v5, s[8:11], s16 offen offset:%d nt" % (16+4*q, 17+4*q, q*64))
        e("buffer_load_dwordx2 v[%d:%d], v5, s[8:11], s16 offen offset:%d nt" % (18+4*q, 19+4*q, q*64+32))
    pf()
    e("v_mul_u32_u24 v6, 48, v3")
    e("s_lshl_b32 s18, s3, 2")
    e("v_add_u32 v7, s18, v6")
    for r in range(16):
        e("v_lshlrev_b32 v%d, 16, v%d" % (32+2*r, 16+r))
        e("v_and_b32 v%d, 0xffff0000, v%d" % (33+2*r, 16+r))
    def reduce_all(src, lds_off):
        e("v_mov_b32 v9, v%d" % src)
        e("v_permlane32_swap_b32 v%d, v9" % src)
        e("v_add_f32 v%d, v%d, v9" % (src, src))
        e("v_mov_b32 v9, v%d" % src)
        e("v_permlane16_swap_b32 v%d, v9" % src)
        e("v_add_f32 v%d, v%d, v9" % (src, src))
        e("ds_write_b32 v7, v%d offset:%d" % (src, lds_off))
        e("s_waitcnt lgkmcnt(0)")
        e("s_barrier")
        e("ds_read_b128 v[64:67], v6 offset:%d" % lds_off)
        e("ds_read_b128 v[68:71], v6 offset:%d" % (lds_off+16))
        e("v_add_f32 v64, v64, v65\nv_add_f32 v66, v66, v67\nv_add_f32 v68, v68, v69\nv_add_f32 v70, v70, v71")
        e("v_add_f32 v64, v64, v66\nv_add_f32 v68, v68, v70\nv_add_f32 v8, v64, v68")
    for i in range(4):
        e("v_add_f32 v%d, v%d, v%d" % (72+i, 32+i, 36+i))
    for r in range(8, 32):
        e("v_add_f32 v%d, v%d, v%d" % (72+(r % 4), 72+(r % 4), 32+r))
    e("v_add_f32 v72, v72, v73\nv_add_f32 v74, v74, v75\nv_add_f32 v72, v72, v74")
    reduce_all(72, 0)
    e("v_mul_f32 v10, 0x%x, v8" % f2u(1.0/1024))
    for r in range(32):
        e("v_sub_f32 v%d, v%d, v10" % (80+(r % 4), 32+r))
        if r < 4: e("v_mul_f32 v%d, v%d, v%d" % (72+r, 80+(r % 4), 80+(r % 4)))
        else: e("v_fmac_f32 v%d, v%d, v%d" % (72+(r % 4), 80+(r % 4), 80+(r % 4)))
    e("v_add_f32 v72, v72, v73\nv_add_f32 v74, v74, v75\nv_add_f32 v72, v72, v74")
    reduce_all(72, 1024)
    e("v_mul_f32 v11, 0x%x, v8" % f2u(1.0/1024))
    e("v_cvt_pk_bf16_f32 v12, v10, v11")
    e("v_and_b32 v11, 0xffff0000, v12")
    e("v_lshlrev_b32 v10, 16, v12")
    e("v_add_f32 v11, 0x%x, v11" % f2u(1e-5))
    e("v_cvt_pk_bf16_f32 v12, v11, v11")
    e("v_and_b32 v11, 0xffff0000, v12")
    e("v_sqrt_f32 v11, v11")
    e("v_cvt_pk_bf16_f32 v12, v11, v11")
    e("v_and_b32 v11, 0xffff0000, v12")
    e("v_rcp_f32 v13, v11")
    for r in range(16):
        a, b = 32+2*r, 33+2*r
        e("v_sub_f32 v%d, v%d, v10" % (a, a))
        e("v_sub_f32 v%d, v%d, v10" % (b, b))
        e("v_cvt_pk_bf16_f32 v%d, v%d, v%d" % (16+r, a, b))
        e("v_lshlrev_b32 v%d, 16, v%d" % (a, 16+r))
        e("v_and_b32 v%d, 0xffff0000, v%d" % (b, 16+r))
        e("v_mul_f32 v80, v%d, v13" % a)
        e("v_mul_f32 v81, v%d, v13" % b)
        e("v_fma_f32 v%d, -v80, v11, v%d" % (a, a))
        e("v_fma_f32 v%d, -v81, v11, v%d" % (b, b))
        e("v_fmac_f32 v80, v%d, v13" % a)
        e("v_fmac_f32 v81, v%d, v13" % b)
        e("v_cvt_pk_bf16_f32 v%d, v80, v81" % (16+r))
    e("s_lshr_b32 s16, s2, 2\ns_mul_i32 s16, s16, %d" % XN_RG)
    e("s_and_b32 s17, s2, 3\ns_lshl_b32 s17, s17, 10")
    e("s_add_u32 s16, s16, s17")
    e("s_lshl_b32 s17, s3, 14")
    e("s_add_u32 s16, s16, s17")
    e("v_lshlrev_b32 v5, 4, v1")
    for q in range(4):
        e("s_add_u32 s17, s16, %d" % (q*4096))
        e("buffer_store_dwordx4 v[%d:%d], v5, s[12:15], s17 offen" % (16+4*q, 19+4*q))
    def fin():
        for _ in range(sleep): e("s_sleep 64")
        if tl: tl_end(p, vt=90)
        if stamps:
            e("s_waitcnt vmcnt(0)")
            e("s_memrealtime s[66:67]")
            e("s_waitcnt lgkmcnt(0)")
            srd(p, 48, 6, WS_SIZE)
            n0 = st.n; st.n = 2
            st.dump(48, 90, 0)
            st.n = n0
    fin()
    e("s_endpgm")
    e("%s_kv:" % name)
    e("s_waitcnt lgkmcnt(0)")
    e("s_sub_u32 s16, s2, 128")
    e("s_lshl_b32 s16, s16, 3")
    e("s_add_u32 s16, s16, s3")
    e("s_and_b32 s17, s16, 511")
    e("s_lshr_b32 s18, s17, 7")
    e("s_lshr_b32 s19, s17, 3\ns_and_b32 s19, s19, 15")
    e("s_lshl_b32 s20, s18, 19")
    e("s_lshl_b32 s21, s19, 13")
    e("s_add_u32 s20, s20, s21")
    e("s_add_u32 s20, s20, %d" % (1536*256))
    e("s_lshl_b32 s22, s17, 10")
    e("v_lshlrev_b32 v5, 4, v1")
    e("s_cmp_ge_u32 s16, 512")
    e("s_cbranch_scc1 %s_v" % name)
    srd(p, 8, 24, 2 << 20)
    srd(p, 12, 6, 512 << 10, WS_KP)
    e("s_lshr_b32 s21, s17, 2\ns_and_b32 s21, s21, 1\ns_lshl_b32 s21, s21, 12")
    e("s_add_u32 s20, s20, s21")
    e("s_and_b32 s21, s17, 3\ns_lshl_b32 s21, s21, 6")
    e("s_add_u32 s20, s20, s21")
    e("v_lshlrev_b32 v6, 8, v3")
    e("v_lshl_add_u32 v6, v4, 3, v6")
    e("buffer_load_dwordx2 v[16:17], v6, s[8:11], s20 offen nt")
    e("buffer_load_dwordx2 v[18:19], v6, s[8:11], s20 offen offset:32 nt")
    pf()
    e("s_mov_b32 s23, 0x%x" % f2u(CSCALE))
    for r in range(4):
        e("v_lshlrev_b32 v20, 16, v%d" % (16+r))
        e("v_and_b32 v21, 0xffff0000, v%d" % (16+r))
        e("v_mul_f32 v20, s23, v20")
        e("v_mul_f32 v21, s23, v21")
        e("v_cvt_pk_bf16_f32 v%d, v20, v21" % (16+r))
    e("buffer_store_dwordx4 v[16:19], v5, s[12:15], s22 offen")
    fin()
    e("s_endpgm")
    e("%s_v:" % name)
    srd(p, 8, 26, 2 << 20)
    srd(p, 12, 6, 512 << 10, WS_VP)
    e("s_and_b32 s21, s17, 7\ns_lshl_b32 s21, s21, 5")
    e("s_add_u32 s20, s20, s21")
    e("s_add_u32 s21, s20, 4096")
    e("v_lshlrev_b32 v6, 1, v3")
    e("v_lshl_add_u32 v6, v4, 10, v6")
    for j in range(4):
        e("buffer_load_ushort v%d, v6, s[8:11], s20 offen offset:%d nt" % (24+j, j*256))
    for j in range(4):
        e("buffer_load_ushort v%d, v6, s[8:11], s21 offen offset:%d nt" % (28+j, j*256))
    pf()
    for r in range(4):
        e("v_lshl_or_b32 v%d, v%d, 16, v%d" % (16+r, 25+2*r, 24+2*r))
    e("buffer_store_dwordx4 v[16:19], v5, s[12:15], s22 offen")
    fin()
    e("%s_done:" % name)
    e("s_endpgm")
    return p

def assemble(kernels, launches, header=""):
    out = []
    if header: out.append(header.rstrip("\n"))
    for (n, g, b, l) in launches:
        out.append("; @launch kernel=%s grid=(%d,%d,%d) block=(%d,%d,%d) lds=%d" % (n, g[0], g[1], g[2], b[0], b[1], b[2], l))
    out.append('.amdgcn_target "amdgcn-amd-amdhsa--gfx950"')
    out.append(".text")
    for (n, prog, v, s, a) in kernels:
        out += [".globl %s" % n, ".p2align 8", ".type %s,@function" % n, "%s:" % n]
        out += finish(prog)
    out.append("code_end_label:")
    out.append("    s_endpgm")
    out.append('.section .rodata,"a"')
    for (n, prog, v, s, a) in kernels:
        out += [".p2align 6", ".amdhsa_kernel %s" % n,
                "  .amdhsa_next_free_vgpr %d" % v, "  .amdhsa_next_free_sgpr %d" % s, "  .amdhsa_accum_offset %d" % a,
                "  .amdhsa_group_segment_fixed_size 0", "  .amdhsa_kernarg_size 104", "  .amdhsa_user_sgpr_count 2",
                "  .amdhsa_user_sgpr_kernarg_segment_ptr 1", "  .amdhsa_system_sgpr_workgroup_id_x 1",
                "  .amdhsa_float_denorm_mode_32 3", "  .amdhsa_float_denorm_mode_16_64 3",
                ".end_amdhsa_kernel"]
    return "\n".join(out) + "\n"

if __name__ == "__main__":
    ks = [("prep_kernel", k0("prep"), 96, 48, 96)]
    ls = [("prep_kernel", (256,1,1), (512,1,1), 4096)]
    open("t0.s", "w").write(assemble(ks, ls))
    import build
    print(build.build("t0.s"))
```

```python
import sys
from asmgen import *
from kern import *

IMG = 8448
def k2(name, DW=8, DA=8, BAR=4, stamps=False, same=0, noact=False, now=False, slack=4, xnt=True, notr=False, nomfma=False):
    p = Prog(); e = p.e
    st = Stamps(p, stamps)
    p.lg_slack = slack
    U = 16
    def acc(nt, rt): return 8*nt + 4*rt
    V_PRE = 64
    V_TID, V_TR0, V_TR1, V_TR2, V_DW, V_XO, V_T0, V_T1, V_T2, V_T3, V_RM, V_DW2, V_FLAG, V_G8, V_LW, V_LR = 100, 101, 102, 103, 104, 105, 106, 107, 108, 109, 110, 111, 120, 121, 122, 123
    def wfrag(nt): return 4*nt
    def afrag(step, rt): return 32 + 8*(step % U) + 4*rt
    S_WAVE = 3
    SRD_W, SRD_WS, SRD_X, SRD_OUT, SRD_DBG, SRD_A = 8, 12, 16, 20, 24, 56
    S_A, S_W, S_MB, S_T0, S_T1, S_ROLE, S_RT, S_CT, S_CNT, S_G, S_PAIR, S_XB, S_NU, S_AB, S_FOFF, S_FMASK = 28, 29, 30, 31, 32, 33, 34, 35, 36, 38, 39, 50, 51, 55, 60, 61
    e("s_cmp_ge_u32 s2, 256")
    e("s_cbranch_scc1 %s_done" % name)
    st.stamp(True); st.stamp()
    e("s_load_dwordx2 s[4:5], s[0:1], %d" % KA['wo'])
    e("s_load_dwordx4 s[40:43], s[0:1], %d" % KA['w2'])
    e("s_load_dwordx4 s[44:47], s[0:1], %d" % KA['out'])
    e("s_load_dwordx2 s[6:7], s[0:1], %d" % KA['ws'])
    e("s_load_dwordx2 s[48:49], s[0:1], %d" % KA['x'])
    e("v_lshrrev_b32 v%d, 6, v0" % V_T0)
    e("v_and_b32 v%d, 63, v0" % V_TID)
    e("v_readfirstlane_b32 s%d, v%d" % (S_WAVE, V_T0))
    e("s_bfe_u32 s%d, s2, 0x10002" % S_ROLE)
    e("s_and_b32 s%d, s2, 3" % S_T0)
    e("s_lshr_b32 s%d, s2, 3" % S_T1)
    e("s_lshr_b32 s%d, s%d, 1" % (S_RT, S_T0))
    e("s_lshl_b32 s%d, s%d, 3" % (S_RT, S_RT))
    e("s_lshr_b32 s%d, s%d, 2" % (S_CT, S_T1))
    e("s_add_u32 s%d, s%d, s%d" % (S_RT, S_RT, S_CT))
    e("s_and_b32 s%d, s%d, 1" % (S_CT, S_T0))
    e("s_lshl_b32 s%d, s%d, 2" % (S_CT, S_CT))
    e("s_and_b32 s%d, s%d, 3" % (S_T1, S_T1))
    e("s_add_u32 s%d, s%d, s%d" % (S_CT, S_CT, S_T1))
    e("s_lshl_b32 s%d, s%d, 3" % (S_PAIR, S_RT))
    e("s_add_u32 s%d, s%d, s%d" % (S_PAIR, S_PAIR, S_CT))
    if same & 1: e("s_mov_b32 s%d, 0" % S_RT)
    if same & 2: e("s_mov_b32 s%d, 0" % S_CT)
    e("v_lshrrev_b32 v%d, 4, v%d" % (V_T0, V_TID))
    e("v_and_b32 v%d, 15, v%d" % (V_T1, V_TID))
    e("v_lshlrev_b32 v%d, 14, v%d" % (V_DW, V_T0))
    e("v_lshl_add_u32 v%d, v%d, 4, v%d" % (V_DW, V_T1, V_DW))
    e("v_and_b32 v%d, 1, v%d" % (V_T2, V_T0))
    e("v_lshlrev_b32 v%d, 2, v%d" % (V_T2, V_T2))
    e("v_bfe_u32 v%d, v%d, 2, 2" % (V_T3, V_TID))
    e("v_add_u32 v%d, v%d, v%d" % (V_T2, V_T2, V_T3))
    e("v_mul_u32_u24 v%d, 1056, v%d" % (V_TR0, V_T2))
    e("v_lshrrev_b32 v%d, 1, v%d" % (V_T2, V_T0))
    e("v_lshl_add_u32 v%d, v%d, 8, v%d" % (V_TR0, V_T2, V_TR0))
    e("v_and_b32 v%d, 3, v%d" % (V_T2, V_TID))
    e("v_lshl_add_u32 v%d, v%d, 3, v%d" % (V_TR0, V_T2, V_TR0))
    e("v_add_u32 v%d, %d, v%d" % (V_DW2, 2048-1056, V_DW))
    e("v_add_u32 v%d, %d, v%d" % (V_TR1, 7*IMG, V_TR0))
    e("v_add_u32 v%d, %d, v%d" % (V_TR2, 14*IMG, V_TR0))
    e("v_lshlrev_b32 v%d, 4, v%d" % (V_XO, V_TID))
    e("v_lshlrev_b32 v%d, 11, v%d" % (V_RM, V_T0))
    e("v_lshl_add_u32 v%d, v%d, 4, v%d" % (V_RM, V_T1, V_RM))
    e("v_lshlrev_b32 v%d, 3, v%d" % (V_G8, V_T0))
    e("v_mul_u32_u24 v%d, 272, v%d" % (V_LW, V_T1))
    e("v_add_u32 v%d, v%d, v%d" % (V_LW, V_LW, V_G8))
    e("v_mul_u32_u24 v%d, 272, v%d" % (V_LR, V_T0))
    e("v_lshl_add_u32 v%d, v%d, 4, v%d" % (V_LR, V_T1, V_LR))
    e("s_mul_i32 s%d, s%d, %d" % (S_T0, S_WAVE, 32*272))
    e("v_add_u32 v%d, s%d, v%d" % (V_LW, S_T0, V_LW))
    e("v_add_u32 v%d, s%d, v%d" % (V_LR, S_T0, V_LR))
    e("s_waitcnt lgkmcnt(0)")
    def sel(d, x, y):
        e("s_mov_b32 s%d, 0x%x" % (d, y))
        e("s_cselect_b32 s%d, 0x%x, s%d" % (d, x, d))
    e("s_cmp_eq_u32 s%d, 1" % S_ROLE)
    e("s_cselect_b32 s%d, s4, s40" % SRD_W)
    e("s_cselect_b32 s%d, s5, s41" % (SRD_W+1))
    sel(SRD_W+2, 8 << 20, 7 << 20)
    e("s_mov_b32 s%d, 0x20000" % (SRD_W+3))
    sel(S_NU, 128*2048, 112*2048)
    sel(62, OF_RP, HF_RP)
    sel(S_AB, WS_OF, WS_HF)
    e("s_cselect_b32 s%d, 8, 7" % S_CNT)
    e("s_cselect_b32 s%d, s48, s42" % SRD_X)
    e("s_cselect_b32 s%d, s49, s43" % (SRD_X+1))
    sel(SRD_X+2, 4 << 20, 2048)
    e("s_mov_b32 s%d, 0x20000" % (SRD_X+3))
    e("s_lshl_b32 s%d, s%d, 2" % (S_T0, S_RT))
    e("s_add_u32 s%d, s%d, s%d" % (S_T0, S_T0, S_WAVE))
    e("s_mul_i32 s%d, s%d, s62" % (S_A, S_T0))
    e("s_add_u32 s%d, s%d, s%d" % (S_A, S_A, S_AB))
    e("s_add_u32 s%d, s6, s%d" % (SRD_A, S_A))
    e("s_addc_u32 s%d, s7, 0" % (SRD_A+1))
    e("s_mov_b32 s%d, s%d" % (SRD_A+2, S_NU))
    e("s_mov_b32 s%d, 0x20000" % (SRD_A+3))
    e("s_mov_b32 s%d, 0" % S_A)
    e("s_lshl_b32 s%d, s%d, 8" % (S_W, S_CT))
    e("s_lshl_b32 s%d, s%d, 12" % (S_T0, S_WAVE))
    e("s_add_u32 s%d, s%d, s%d" % (S_W, S_W, S_T0))
    e("s_mul_i32 s%d, s%d, %d" % (S_MB, S_WAVE, 2*1056))
    def dma_step(slot):
        b = slot*IMG
        return [["s_add_u32 m0, s%d, %d" % (S_MB, b), "buffer_load_dwordx4 v%d, s[%d:%d], s%d offen lds" % (V_DW, SRD_W, SRD_W+3, S_W)],
                ["buffer_load_dwordx4 v%d, s[%d:%d], s%d offen offset:1056 lds" % (V_DW2, SRD_W, SRD_W+3, S_W)]]
    adv_w = ["s_add_u32 s%d, s%d, %d" % (S_W, S_W, 32*2048)]
    def a_loads(step):
        return ["buffer_load_dwordx4 a[%d:%d], v%d, s[%d:%d], s%d offen offset:%d" % (afrag(step, rt), afrag(step, rt)+3, V_XO, SRD_A, SRD_A+3, S_A, (step % 2)*2048 + rt*1024) for rt in range(2)]
    adv_a = "s_add_u32 s%d, s%d, 4096" % (S_A, S_A)
    def tr_reads(step, nt):
        slot = step % U
        v, o = (V_TR0, slot) if slot < 7 else (V_TR1, slot-7) if slot < 14 else (V_TR2, slot-14)
        return ["ds_read_b64_tr_b16 a[%d:%d], v%d offset:%d" % (wfrag(nt)+2*t, wfrag(nt)+2*t+1, v, o*IMG + nt*32 + t*512) for t in range(2)]
    DM = max(DW, DA)
    for s in range(DM):
        if s < DW:
            for grp in dma_step(s):
                for t in grp: e(t, tag=("w", s) if t.startswith("buffer") else None)
            for t in adv_w: e(t)
        if s < DA:
            for t in a_loads(s): e(t)
            if s % 2 == 1: e(adv_a)
        if s == 0:
            srd(p, SRD_WS, 6, WS_SIZE)
            srd(p, SRD_OUT, 44, 4 << 20)
            srd(p, SRD_DBG, 46, 256)
            e("s_lshl_b32 s%d, s%d, 15" % (S_G, S_PAIR))
            e("s_lshl_b32 s%d, s%d, 13" % (S_T0, S_WAVE))
            e("s_add_u32 s%d, s%d, s%d" % (S_G, S_G, S_T0))
            e("s_add_u32 s%d, s%d, 0x%x" % (S_G, S_G, WS_G))
            e("s_lshl_b32 s%d, s%d, 18" % (S_XB, S_RT))
            e("s_lshl_b32 s%d, s%d, 16" % (S_T0, S_WAVE))
            e("s_add_u32 s%d, s%d, s%d" % (S_XB, S_XB, S_T0))
            e("s_lshl_b32 s%d, s%d, 8" % (S_T0, S_CT))
            e("s_add_u32 s%d, s%d, s%d" % (S_XB, S_XB, S_T0))
            e("s_lshr_b32 s%d, s%d, 1" % (S_FOFF, S_PAIR))
            e("s_lshl_b32 s%d, s%d, 2" % (S_FOFF, S_FOFF))
            e("s_and_b32 s%d, s%d, 1" % (S_T1, S_PAIR))
            e("s_lshl_b32 s%d, s%d, 4" % (S_T1, S_T1))
            e("s_lshl_b32 s%d, 1, s%d" % (S_FMASK, S_T1))
            e("v_mov_b32 v%d, 0" % V_FLAG)
            e("v_mov_b32 v%d, 0" % V_T3)
        if s == 1:
            for i in range(64): e("v_mov_b32 v%d, 0" % i)
    e("s_cmp_eq_u32 s%d, 1" % S_ROLE)
    e("s_cbranch_scc0 %s_preg" % name)
    for i in range(8):
        e("s_add_u32 s%d, s%d, %d" % (S_T0, S_XB, i*8192))
        e("buffer_load_dwordx4 v[%d:%d], v%d, s[%d:%d], s%d offen%s" % (V_PRE+4*i, V_PRE+4*i+3, V_RM, SRD_X, SRD_X+3, S_T0, " nt" if xnt else ""), tag="optional")
    e("s_branch %s_prej" % name)
    e("%s_preg:" % name)
    e("s_lshl_b32 s%d, s%d, 8" % (S_T0, S_CT))
    for nt in range(8):
        e("buffer_load_dwordx2 v[%d:%d], v%d, s[%d:%d], s%d offen offset:%d" % (V_PRE+2*nt, V_PRE+2*nt+1, V_G8, SRD_X, SRD_X+3, S_T0, nt*32), tag="optional")
    e("%s_prej:" % name)
    st.stamp()
    p.waitvm(("w", 0))
    e("s_barrier")
    for nt in range(8):
        for t in tr_reads(0, nt): e(t)
    st.stamp()
    p.loop_begin("g2")
    e("%s_g2:" % name)
    for s in range(U):
        if s % BAR == 0:
            p.waitvm(("w", (s+BAR) % U))
            e("s_barrier")
        if s == 13:
            e("s_cmp_lg_u32 s%d, 1" % S_CNT)
            e("s_cbranch_scc1 %s_nofl" % name)
            e("buffer_load_dword v%d, v%d, s[%d:%d], s%d offen sc1" % (V_FLAG, V_T3, SRD_DBG, SRD_DBG+3, S_FOFF), tag="optional")
            e("%s_nofl:" % name)
        mf = []
        for nt in range(8):
            for rt in range(2):
                a = acc(nt, rt)
                mf.append(Ins("v_mfma_f32_16x16x32_bf16 v[%d:%d], a[%d:%d], a[%d:%d], v[%d:%d]" % (a, a+3, wfrag(nt), wfrag(nt)+3, afrag(s, rt), afrag(s, rt)+3, a, a+3)))
        fill = []
        for nt in range(8):
            r = tr_reads(s+1, nt)
            if notr: continue
            fill.append((min(2*nt+1, 15), Ins(r[0])))
            fill.append((min(2*nt+2, 15), Ins(r[1])))
        dm = dma_step((s + DW) % U)
        posd = [2, 8]
        for q, grp in enumerate(dm):
            for k_, t in enumerate(grp):
                if now and t.startswith("buffer"): continue
                fill.append((posd[q] - (len(grp)-1-k_), Ins(t, tag=("w", (s+DW) % U) if t.startswith("buffer") else None)))
        for q, t in enumerate(adv_w): fill.append((10+q, Ins(t)))
        for q, t in enumerate(a_loads(s + DA)):
            if not noact: fill.append((4+8*q, Ins(t)))
        if (s + DA) % 2 == 1: fill.append((14, Ins(adv_a)))
        fill.sort(key=lambda x: x[0])
        for ins in weave(mf, fill):
            if nomfma and ins.kind == 'mfma': continue
            p.add(ins)
    e("s_sub_u32 s%d, s%d, 1" % (S_CNT, S_CNT))
    e("s_cmp_lg_u32 s%d, 0" % S_CNT)
    e("s_cbranch_scc1 %s_g2" % name)
    p.loop_end()
    st.stamp()
    e("s_waitcnt vmcnt(0) lgkmcnt(0)")
    e("s_cmp_eq_u32 s%d, 1" % S_ROLE)
    e("s_cbranch_scc1 %s_epis" % name)
    LOG2E = f2u(1.4426950408889634)
    def rnd(a, b, t):
        e("v_cvt_pk_bf16_f32 v%d, v%d, v%d" % (t, a, b))
        e("v_lshlrev_b32 v%d, 16, v%d" % (a, t))
        e("v_and_b32 v%d, 0xffff0000, v%d" % (b, t))
    e("s_mov_b32 s52, 0x%x" % (LOG2E ^ 0x80000000))
    for u in range(4):
        for rt in range(2):
            d = 128 + 4*(2*u+rt)
            for half in range(2):
                nt = 2*u + half
                b = V_PRE + 2*nt
                a = acc(nt, rt)
                T = 112 + 4*half
                e("v_lshlrev_b32 v96, 16, v%d\nv_and_b32 v97, 0xffff0000, v%d\nv_lshlrev_b32 v98, 16, v%d\nv_and_b32 v99, 0xffff0000, v%d" % (b, b, b+1, b+1))
                rnd(a, a+1, V_T0); rnd(a+2, a+3, V_T1)
                for r in range(4): e("v_add_f32 v%d, v%d, v%d" % (a+r, a+r, 96+r))
                rnd(a, a+1, V_T0); rnd(a+2, a+3, V_T1)
                for r in range(4): e("v_mul_f32 v%d, s52, v%d" % (T+r, a+r))
                for r in range(4): e("v_exp_f32 v%d, v%d" % (T+r, T+r))
                for r in range(4): e("v_add_f32 v%d, 1.0, v%d" % (T+r, T+r))
                for r in range(4): e("v_rcp_f32 v%d, v%d" % (T+r, T+r))
                for r in range(4): e("v_mul_f32 v%d, v%d, v%d" % (a+r, a+r, T+r))
                e("v_cvt_pk_bf16_f32 v%d, v%d, v%d" % (d+2*half, a, a+1))
                e("v_cvt_pk_bf16_f32 v%d, v%d, v%d" % (d+2*half+1, a+2, a+3))
            e("s_add_u32 s%d, s%d, %d" % (S_T0, S_G, (2*u+rt)*1024))
            e("buffer_store_dwordx4 v[%d:%d], v%d, s[%d:%d], s%d offen sc1" % (d, d+3, V_XO, SRD_WS, SRD_WS+3, S_T0))
    e("s_waitcnt vmcnt(0)")
    e("s_barrier")
    e("s_cmp_lg_u32 s%d, 0" % S_WAVE)
    e("s_cbranch_scc1 %s_fin" % name)
    e("s_mov_b64 exec, 1")
    e("v_mov_b32 v%d, s%d" % (V_T0, S_FMASK))
    e("buffer_atomic_add v%d, v%d, s[%d:%d], s%d offen sc1" % (V_T0, V_T3, SRD_DBG, SRD_DBG+3, S_FOFF))
    e("s_waitcnt vmcnt(0)")
    e("s_branch %s_fin" % name)
    e("%s_epis:" % name)
    e("s_barrier")
    e("s_mov_b32 s53, 0x400000")
    e("%s_poll:" % name)
    e("v_readfirstlane_b32 s54, v%d" % V_FLAG)
    e("s_and_b32 s54, s54, s%d" % S_FMASK)
    e("s_cbranch_scc1 %s_polled" % name)
    e("s_sleep 1")
    e("buffer_load_dword v%d, v%d, s[%d:%d], s%d offen sc1" % (V_FLAG, V_T3, SRD_DBG, SRD_DBG+3, S_FOFF))
    e("s_waitcnt vmcnt(0)")
    e("s_sub_u32 s53, s53, 1")
    e("s_cmp_lg_u32 s53, 0")
    e("s_cbranch_scc1 %s_poll" % name)
    e("%s_polled:" % name)
    for k_ in range(8):
        e("s_add_u32 s%d, s%d, %d" % (S_T0, S_G, k_*1024))
        e("buffer_load_dwordx4 v[%d:%d], v%d, s[%d:%d], s%d offen sc1" % (128+4*k_, 128+4*k_+3, V_XO, SRD_WS, SRD_WS+3, S_T0))
    for nt in range(8):
        for rt in range(2):
            a = acc(nt, rt)
            rnd(a, a+1, V_T0); rnd(a+2, a+3, V_T1)
    for u in range(4):
        for rt in range(2):
            gq = 128 + 4*(2*u+rt)
            for half in range(2):
                nt = 2*u + half
                a = acc(nt, rt)
                T = 112 + 4*half
                e("v_lshlrev_b32 v%d, 16, v%d\nv_and_b32 v%d, 0xffff0000, v%d\nv_lshlrev_b32 v%d, 16, v%d\nv_and_b32 v%d, 0xffff0000, v%d" % (T, gq+2*half, T+1, gq+2*half, T+2, gq+2*half+1, T+3, gq+2*half+1))
                for r in range(4): e("v_mul_f32 v%d, v%d, v%d" % (a+r, a+r, T+r))
                e("v_cvt_pk_bf16_f32 v%d, v%d, v%d" % (a, a, a+1))
                e("v_cvt_pk_bf16_f32 v%d, v%d, v%d" % (a+1, a+2, a+3))
                e("ds_write_b64 v%d, v[%d:%d] offset:%d" % (V_LW, a, a+1, rt*16*272 + nt*32))
    e("s_waitcnt lgkmcnt(0)")
    for i in range(8):
        e("ds_read_b128 v[%d:%d], v%d offset:%d" % (128+4*i, 128+4*i+3, V_LR, i*4*272))
    for i in range(8):
        pr, xr = 128+4*i, V_PRE+4*i
        for h in range(2):
            T = 112 + 8*0
            for q in range(2):
                di = 2*h + q
                e("v_lshlrev_b32 v%d, 16, v%d" % (112+4*q, pr+di)); e("v_and_b32 v%d, 0xffff0000, v%d" % (113+4*q, pr+di))
                e("v_lshlrev_b32 v%d, 16, v%d" % (114+4*q, xr+di)); e("v_and_b32 v%d, 0xffff0000, v%d" % (115+4*q, xr+di))
            for q in range(2):
                e("v_add_f32 v%d, v%d, v%d" % (112+4*q, 112+4*q, 114+4*q)); e("v_add_f32 v%d, v%d, v%d" % (113+4*q, 113+4*q, 115+4*q))
            for q in range(2):
                e("v_cvt_pk_bf16_f32 v%d, v%d, v%d" % (pr+2*h+q, 112+4*q, 113+4*q))
        e("s_add_u32 s%d, s%d, %d" % (S_T0, S_XB, i*8192))
        e("buffer_store_dwordx4 v[%d:%d], v%d, s[%d:%d], s%d offen" % (pr, pr+3, V_RM, SRD_OUT, SRD_OUT+3, S_T0))
    e("%s_fin:" % name)
    if stamps:
        e("s_waitcnt vmcnt(0)")
        e("s_mov_b64 exec, -1")
        st.stamp(); st.stamp(True)
        st.dump(SRD_WS, V_T0, 2)
    e("%s_done:" % name)
    e("s_endpgm")
    return p

def arg(n, d):
    for a in sys.argv:
        if a.startswith(n + "="): return int(a[len(n)+1:])
    return d
def build_all(fn, stamps=False, k0kw={}, k1kw={}, k2kw={}):
    k0kw = dict(k0kw, sleep=arg("sleep0", 0), prefetch=bool(arg("pf0", 0)))
    if arg("tl", 0):
        k0kw = dict(k0kw, tl=True); k1kw = dict(k1kw, tl=True); k2kw = dict(k2kw, tl=True)
    from k1 import k1, STEP_LDS
    import k2b, k2c
    KV = arg('kv', 2)
    fused = bool(arg("fused", 0))
    k1kw = dict(k1kw, fused=fused, diag0=bool(arg("diag0", 0)), psleep=arg("psleep", 1), pf3=arg("pf3", 0), pfnt=bool(arg("pfnt", 0)), xnt0=bool(arg("xnt0", 0)), sch=arg("sch", 0), sco=arg("sco", 0), hspread=bool(arg("hspread", 0)), p0v=arg("p0v", 2), refine=bool(arg("refine", 0)), codepf=arg("codepf1", 13 if arg("one", 0) else 0), cpos=arg("cpos", 1), kvchk=arg("kvchk", 1), wflag=arg("wflag", 0), dg=arg("dg", 1))
    if arg("one", 0):
        KN = "recurrent_scan__sliding_block_cached__dense_activation_squared_relu__prompt_kernel"
        prog = k1("pa", stamps=stamps, tail=lambda p, st: k2c.k2("pb", p=p, st=st, codepf=k1kw["codepf"], start="pa_start", psleep=arg("psleep2", 2), **k2kw), **k1kw)
        hdr = open("recurrent_scan__sliding_block_cached__dense_activation_squared_relu__prompt.s.ref").read().split("; Override")[0]
        if arg("plain", 0):
            txt = assemble([(KN, prog, 512, 102, 256)], [], header=hdr + "; @launch grid=(256,1,1) block=(256,1,1) lds=%d" % (8*STEP_LDS + 512 + 4096))
        else:
            txt = assemble([("pa_kernel", prog, 512, 102, 256)], [("pa_kernel", (256,1,1), (256,1,1), 8*STEP_LDS + 512 + 4096)], header=hdr)
        open(fn + ".s", "w").write(txt)
        import build
        return build.build(fn + ".s")
    ks = [("pa_kernel", k1("pa", stamps=stamps, **k1kw), 512, 102, 256),
          ("pb_kernel", (k2c.k2 if KV == 3 else k2b.k2 if arg("v2", 1) else k2)("pb", stamps=stamps, **k2kw), 512, 102, 256)]
    ls = [("pa_kernel", (256,1,1), (256,1,1), 8*STEP_LDS + (512 + 4096 if fused else 0)), ("pb_kernel", (256,1,1), (256,1,1), 16*IMG if KV != 3 else arg("lds2", 8*IMG))]
    if not fused:
        ks.insert(0, ("prep_kernel", k0("prep", stamps=stamps, codepf=("pa_kernel", "code_end_label") if arg("codepf", 0) else None, **k0kw), 96, 102, 96))
        ls.insert(0, ("prep_kernel", (256,1,1), (512,1,1), 4096))
    hdr = open("recurrent_scan__sliding_block_cached__dense_activation_squared_relu__prompt.s.ref").read().split("; Override")[0]
    open(fn + ".s", "w").write(assemble(ks, ls, header=hdr))
    import build
    return build.build(fn + ".s")
if __name__ == "__main__":
    fn = ([a[3:] for a in sys.argv if a.startswith("fn=")] + ["t2"])[0]
    print(build_all(fn, stamps="stamps" in sys.argv, k1kw=dict(D=arg("D", 3), BAR=arg("BAR1", 1), slack=arg("slack1", 6), pf2=bool(arg("pf2", 1)), force_slow=bool(arg("slow", 0))),
          k2kw=(dict(DW=arg("DW", 6), DA=arg("DA", 3), BAR=arg("BAR2", 2), slack=arg("slack", 6), force_far=bool(arg("far", 0)), cmap=arg("cmap", 0), PT=arg("PT", 0), skew=arg("skew", 1), dg=arg("dg", 1), ep2=arg("ep2", 1), osc=["", " sc1", " nt", " sc0 sc1", " sc1 nt"][arg("osc", 1)], wflag=arg("wflag", 0), xlate=arg("xlate", 0), exld=["", " sc0", " nt", " sc1", " sc0 sc1"][arg("exld", 3)], exst=["", " sc0", " nt"][arg("exst", 0)], diag=arg("diag", 0), noact=bool(arg("noact", 0)), now=bool(arg("now", 0))) if arg("kv", 2) == 3 else dict(DW=arg("DW", 8), DA=arg("DA", 3), mapping=arg("map", 2), split=arg("split", 0), wlin=arg("wlin", 0), rot=arg("rot", 0), exp=arg("exp", 0), slack=arg("slack", 6), noact=bool(arg("noact", 0)), now=bool(arg("now", 0)), same=arg("same", 0)) if arg("v2", 1) else dict())))
```

```python
import sys
from asmgen import *
from kern import *

STEP_LDS = 16896
IMG = 8448
KV_SLOT = 16384

def k1(name, U=8, D=3, BAR=1, stamps=False, wnt=True, pf2=True, slack=6, force_slow=False, thr_log2=30, tl=False, fused=False, psleep=4, diag0=False, pf3=False, pfnt=False, xnt0=True, tail=None, st=None, sch=None, sco=None, hspread=False, p0v=2, refine=True, codepf=False, spin=0x80000, cpos=1, kvchk=1, wflag=0, dg=0, pfg=0, cgmap=0, wpf=0, wpos=52, kvnt=1, wpp=0, rot1=0, oint=0, lnfast=0, tint=0, nlate=1, gearly=0):
    p = Prog(); e = p.e
    p.lg_slack = slack
    st = Stamps(p, stamps)
    one = tail is not None
    if one: assert fused and not tl
    SCO = " sc1" if (one or sco) else ""
    SCH = " sc1" if (one or sch) else ""
    def stamp1():
        if not one: st.stamp()
    assert BAR < D <= U - BAR
    def accQ(nt, rt): return 16*nt + 4*rt
    def accH(nt, rt): return 128 + 16*nt + 4*rt
    V_TID, V_TR, V_DQ, V_D1, V_XO, V_T0, V_T1, V_T2, V_T3, V_DQ2, V_D12 = 240, 241, 242, 243, 244, 245, 246, 247, 248, 249, 250
    def wfrag(nt): return 4*nt
    def xfrag(step, rt): return 60 + 16*(step % U) + 4*rt
    V_NONCE = 251
    S_WAVE = 3
    SRD_WQ, SRD_W1, SRD_WS, SRD_B1, SRD_XN, SRD_K, SRD_V, SRD_PO, SRD_P2 = 8, 12, 16, 20, 24, 28, 32, 52, 56
    S_XN, S_Q, S_1, S_MB, S_T0, S_T1, S_CG, S_RG, S_CNT, S_H0, S_H6, S_KS, S_RP, S_OB, S_KVR, S_PF0, S_PF1 = 36, 37, 38, 39, 40, 41, 42, 43, 44, 45, 46, 47, 48, 49, 50, 51, 60
    NT = {True: " nt", False: "", 1: " nt", 0: "", 2: " sc1", 3: " sc0 sc1", 4: " sc1 nt", 5: " sc0 nt", 6: " sc0", 7: " sc0 sc1 nt", 8: " nt"}[wnt]
    e("%s_start:" % name)
    e("s_cmp_ge_u32 s2, 256")
    e("s_cbranch_scc1 %s_done" % name)
    st.stamp(True); st.stamp()
    if tl: tl_start(p)
    e("s_load_dwordx2 s[4:5], s[0:1], %d" % KA['wq'])
    e("s_load_dwordx4 s[88:91], s[0:1], %d" % KA['w1'])
    e("s_load_dwordx2 s[6:7], s[0:1], %d" % KA['ws'])
    e("s_load_dwordx2 s[92:93], s[0:1], %d" % KA['wo'])
    e("s_load_dwordx2 s[94:95], s[0:1], %d" % KA['w2'])
    if fused:
        e("s_load_dwordx2 s[96:97], s[0:1], %d" % KA['x'])
        e("s_load_dwordx4 s[52:55], s[0:1], %d" % KA['k'])
        e("s_load_dwordx2 s[56:57], s[0:1], %d" % KA['dbg'])
    e("v_lshrrev_b32 v%d, 6, v0" % V_T0)
    e("v_and_b32 v%d, 63, v0" % V_TID)
    e("v_readfirstlane_b32 s%d, v%d" % (S_WAVE, V_T0))
    START = "%s_start" % name
    def first_codepf(d, so):
        code_srd(p, d, so, START)
        e("v_lshlrev_b32 v%d, 4, v%d" % (V_T1, V_TID))
        e("buffer_load_dwordx4 v[124:127], v%d, s[%d:%d], s%d offen" % (V_T1, d, d+3, so), tag="pf")
    if codepf and cpos == 0: first_codepf(60, S_T0)
    e("s_and_b32 s%d, s2, 7" % S_T0)
    e("s_lshr_b32 s%d, s2, 3" % S_T1)
    if cgmap == 0:
        e("s_lshl_b32 s%d, s%d, 2" % (S_CG, S_T0))
        e("s_and_b32 s%d, s%d, 3" % (S_T0, S_T1))
        e("s_add_u32 s%d, s%d, s%d" % (S_CG, S_CG, S_T0))
    elif cgmap == 1:
        e("s_lshr_b32 s%d, s%d, 1\ns_lshl_b32 s%d, s%d, 3\ns_and_b32 s%d, s%d, 1\ns_add_u32 s%d, s%d, s%d" % (S_CG, S_T0, S_CG, S_CG, S_T0, S_T0, S_CG, S_CG, S_T0))
        e("s_and_b32 s%d, s%d, 3\ns_lshl_b32 s%d, s%d, 1\ns_add_u32 s%d, s%d, s%d" % (S_T0, S_T1, S_T0, S_T0, S_CG, S_CG, S_T0))
    elif cgmap == 2:
        e("s_lshr_b32 s%d, s%d, 1\ns_lshl_b32 s%d, s%d, 3\ns_and_b32 s%d, s%d, 1\ns_lshl_b32 s%d, s%d, 1\ns_add_u32 s%d, s%d, s%d" % (S_CG, S_T0, S_CG, S_CG, S_T0, S_T0, S_T0, S_T0, S_CG, S_CG, S_T0))
        e("s_and_b32 s%d, s%d, 1\ns_add_u32 s%d, s%d, s%d" % (S_T0, S_T1, S_CG, S_CG, S_T0))
        e("s_and_b32 s%d, s%d, 2\ns_lshl_b32 s%d, s%d, 1\ns_add_u32 s%d, s%d, s%d" % (S_T0, S_T1, S_T0, S_T0, S_CG, S_CG, S_T0))
    elif cgmap == 3:
        e("s_lshr_b32 s%d, s%d, 1\ns_lshl_b32 s%d, s%d, 3" % (S_CG, S_T0, S_CG, S_CG))
        e("s_and_b32 s%d, s%d, 3" % (S_H0, S_T1))
        e("s_and_b32 s%d, s%d, 2\ns_lshl_b32 s%d, s%d, 1" % (S_H6, S_H0, S_H6, S_H6))
        e("s_add_u32 s%d, s%d, s%d" % (S_CG, S_CG, S_H6))
        e("s_and_b32 s%d, s%d, 1" % (S_H0, S_H0))
        e("s_and_b32 s%d, s%d, 1" % (S_T0, S_T0))
        e("s_mul_i32 s%d, s%d, 3\ns_xor_b32 s%d, s%d, s%d\ns_add_u32 s%d, s%d, s%d" % (S_H0, S_H0, S_H0, S_H0, S_T0, S_CG, S_CG, S_H0))
    e("s_lshr_b32 s%d, s%d, 2" % (S_T1, S_T1))
    e("s_lshl_b32 s%d, s%d, 2" % (S_RG, S_T1))
    e("s_add_u32 s%d, s%d, s%d" % (S_RG, S_RG, S_WAVE))
    e("v_lshrrev_b32 v%d, 4, v%d" % (V_T0, V_TID))
    e("v_and_b32 v%d, 15, v%d" % (V_T1, V_TID))
    e("v_lshlrev_b32 v%d, 16, v%d" % (V_DQ, V_T0))
    e("v_lshl_add_u32 v%d, v%d, 4, v%d" % (V_DQ, V_T1, V_DQ))
    e("v_add_u32 v%d, 2, v%d" % (V_T2, V_T1))
    e("v_and_b32 v%d, 1, v%d" % (V_T3, V_T1))
    e("v_cmp_gt_u32 vcc, 12, v%d" % V_T1)
    e("v_cndmask_b32 v%d, v%d, v%d, vcc" % (V_T2, V_T3, V_T2))
    e("s_bitcmp1_b32 s%d, 0" % S_CG)
    e("s_cselect_b64 vcc, -1, 0")
    e("v_cndmask_b32 v%d, v%d, v%d, vcc" % (V_T2, V_T1, V_T2))
    e("v_mul_u32_u24 v%d, %d, v%d" % (V_D1, 8*7168, V_T0))
    e("v_lshl_add_u32 v%d, v%d, 4, v%d" % (V_D1, V_T2, V_D1))
    e("v_add_u32 v%d, %d, v%d" % (V_DQ2, 8192-1056, V_DQ))
    e("v_add_u32 v%d, %d, v%d" % (V_D12, 7168-1056, V_D1))
    e("v_and_b32 v%d, 1, v%d" % (V_T2, V_T0))
    e("v_lshlrev_b32 v%d, 2, v%d" % (V_T2, V_T2))
    e("v_bfe_u32 v%d, v%d, 2, 2" % (V_T3, V_TID))
    e("v_add_u32 v%d, v%d, v%d" % (V_T2, V_T2, V_T3))
    e("v_mul_u32_u24 v%d, 1056, v%d" % (V_TR, V_T2))
    e("v_lshrrev_b32 v%d, 1, v%d" % (V_T2, V_T0))
    e("v_lshl_add_u32 v%d, v%d, 8, v%d" % (V_TR, V_T2, V_TR))
    e("v_and_b32 v%d, 3, v%d" % (V_T2, V_TID))
    e("v_lshl_add_u32 v%d, v%d, 3, v%d" % (V_TR, V_T2, V_TR))
    e("v_lshlrev_b32 v%d, 4, v%d" % (V_XO, V_TID))
    e("v_lshlrev_b32 v%d, 3, v%d" % (V_T0, V_T0))
    e("s_lshl_b32 s%d, s%d, 8" % (S_Q, S_CG))
    e("s_lshl_b32 s%d, s%d, 14" % (S_T0, S_WAVE))
    e("s_add_u32 s%d, s%d, s%d" % (S_Q, S_Q, S_T0))
    e("s_mul_i32 s%d, s%d, 224" % (S_1, S_CG))
    e("s_mul_i32 s%d, s%d, %d" % (S_T0, S_WAVE, 2*7168))
    e("s_add_u32 s%d, s%d, s%d" % (S_H0, S_1, S_T0))
    e("s_mul_i32 s%d, s%d, %d" % (S_MB, S_WAVE, 2*1056))
    e("s_mul_i32 s%d, s%d, %d" % (S_T0, S_RG, XN_RG))
    e("s_and_b32 s%d, s%d, 1" % (S_T1, S_CG))
    e("s_lshl_b32 s%d, s%d, 5" % (S_T1, S_T1))
    e("s_add_u32 s%d, s%d, s%d" % (S_H6, S_1, S_T1))
    e("s_bitcmp1_b32 s%d, 0" % S_CG)
    e("s_cselect_b32 s%d, 0, 192" % S_T1)
    e("s_add_u32 s%d, s%d, s%d" % (S_T1, S_1, S_T1))
    e("s_mov_b32 s%d, s%d" % (S_1, S_H0))
    e("s_mov_b32 s%d, 0" % S_XN)
    if rot1:
        e("s_lshr_b32 s%d, s2, %d\ns_and_b32 s%d, s%d, 3" % (S_H0, 5 if rot1 == 1 else 6, S_H0, S_H0))
        e("s_lshl_b32 s%d, s%d, 21\ns_add_u32 s%d, s%d, s%d" % (S_XN, S_H0, S_Q, S_Q, S_XN))
        e("s_mul_i32 s%d, s%d, %d\ns_add_u32 s%d, s%d, s%d" % (S_XN, S_H0, 8*32*7168, S_1, S_1, S_XN))
        e("s_lshl_b32 s%d, s%d, 15" % (S_XN, S_H0))
    if fused:
        V_L8, V_B3, V_B4, V_B5, V_A = 100, 101, 102, 103, 104
        e("v_and_b32 v%d, 7, v%d" % (V_L8, V_TID))
        e("v_bfe_u32 v%d, v%d, 3, 1" % (V_B3, V_TID))
        e("v_bfe_u32 v%d, v%d, 4, 1" % (V_B4, V_TID))
        e("v_lshrrev_b32 v%d, 5, v%d" % (V_B5, V_TID))
        e("v_lshlrev_b32 v%d, 11, v%d" % (V_A, V_L8))
        e("v_lshl_add_u32 v%d, v%d, 6, v%d" % (V_A, V_B4, V_A))
        e("v_lshl_add_u32 v%d, v%d, 4, v%d" % (V_A, V_B3, V_A))
        e("v_lshl_add_u32 v%d, v%d, 5, v%d" % (V_A, V_B5, V_A))
        e("s_lshr_b32 s47, s2, 5")
        e("s_lshl_b32 s48, s47, 8\ns_lshl_b32 s49, s%d, 3\ns_add_u32 s48, s48, s49" % S_CG)
        e("s_lshl_b32 s48, s48, 11\ns_lshl_b32 s49, s%d, 9\ns_add_u32 s48, s48, s49" % S_WAVE)
    e("s_waitcnt lgkmcnt(0)")
    SC = " sc1" if fused else ""
    if fused:
        SRD_T0, SRD_T1 = 60, 28
        S_NONCE = 100
        V_L8, V_B3, V_B4, V_B5, V_A = 100, 101, 102, 103, 104
        e("s_mov_b32 s72, s56\ns_mov_b32 s73, s57\ns_mov_b32 s74, 256\ns_mov_b32 s75, 0x20000") if False else None
        srd(p, SRD_T0, 96, 4 << 20)
        for q in range(4):
            e("buffer_load_dwordx4 v[%d:%d], v%d, s[%d:%d], s48 offen offset:%d%s" % (16+4*q, 19+4*q, V_A, SRD_T0, SRD_T0+3, q*128, " nt" if xnt0 else ""))
        e("s_mov_b32 s32, s56\ns_mov_b32 s33, s57\ns_mov_b32 s34, 256\ns_mov_b32 s35, 0x20000")
        e("v_mov_b32 v121, 0")
        e("s_or_b32 s49, s2, s%d" % S_WAVE)
        e("s_cmp_lg_u32 s49, 0")
        e("s_cbranch_scc1 %s_nonce" % name)
        e("s_memrealtime s[50:51]")
        e("s_waitcnt lgkmcnt(0)")
        e("s_or_b32 s50, s50, 1")
        e("v_mov_b32 v120, s50")
        e("buffer_store_dword v120, v121, s[32:35], 0 offen sc1", tag="optional")
        e("%s_nonce:" % name)
        e("s_lshl_b32 s49, s2, 2\ns_add_u32 s49, s49, s%d" % S_WAVE)
        e("s_and_b32 s50, s49, 511")
        e("s_lshr_b32 s51, s50, 7\ns_lshl_b32 s51, s51, 19")
        e("s_lshr_b32 s%d, s50, 3\ns_and_b32 s%d, s%d, 15\ns_lshl_b32 s%d, s%d, 13" % (S_T0, S_T0, S_T0, S_T0, S_T0))
        e("s_add_u32 s51, s51, s%d\ns_add_u32 s51, s51, %d" % (S_T0, 1536*256))
        e("s_cmp_ge_u32 s49, 512")
        e("s_cselect_b32 s%d, s54, s52" % SRD_T1)
        e("s_cselect_b32 s%d, s55, s53" % (SRD_T1+1))
        e("s_mov_b32 s%d, %d" % (SRD_T1+2, 2 << 20))
        e("s_mov_b32 s%d, 0x20000" % (SRD_T1+3))
        e("s_cbranch_scc1 %s_ldv" % name)
        e("s_lshr_b32 s%d, s50, 2\ns_and_b32 s%d, s%d, 1\ns_lshl_b32 s%d, s%d, 12\ns_add_u32 s51, s51, s%d" % (S_T0, S_T0, S_T0, S_T0, S_T0, S_T0))
        e("s_and_b32 s%d, s50, 3\ns_lshl_b32 s%d, s%d, 6\ns_add_u32 s51, s51, s%d" % (S_T0, S_T0, S_T0, S_T0))
        e("v_and_b32 v106, 15, v%d\nv_lshlrev_b32 v106, 8, v106\nv_lshrrev_b32 v105, 4, v%d\nv_lshl_add_u32 v106, v105, 4, v106" % (V_TID, V_TID))
        e("s_branch %s_ldj" % name)
        e("%s_ldv:" % name)
        e("s_and_b32 s%d, s50, 7\ns_lshl_b32 s%d, s%d, 5\ns_add_u32 s51, s51, s%d" % (S_T0, S_T0, S_T0, S_T0))
        e("v_lshrrev_b32 v106, 1, v%d\nv_lshlrev_b32 v106, 8, v106\nv_and_b32 v105, 1, v%d\nv_lshl_add_u32 v106, v105, 4, v106" % (V_TID, V_TID))
        e("%s_ldj:" % name)
        e("buffer_load_dwordx4 v[108:111], v106, s[%d:%d], s51 offen%s" % (SRD_T1, SRD_T1+3, " nt" if kvnt else ""))
        if codepf and cpos == 1: first_codepf(60, S_T0)
        def nonce_load():
            e("s_cmp_lg_u32 s%d, 0" % S_WAVE)
            e("s_cbranch_scc1 %s_nl" % name)
            e("buffer_load_dword v%d, v121, s[32:35], 0 offen sc1" % V_NONCE, tag="optional")
            e("%s_nl:" % name)
        if not nlate: nonce_load()
    if fused:
        e("s_mul_i32 s%d, s%d, %d" % (S_T0, S_RG, XN_RG))
    srd(p, SRD_B1, 90, 7168)
    def bias_loads():
        for nt in range(6):
            e("buffer_load_dwordx2 v[%d:%d], v%d, s[%d:%d], s%d offen offset:%d" % (accH(nt, 3)+2, accH(nt, 3)+3, V_T0, SRD_B1, SRD_B1+3, S_H6, nt*32), tag="bias")
        e("buffer_load_dwordx2 v[%d:%d], v%d, s[%d:%d], s%d offen" % (accH(6, 3)+2, accH(6, 3)+3, V_T0, SRD_B1, SRD_B1+3, S_T1 if not (fused and p0v == 3) else S_CNT), tag="bias")
    if not (fused and p0v == 3): bias_loads()
    else: e("s_mov_b32 s%d, s%d" % (S_CNT, S_T1))
    srd(p, SRD_WQ, 4, 8 << 20)
    srd(p, SRD_W1, 88, 7 << 20)
    e("s_add_u32 s%d, s6, s%d" % (SRD_XN, S_T0))
    e("s_addc_u32 s%d, s7, 0" % (SRD_XN+1))
    e("s_mov_b32 s%d, 131072" % (SRD_XN+2))
    e("s_mov_b32 s%d, 0x20000" % (SRD_XN+3))
    def dma_step(slot, NT=NT):
        b = slot*STEP_LDS
        return [["s_add_u32 m0, s%d, %d" % (S_MB, b), "buffer_load_dwordx4 v%d, s[%d:%d], s%d offen%s lds" % (V_DQ, SRD_WQ, SRD_WQ+3, S_Q, NT)],
                ["buffer_load_dwordx4 v%d, s[%d:%d], s%d offen offset:1056%s lds" % (V_DQ2, SRD_WQ, SRD_WQ+3, S_Q, NT)],
                ["s_add_u32 m0, s%d, %d" % (S_MB, b+IMG), "buffer_load_dwordx4 v%d, s[%d:%d], s%d offen%s lds" % (V_D1, SRD_W1, SRD_W1+3, S_1, NT)],
                ["buffer_load_dwordx4 v%d, s[%d:%d], s%d offen offset:1056%s lds" % (V_D12, SRD_W1, SRD_W1+3, S_1, NT)]]
    adv_dma = ["s_add_u32 s%d, s%d, %d" % (S_Q, S_Q, 32*8192), "s_add_u32 s%d, s%d, %d" % (S_1, S_1, 32*7168)]
    def xn_loads(step):
        return ["buffer_load_dwordx4 a[%d:%d], v%d, s[%d:%d], s%d offen offset:%d" % (xfrag(step, rt), xfrag(step, rt)+3, V_XO, SRD_XN, SRD_XN+3, S_XN, rt*1024) + SC for rt in range(4)]
    adv_xn = "s_add_u32 s%d, s%d, 4096" % (S_XN, S_XN)
    def tr_reads(step, nt):
        slot = step % U
        off = (slot % 4)*STEP_LDS + (IMG if nt >= 8 else 0) + ((nt - 8) if nt >= 8 else nt)*32
        return ["ds_read_b64_tr_b16 a[%d:%d], v%d offset:%d" % (wfrag(nt)+2*t, wfrag(nt)+2*t+1, V_TR, off + t*512) for t in range(2)]
    init = ["v_mov_b32 v%d, 0" % i for i in range(128)]
    NZ = len(init)
    for nt in range(7):
        b = accH(nt, 3)
        for rt in range(3):
            a = accH(nt, rt)
            init += ["v_lshlrev_b32 v%d, 16, v%d" % (a, b+2), "v_and_b32 v%d, 0xffff0000, v%d" % (a+1, b+2),
                     "v_lshlrev_b32 v%d, 16, v%d" % (a+2, b+3), "v_and_b32 v%d, 0xffff0000, v%d" % (a+3, b+3)]
        init += ["v_lshlrev_b32 v%d, 16, v%d" % (b, b+2), "v_and_b32 v%d, 0xffff0000, v%d" % (b+1, b+2),
                 "v_lshlrev_b32 v%d, 16, v%d" % (b+2, b+3), "v_mov_b32 v%d, v%d" % (b+3, accH(nt, 2)+3)]
    if not fused:
        nvm = 8*D; per = -(-len(init)//nvm); ii = 0
        for s in range(D):
            seq = []
            for grp in dma_step(s): seq.append([(t, ("dma", s % U) if t.startswith("buffer") else None) for t in grp])
            for t in xn_loads(s): seq.append([(t, None)])
            for grp in seq:
                for t, tg in grp: e(t, tag=tg)
                for t in init[ii:ii+per]: e(t)
                ii += per
            for t in adv_dma: e(t)
            e(adv_xn)
        for t in init[ii:]: e(t)
    else:
        if p0v != 3:
            for s_ in range(D if p0v != 4 else 1):
                for grp in dma_step(s_):
                    for t in grp: e(t, tag=("dma", s_ % U) if t.startswith("buffer") else None)
                for t in adv_dma: e(t)
        srd(p, SRD_WS, 6, WS_SIZE)
        LNS = 8*STEP_LDS
        def kv_block(nwait):
            e("s_lshl_b32 s51, s50, 10")
            e("s_cmp_ge_u32 s49, 512")
            e("s_cbranch_scc1 %s_stv" % name)
            e("s_mov_b32 s%d, 0x%x" % (S_T1, f2u(CSCALE)))
            for r in range(4):
                e("v_lshlrev_b32 v112, 16, v%d\nv_and_b32 v113, 0xffff0000, v%d" % (108+r, 108+r))
                e("v_mul_f32 v112, s%d, v112\nv_mul_f32 v113, s%d, v113" % (S_T1, S_T1))
                e("v_cvt_pk_bf16_f32 v%d, v112, v113" % (108+r))
            e("v_permlane32_swap_b32 v108, v110")
            e("v_permlane32_swap_b32 v109, v111")
            e("v_and_b32 v114, 15, v%d\nv_lshlrev_b32 v114, 4, v114\nv_lshl_add_u32 v114, v%d, 9, v114\nv_lshl_add_u32 v114, v%d, 8, v114" % (V_TID, V_B4, V_B5))
            e("s_add_u32 s51, s51, %d" % WS_KP)
            e("s_branch %s_stj" % name)
            e("%s_stv:" % name)
            e("s_waitcnt vmcnt(%d)" % nwait)
            e("s_lshl_b32 s%d, s%d, 10\ns_add_u32 s%d, s%d, %d" % (S_T1, S_WAVE, S_T1, S_T1, LNS + 512))
            e("v_add_u32 v114, s%d, v%d" % (S_T1, V_XO))
            e("ds_write_b128 v114, v[108:111]")
            e("v_lshrrev_b32 v115, 2, v%d\nv_lshlrev_b32 v115, 5, v115\nv_and_b32 v116, 3, v%d\nv_lshl_add_u32 v115, v116, 3, v115\nv_add_u32 v115, s%d, v115" % (V_TID, V_TID, S_T1))
            e("s_waitcnt lgkmcnt(0)")
            e("ds_read_b64_tr_b16 v[108:109], v115")
            e("ds_read_b64_tr_b16 v[110:111], v115 offset:512")
            e("s_waitcnt lgkmcnt(0)")
            e("v_mov_b32 v114, v%d" % V_XO)
            e("s_add_u32 s51, s51, %d" % WS_VP)
            e("%s_stj:" % name)
            e("buffer_store_dwordx4 v[108:111], v114, s[%d:%d], s51 offen sc1" % (SRD_WS, SRD_WS+3), tag="p0st" if p0v != 4 else None)
        if p0v == 4: kv_block(7 + 4 + (1 if codepf and cpos == 1 else 0))
        def xn_dest():
            e("s_lshl_b32 s48, s47, 2\ns_lshr_b32 s%d, s%d, 3\ns_add_u32 s48, s48, s%d\ns_mul_i32 s48, s48, %d" % (S_T1, S_CG, S_T1, XN_RG))
            e("s_lshr_b32 s%d, s%d, 1\ns_and_b32 s%d, s%d, 3\ns_lshl_b32 s%d, s%d, 10\ns_add_u32 s48, s48, s%d" % (S_T1, S_CG, S_T1, S_T1, S_T1, S_T1, S_T1))
            e("s_and_b32 s%d, s%d, 1\ns_lshl_b32 s%d, s%d, 7\ns_add_u32 s48, s48, s%d" % (S_T1, S_CG, S_T1, S_T1, S_T1))
            e("s_lshl_b32 s%d, s%d, 15\ns_add_u32 s48, s48, s%d" % (S_T1, S_WAVE, S_T1))
            e("v_lshlrev_b32 v5, 12, v%d" % V_B4)
            e("v_lshl_add_u32 v5, v%d, 9, v5" % V_B3)
            e("v_lshl_add_u32 v5, v%d, 8, v5" % V_B5)
            e("v_lshl_add_u32 v5, v%d, 4, v5" % V_L8)
        if lnfast: xn_dest()
        for r in range(16):
            e("v_lshlrev_b32 v%d, 16, v%d" % (32+2*r, 16+r))
            e("v_and_b32 v%d, 0xffff0000, v%d" % (33+2*r, 16+r))
        if diag0: st.stamp()
        e("v_lshlrev_b32 v6, 4, v%d" % V_L8)
        e("v_add_u32 v6, %d, v6" % LNS)
        e("s_lshl_b32 s%d, s%d, 2" % (S_T1, S_WAVE))
        e("v_add_u32 v7, s%d, v6" % S_T1)
        def pk(op, d, a_, b_, c_=None):
            t = "v_pk_%s_f32 v[%d:%d], v[%d:%d], v[%d:%d]" % (op, d, d+1, a_, a_+1, b_, b_+1)
            if c_ is not None: t += ", v[%d:%d]" % (c_, c_+1)
            e(t)
        def reduce_all(src, off):
            e("v_add_f32_dpp v%d, v%d, v%d row_ror:8 row_mask:0xf bank_mask:0xf" % (src, src, src))
            e("v_mov_b32 v9, v%d" % src)
            e("v_permlane16_swap_b32 v%d, v9" % src)
            e("v_add_f32 v%d, v%d, v9" % (src, src))
            e("v_mov_b32 v9, v%d" % src)
            e("v_permlane32_swap_b32 v%d, v9" % src)
            e("v_add_f32 v%d, v%d, v9" % (src, src))
            e("ds_write_b32 v7, v%d offset:%d" % (src, off))
            e("s_waitcnt lgkmcnt(0)")
            e("s_barrier")
            e("ds_read_b128 v[64:67], v6 offset:%d" % off)
            e("v_add_f32 v64, v64, v65\nv_add_f32 v66, v66, v67\nv_add_f32 v8, v64, v66")
        for i in range(4): pk("add", 72+2*i, 32+2*i, 40+2*i)
        for r in range(8, 16): pk("add", 72+2*(r % 4), 72+2*(r % 4), 32+2*r)
        pk("add", 72, 72, 74); pk("add", 76, 76, 78); pk("add", 72, 72, 76)
        e("v_add_f32 v72, v72, v73")
        reduce_all(72, 0)
        e("v_mul_f32 v10, 0x%x, v8" % f2u(-1.0/1024))
        e("v_mov_b32 v11, v10")
        for r in range(16):
            pk("add", 80+2*(r % 4), 32+2*r, 10)
            if r < 4: pk("mul", 72+2*r, 80+2*(r % 4), 80+2*(r % 4))
            else: pk("fma", 72+2*(r % 4), 80+2*(r % 4), 80+2*(r % 4), 72+2*(r % 4))
        pk("add", 72, 72, 74); pk("add", 76, 76, 78); pk("add", 72, 72, 76)
        e("v_add_f32 v72, v72, v73")
        reduce_all(72, 128)
        if nlate: nonce_load()
        e("v_mul_f32 v12, 0x%x, v8" % f2u(1.0/1024))
        e("v_cvt_pk_bf16_f32 v14, v10, v12")
        e("v_and_b32 v12, 0xffff0000, v14")
        e("v_lshlrev_b32 v10, 16, v14")
        e("v_add_f32 v12, 0x%x, v12" % f2u(1e-5))
        e("v_mov_b32 v11, v10")
        e("v_cvt_pk_bf16_f32 v14, v12, v12")
        e("v_and_b32 v12, 0xffff0000, v14")
        e("v_sqrt_f32 v12, v12")
        e("v_cvt_pk_bf16_f32 v14, v12, v12")
        e("v_and_b32 v12, 0xffff0000, v14")
        e("v_rcp_f32 v14, v12")
        e("v_sub_f32 v12, 0, v12")
        e("v_mov_b32 v15, v14")
        e("v_mov_b32 v13, v12")
        if not lnfast: xn_dest()
        for q in range(4):
            for r in range(4*q, 4*q+4):
                a_ = 32+2*r
                pk("add", a_, a_, 10)
                if not lnfast:
                    e("v_cvt_pk_bf16_f32 v%d, v%d, v%d" % (16+r, a_, a_+1))
                    e("v_lshlrev_b32 v%d, 16, v%d" % (a_, 16+r)); e("v_and_b32 v%d, 0xffff0000, v%d" % (a_+1, 16+r))
                t = 80 + 2*(r % 4)
                pk("mul", t, a_, 14)
                if refine:
                    pk("fma", a_, t, 12, a_)
                    pk("fma", t, a_, 14, t)
                e("v_cvt_pk_bf16_f32 v%d, v%d, v%d" % (16+r, t, t+1))
            e("v_permlane32_swap_b32 v%d, v%d" % (16+4*q, 18+4*q))
            e("v_permlane32_swap_b32 v%d, v%d" % (17+4*q, 19+4*q))
            e("buffer_store_dwordx4 v[%d:%d], v5, s[%d:%d], s48 offen sc1" % (16+4*q, 19+4*q, SRD_WS, SRD_WS+3), tag="p0st" if p0v == 4 else None)
            if q < 3: e("s_add_u32 s48, s48, 8192")
        if diag0: st.stamp()
        if p0v != 4: kv_block(4 if p0v == 3 else 4 + 7 + 4*D + (1 if codepf and cpos == 1 else 0))
        if p0v == 4:
            for t in init[:NZ]: e(t)
            if diag0: st.stamp()
            p.waitvm("p0st")
            if diag0: st.stamp()
            e("s_barrier")
        elif p0v != 3:
            for t in init: e(t)
            if diag0: st.stamp()
            e("s_waitcnt vmcnt(0)")
            if diag0: st.stamp()
            e("s_barrier")
        else:
            bias_loads()
            per = -(-NZ//(4*D)); ii = 0
            for s_ in range(D):
                for grp in dma_step(s_):
                    for t in grp: e(t, tag=("dma", s_ % U) if t.startswith("buffer") else None)
                    for t in init[ii:min(ii+per, NZ)]: e(t)
                    ii += per
                for t in adv_dma: e(t)
            if diag0: st.stamp()
            p.waitvm("p0st")
            if diag0: st.stamp()
            e("s_barrier")
        e("s_cmp_lg_u32 s%d, 0" % S_WAVE)
        e("s_cbranch_scc1 %s_xnf" % name)
        e("s_mov_b32 s48, 0x%x" % spin)
        e("%s_np:" % name)
        e("v_readfirstlane_b32 s%d, v%d" % (S_NONCE, V_NONCE))
        e("s_cmp_lg_u32 s%d, 0" % S_NONCE)
        e("s_cbranch_scc1 %s_nok" % name)
        e("v_mov_b32 v%d, 0" % V_T1)
        e("buffer_load_dword v%d, v%d, s[32:35], 0 offen sc1" % (V_NONCE, V_T1), tag="optional")
        p.add(RawWait("s_waitcnt vmcnt(0)"))
        e("s_sub_u32 s48, s48, 1")
        e("s_cmp_lg_u32 s48, 0")
        e("s_cbranch_scc1 %s_np" % name)
        e("%s_nok:" % name)
        e("s_lshl_b32 s48, s47, 5")
        e("s_add_u32 s49, s48, s%d" % S_CG)
        e("s_lshl_b32 s48, s48, 7\ns_add_u32 s48, s48, %d" % WS_FLAG)
        e("s_lshl_b32 s49, s49, 7\ns_add_u32 s49, s49, %d" % WS_FLAG)
        e("v_mov_b32 v%d, 0" % V_T1)
        e("v_mov_b32 v%d, s%d" % (V_T2, S_NONCE))
        e("s_mov_b64 exec, 1")
        e("buffer_store_dword v%d, v%d, s[%d:%d], s49 offen sc1" % (V_T2, V_T1, SRD_WS, SRD_WS+3), tag="optional")
        e("s_mov_b64 exec, -1")
        if one:
            e("v_mov_b32 v%d, %d" % (V_T1, LNS + 256))
            e("ds_write_b32 v%d, v%d" % (V_T1, V_T2))
            e("s_waitcnt lgkmcnt(0)")
        e("%s_xnf:" % name)
        if p0v == 4:
            for s_ in range(1, D):
                for grp in dma_step(s_):
                    for t in grp: e(t, tag=("dma", s_ % U) if t.startswith("buffer") else None)
                for t in adv_dma: e(t)
        if p0v in (3, 4):
            for t in init[NZ:]: e(t)
        e("s_cmp_lg_u32 s%d, 0" % S_WAVE)
        e("s_cbranch_scc1 %s_xnok" % name)
        e("s_mov_b64 exec, 0xffffffff")
        e("v_lshlrev_b32 v%d, 7, v%d" % (V_T3, V_TID))
        e("s_mov_b32 s49, 0x%x" % spin)
        e("%s_xnp:" % name)
        e("buffer_load_dword v%d, v%d, s[%d:%d], s48 offen sc1" % (V_T2, V_T3, SRD_WS, SRD_WS+3), tag="optional")
        p.add(RawWait("s_waitcnt vmcnt(0)"))
        e("v_cmp_ne_u32 vcc, s%d, v%d" % (S_NONCE, V_T2))
        e("s_cbranch_vccz %s_xnq" % name)
        if psleep: e("s_sleep %d" % psleep)
        e("s_sub_u32 s49, s49, 1")
        e("s_cmp_lg_u32 s49, 0")
        e("s_cbranch_scc1 %s_xnp" % name)
        e("%s_xnq:" % name)
        e("s_mov_b64 exec, -1")
        e("%s_xnok:" % name)
        if p0v in (3, 4): p.waitvm(("dma", 0))
        e("s_barrier")
        if diag0:
            st.stamp(); st.on = False
        if one and kvchk:
            e("v_mov_b32 v%d, %d" % (V_T1, LNS + 256))
            e("ds_read_b32 v%d, v%d" % (V_T2, V_T1))
        for s_ in range(D):
            for t in xn_loads(s_): e(t)
            e(adv_xn)
        if kvchk:
            e("v_and_b32 v%d, 31, v%d" % (V_T3, V_TID))
            e("v_lshlrev_b32 v%d, 7, v%d" % (V_T3, V_T3))
            e("v_lshrrev_b32 v%d, 5, v%d" % (V_T1, V_TID))
            e("v_lshl_add_u32 v%d, v%d, 14, v%d" % (V_T3, V_T1, V_T3))
            e("s_lshr_b32 s%d, s%d, 3\ns_lshl_b32 s%d, s%d, 12\ns_add_u32 s%d, s%d, %d" % (S_RP, S_CG, S_RP, S_RP, S_RP, S_RP, WS_FLAG))
            e("s_cmp_eq_u32 s%d, 0\ns_cselect_b32 s%d, 1, 0x7fff" % (S_WAVE, S_KS))
    if not fused: srd(p, SRD_WS, 6, WS_SIZE)
    stamp1()
    if not (fused and p0v in (3, 4)):
        p.waitvm(("dma", 0))
        e("s_barrier")
    for nt in range(15):
        for t in tr_reads(0, nt): e(t)
    if one and kvchk: e("v_readfirstlane_b32 s100, v%d" % V_T2)
    e("s_mov_b32 s%d, %d" % (S_CNT, 32//U))
    if codepf & 2: code_srd(p, 60, S_OB, START)
    def pf_setup():
        srd(p, SRD_PO, 92, 8 << 20)
        srd(p, SRD_P2, 94, 7 << 20)
        e("s_lshl_b32 s%d, s2, 15\ns_lshl_b32 s%d, s%d, 13\ns_add_u32 s%d, s%d, s%d" % (S_PF0, S_T0, S_WAVE, S_PF0, S_PF0, S_T0))
        e("s_mul_i32 s%d, s2, 28672\ns_mul_i32 s%d, s%d, 7168\ns_add_u32 s%d, s%d, s%d" % (S_PF1, S_T0, S_WAVE, S_PF1, S_PF1, S_T0))
    if wpf:
        e("s_lshr_b32 s58, s2, 5")
        e("s_cmp_ge_u32 s58, 2")
        e("s_cselect_b32 s52, s88, s4\ns_cselect_b32 s53, s89, s5")
        e("s_cselect_b32 s54, 0x%x, 0x%x" % (7 << 20, 8 << 20) if False else "s_mov_b32 s54, 0x%x\ns_cselect_b32 s54, 0x%x, s54" % (8 << 20, 7 << 20))
        e("s_mov_b32 s55, 0x20000")
        e("s_mov_b32 s57, %d\ns_cselect_b32 s57, %d, s57" % (32*8192, 32*7168))
        e("s_cselect_b32 s56, s%d, s%d" % (S_1, S_Q))
        e("s_cselect_b64 vcc, -1, 0")
        e("v_cndmask_b32 v251, v%d, v%d, vcc" % (V_DQ, V_D1))
        e("s_lshr_b32 s59, s57, 5")
        e("s_bitcmp1_b32 s58, 0")
        e("s_cselect_b32 s59, s59, 0")
        e("v_add_u32 v251, s59, v251")
        for _ in range(wpf - 1): e("s_add_u32 s56, s56, s57")
        e("s_cmp_ge_u32 s58, 4")
        e("s_cselect_b32 s54, 0, s54")
    if pfg:
        assert not (codepf & 2)
        pf_setup()
    st.stamp()
    p.loop_begin("g1")
    e("%s_g1:" % name)
    for s in range(U):
        if s % BAR == 0:
            p.waitvm(("dma", (s+BAR) % U))
            e("s_barrier")
        if fused and kvchk and s == 5:
            e("s_cmp_eq_u32 s%d, s%d" % (S_CNT, S_KS))
            e("s_cbranch_scc0 %s_kvl" % name)
            e("buffer_load_dword v252, v%d, s[%d:%d], s%d offen sc1" % (V_T3, SRD_WS, SRD_WS+3, S_RP), tag="optional")
            e("%s_kvl:" % name)
        mf = []
        for nt in range(15):
            for rt in range(4):
                acc = accQ(nt, rt) if nt < 8 else accH(nt-8, rt)
                mf.append(Ins("v_mfma_f32_16x16x32_bf16 v[%d:%d], a[%d:%d], a[%d:%d], v[%d:%d]" % (acc, acc+3, wfrag(nt), wfrag(nt)+3, xfrag(s, rt), xfrag(s, rt)+3, acc, acc+3)))
        sc = Sched(mf)
        if dg: sc.put(tr_reads(s, 14)[1], 0)
        if (s+1) % 4 == 0 and U > 4:
            delta = 4*STEP_LDS if ((s+1) % U) // 4 == 1 else -(U-4)*STEP_LDS
            sc.put("v_add_u32 v%d, %d, v%d" % (V_TR, delta, V_TR) if delta > 0 else "v_subrev_u32 v%d, %d, v%d" % (V_TR, -delta, V_TR), 0)
        for nt in range(15):
            r = tr_reads(s+1, nt)
            g = sc.put(r[0], min(4*nt+3, 59))
            if not (dg and nt == 14): sc.put(r[1], min(g+1, 59))
        pos = 1
        for grp in dma_step((s + D) % U, "" if (wpf or wnt == 8) else NT):
            g = sc.put(Ins(grp[-1], tag=("dma", (s+D) % U)), pos)
            for t in grp[:-1]: sc.scalar(t, g-1)
            pos = g + 4
        for q, t in enumerate(adv_dma): sc.scalar(t, pos + q)
        pos = 30
        for t in xn_loads(s + D):
            g = sc.put(t, pos); pos = g + 4
        sc.scalar(adv_xn, pos)
        if rot1 and s == U - D - 1:
            for t in ["s_cmp_ge_u32 s%d, 0x20000" % S_XN, "s_cselect_b32 s%d, 0x800000, 0" % S_T0, "s_cselect_b32 s%d, 0x700000, 0" % S_T1, "s_cselect_b32 s%d, 0x20000, 0" % S_H0]:
                sc.scalar(t, pos + 1)
            for t in ["s_sub_u32 s%d, s%d, s%d" % (S_Q, S_Q, S_T0), "s_sub_u32 s%d, s%d, s%d" % (S_1, S_1, S_T1), "s_sub_u32 s%d, s%d, s%d" % (S_XN, S_XN, S_H0)]:
                sc.scalar(t, pos + 2)
        if wpf:
            g = sc.put(Ins("buffer_load_dwordx4 a[188:191], v251, s[52:55], s56 offen%s" % (" nt" if wpp else ""), tag="pf"), wpos)
            sc.scalar("s_add_u32 s56, s56, s57", g)
        if pfg and s % 2 == 1:
            srd_, sreg = (SRD_PO, S_PF0) if s % 4 == 1 else (SRD_P2, S_PF1)
            g = sc.put(Ins("buffer_load_dwordx4 a[188:191], v%d, s[%d:%d], s%d offen" % (V_XO, srd_, srd_+3, sreg), tag="pf"), 48)
            sc.scalar("s_add_u32 s%d, s%d, 1024" % (sreg, sreg), g)
        if (codepf & 2) and s == 2:
            sc.put(Ins("buffer_load_dwordx4 a[188:191], v%d, s[60:63], s%d offen" % (V_XO, S_OB), tag="pf"), 50)
        sc.emit(p)
    e("s_sub_u32 s%d, s%d, 1" % (S_CNT, S_CNT))
    e("s_cmp_lg_u32 s%d, 0" % S_CNT)
    e("s_cbranch_scc1 %s_g1" % name)
    p.loop_end()
    st.stamp()
    def Oacc(dt, qt): return 16*dt + 4*qt
    def Sreg(par, kt2, qt): return 128 + 32*par + 16*kt2 + 4*qt
    def Preg(par, qt): return 192 + 16*par + 4*qt
    def negm(qt): return 224 + 4*qt
    def Qf(qt, u): return 16*qt + 4*u
    def Kf(kt2, u): return 64 + 16*kt2 + 4*u
    def Vf(dt): return 96 + 4*dt
    def Lacc(qt): return 128 + 4*qt
    ONES = 144
    V_KV = V_TR
    def kv_dma():
        return [["s_mov_b32 m0, s%d" % S_RP, "buffer_load_dwordx4 v%d, s[%d:%d], s%d offen%s lds" % (V_XO, SRD_K, SRD_K+3, S_KS, SC)],
                ["buffer_load_dwordx4 v%d, s[%d:%d], s%d offen offset:1024%s lds" % (V_XO, SRD_K, SRD_K+3, S_KS, SC)],
                ["buffer_load_dwordx4 v%d, s[%d:%d], s%d offen offset:2048%s lds" % (V_XO, SRD_V, SRD_V+3, S_KS, SC)],
                ["buffer_load_dwordx4 v%d, s[%d:%d], s%d offen offset:3072%s lds" % (V_XO, SRD_V, SRD_V+3, S_KS, SC)]], \
               ["s_add_u32 s%d, s%d, 8192" % (S_KS, S_KS), "s_add_u32 s%d, s%d, %d" % (S_RP, S_RP, KV_SLOT), "s_and_b32 s%d, s%d, 0x1ffff" % (S_RP, S_RP)]
    def tagkv(t, m): return ("kv", m) if t.startswith("buffer") else None
    if one:
        if not kvchk:
            e("v_mov_b32 v%d, %d" % (V_T1, 8*STEP_LDS + 256))
            e("ds_read_b32 v%d, v%d" % (V_T2, V_T1))
            e("v_readfirstlane_b32 s100, v%d" % V_T2)
        e("s_lshr_b32 s101, s2, 5\ns_lshl_b32 s101, s101, 5\ns_add_u32 s101, s101, s%d\ns_lshl_b32 s101, s101, 7\ns_add_u32 s101, s101, 0x%x" % (S_CG, WS_FDW if (wflag & 1) else WS_FD))
    if fused and kvchk:
        for s_ in range(U): p.waitvm(("dma", s_))
        e("s_cmp_lg_u32 s%d, 0" % S_WAVE)
        e("s_cbranch_scc1 %s_kvok" % name)
        e("s_mov_b32 s49, 0x%x" % spin)
        e("%s_kvp:" % name)
        e("v_cmp_ne_u32 vcc, s100, v252")
        e("s_cbranch_vccz %s_kvok" % name)
        e("s_sleep 1")
        e("buffer_load_dword v252, v%d, s[%d:%d], s%d offen sc1" % (V_T3, SRD_WS, SRD_WS+3, S_RP), tag="optional")
        p.add(RawWait("s_waitcnt vmcnt(0)"))
        e("s_sub_u32 s49, s49, 1")
        e("s_cmp_lg_u32 s49, 0")
        e("s_cbranch_scc1 %s_kvp" % name)
        e("%s_kvok:" % name)
    if fused and not kvchk:
        e("s_cmp_lg_u32 s%d, 0" % S_WAVE)
        e("s_cbranch_scc1 %s_kvok" % name)
        e("v_lshlrev_b32 v%d, 7, v%d" % (V_T3, V_TID))
        e("s_mov_b32 s49, 0x%x" % spin)
        e("%s_kvp:" % name)
        for q in range(4):
            e("s_mov_b32 s48, %d" % (WS_FLAG + q*64*128))
            e("buffer_load_dword v%d, v%d, s[%d:%d], s48 offen sc1" % (252+q, V_T3, SRD_WS, SRD_WS+3), tag="optional")
        p.add(RawWait("s_waitcnt vmcnt(0)"))
        e("v_cmp_ne_u32 vcc, s100, v252\nv_cmp_ne_u32 s[60:61], s100, v253\ns_or_b64 vcc, vcc, s[60:61]")
        e("v_cmp_ne_u32 s[60:61], s100, v254\ns_or_b64 vcc, vcc, s[60:61]\nv_cmp_ne_u32 s[60:61], s100, v255\ns_or_b64 vcc, vcc, s[60:61]")
        e("s_cmp_eq_u64 vcc, 0")
        e("s_cbranch_scc1 %s_kvok" % name)
        e("s_sleep 4")
        e("s_sub_u32 s49, s49, 1")
        e("s_cmp_lg_u32 s49, 0")
        e("s_cbranch_scc1 %s_kvp" % name)
        e("%s_kvok:" % name)
    for s_ in range(U): p.waitvm(("dma", s_))
    e("s_barrier")
    e("s_cmp_lg_u32 s%d, %d" % (S_WAVE, 0 if not one else 99))
    e("s_cbranch_scc1 %s_clr" % name)
    e("s_mov_b64 exec, 127")
    e("v_lshlrev_b32 v%d, 15, v%d" % (V_T0, V_TID))
    e("v_mov_b32 v%d, 0" % V_T1)
    e("s_lshl_b32 s%d, s2, 7" % S_T0)
    e("s_add_u32 s%d, s%d, 0x%x" % (S_T0, S_T0, WS_F2))
    e("buffer_store_dword v%d, v%d, s[%d:%d], s%d offen" % (V_T1, V_T0, SRD_WS, SRD_WS+3, S_T0), tag="optional")
    e("s_mov_b64 exec, -1")
    e("%s_clr:" % name)
    e("s_lshr_b32 s%d, s%d, 3" % (S_T0, S_CG))
    e("s_lshl_b32 s%d, s%d, 17" % (S_KVR, S_T0))
    e("s_lshl_b32 s%d, s%d, 11" % (S_T1, S_WAVE))
    e("s_add_u32 s%d, s%d, s%d" % (S_T0, S_KVR, S_T1))
    e("s_add_u32 s%d, s%d, %d" % (S_T1, S_T0, WS_KP))
    e("s_add_u32 s%d, s6, s%d" % (SRD_K, S_T1))
    e("s_addc_u32 s%d, s7, 0" % (SRD_K+1))
    e("s_mov_b32 s%d, %d" % (SRD_K+2, 16*8192))
    e("s_mov_b32 s%d, 0x20000" % (SRD_K+3))
    e("s_add_u32 s%d, s%d, %d" % (S_T1, S_T0, WS_VP - 2*8192 - 2048))
    e("s_add_u32 s%d, s6, s%d" % (SRD_V, S_T1))
    e("s_addc_u32 s%d, s7, 0" % (SRD_V+1))
    e("s_mov_b32 s%d, %d" % (SRD_V+2, 18*8192 + 2048))
    e("s_mov_b32 s%d, 0x20000" % (SRD_V+3))
    e("s_mov_b32 s%d, 0" % S_KS)
    e("s_lshl_b32 s%d, s%d, 12" % (S_RP, S_WAVE))
    valu = []
    for qt in range(4):
        for u in range(4):
            a, b = accQ(2*u, qt), accQ(2*u+1, qt)
            valu += ["v_cvt_pk_bf16_f32 v%d, v%d, v%d" % (a, a, a+1), "v_cvt_pk_bf16_f32 v%d, v%d, v%d" % (a+1, a+2, a+3),
                     "v_cvt_pk_bf16_f32 v%d, v%d, v%d" % (a+2, b, b+1), "v_cvt_pk_bf16_f32 v%d, v%d, v%d" % (a+3, b+2, b+3)]
            valu += ["v_accvgpr_write_b32 a%d, v%d" % (Qf(qt, u)+r, a+r) for r in range(4)]
    hs = []
    hs.append("s_lshr_b32 s%d, s%d, 1" % (S_T0, S_CG))
    hs.append("s_mul_i32 s%d, s%d, 7" % (S_T0, S_T0))
    hs.append("s_and_b32 s%d, s%d, 1" % (S_T1, S_CG))
    hs.append("s_lshl_b32 s%d, s%d, 2" % (S_H0, S_T1))
    hs.append("s_add_u32 s%d, s%d, s%d" % (S_H0, S_H0, S_T0))
    hs.append("s_lshl_b32 s%d, s%d, 11" % (S_H0, S_H0))
    hs.append("s_add_u32 s%d, s%d, 3" % (S_H6, S_T0))
    hs.append("s_lshl_b32 s%d, s%d, 11" % (S_H6, S_H6))
    hs.append("s_lshl_b32 s%d, s%d, 3" % (S_T1, S_T1))
    hs.append("s_add_u32 s%d, s%d, s%d" % (S_H6, S_H6, S_T1))
    hs.append("s_mul_i32 s%d, s%d, %d" % (S_T0, S_RG, 2*HF_RP))
    hs.append("s_add_u32 s%d, s%d, %d" % (S_T0, S_T0, WS_HF))
    hs.append("s_add_u32 s%d, s%d, s%d" % (S_H0, S_H0, S_T0))
    hs.append("s_add_u32 s%d, s%d, s%d" % (S_H6, S_H6, S_T0))
    hs.append("s_mul_i32 s%d, s%d, %d" % (S_T0, S_RG, 2*OF_RP))
    hs.append("s_lshl_b32 s%d, s%d, 13" % (S_T1, S_CG))
    hs.append("s_add_u32 s%d, s%d, s%d" % (S_T0, S_T0, S_T1))
    hs.append("s_add_u32 s%d, s%d, %d" % (S_OB, S_T0, WS_OF))
    valu += hs
    HPARK = 152
    hstores = []
    for rt in range(4):
        for nt in range(7):
            a = accH(nt, rt)
            valu += ["v_max_f32 v%d, 0, v%d" % (a+r, a+r) for r in range(4)]
            valu += ["v_pk_mul_f32 v[%d:%d], v[%d:%d], v[%d:%d]" % (a+2*h, a+2*h+1, a+2*h, a+2*h+1, a+2*h, a+2*h+1) for h in range(2)]
        for u in range(3):
            a, b = accH(2*u, rt), accH(2*u+1, rt)
            valu += ["v_cvt_pk_bf16_f32 v%d, v%d, v%d" % (a, a, a+1), "v_cvt_pk_bf16_f32 v%d, v%d, v%d" % (a+1, a+2, a+3),
                     "v_cvt_pk_bf16_f32 v%d, v%d, v%d" % (a+2, b, b+1), "v_cvt_pk_bf16_f32 v%d, v%d, v%d" % (a+3, b+2, b+3)]
            off = (rt >> 1)*HF_RP + (rt & 1)*1024 + u*2048
            if hspread:
                d = HPARK + 14*rt + 4*u + (14*rt) % 2
                d = HPARK + 16*rt + 4*u
                valu += ["v_accvgpr_write_b32 a%d, v%d" % (d+r, a+r) for r in range(4)]
                hstores.append(["s_add_u32 s%d, s%d, %d" % (S_T1, S_H0, off),
                                "buffer_store_dwordx4 a[%d:%d], v%d, s[%d:%d], s%d offen%s" % (d, d+3, V_XO, SRD_WS, SRD_WS+3, S_T1, SCH)])
                continue
            valu += ["s_add_u32 s%d, s%d, %d" % (S_T0, S_H0, off),
                     "buffer_store_dwordx4 v[%d:%d], v%d, s[%d:%d], s%d offen%s" % (a, a+3, V_XO, SRD_WS, SRD_WS+3, S_T0, SCH)]
        a = accH(6, rt)
        valu += ["v_cvt_pk_bf16_f32 v%d, v%d, v%d" % (a, a, a+1), "v_cvt_pk_bf16_f32 v%d, v%d, v%d" % (a+1, a+2, a+3)]
        off = (rt >> 1)*HF_RP + (rt & 1)*1024
        if hspread:
            d = HPARK + 16*rt + 12
            valu += ["v_accvgpr_write_b32 a%d, v%d" % (d+r, a+r) for r in range(2)]
            hstores.append(["s_add_u32 s%d, s%d, %d" % (S_T1, S_H6, off),
                            "buffer_store_dwordx2 a[%d:%d], v%d, s[%d:%d], s%d offen%s" % (d, d+1, V_XO, SRD_WS, SRD_WS+3, S_T1, SCH)])
            continue
        valu += ["s_add_u32 s%d, s%d, %d" % (S_T0, S_H6, off),
                 "buffer_store_dwordx2 v[%d:%d], v%d, s[%d:%d], s%d offen%s" % (a, a+1, V_XO, SRD_WS, SRD_WS+3, S_T0, SCH)]
    NPRO = 7
    late = []
    if tint:
        assert hspread
        nq = 128 + len(hs)
        def h_tile(nt, rt):
            a = accH(nt, rt)
            return ["v_max_f32 v%d, 0, v%d" % (a+r, a+r) for r in range(4)] + \
                   ["v_pk_mul_f32 v[%d:%d], v[%d:%d], v[%d:%d]" % (a+2*h, a+2*h+1, a+2*h, a+2*h+1, a+2*h, a+2*h+1) for h in range(2)]
        def h_pair(u, rt):
            a, b = accH(2*u, rt), accH(2*u+1, rt); d = HPARK + 16*rt + 4*u
            return h_tile(2*u, rt) + h_tile(2*u+1, rt) + \
                   ["v_cvt_pk_bf16_f32 v%d, v%d, v%d" % (a, a, a+1), "v_cvt_pk_bf16_f32 v%d, v%d, v%d" % (a+1, a+2, a+3),
                    "v_cvt_pk_bf16_f32 v%d, v%d, v%d" % (a+2, b, b+1), "v_cvt_pk_bf16_f32 v%d, v%d, v%d" % (a+3, b+2, b+3)] + \
                   ["v_accvgpr_write_b32 a%d, v%d" % (d+r, a+r) for r in range(4)]
        def h_last(rt):
            a = accH(6, rt); d = HPARK + 16*rt + 12
            return h_tile(6, rt) + ["v_cvt_pk_bf16_f32 v%d, v%d, v%d" % (a, a, a+1), "v_cvt_pk_bf16_f32 v%d, v%d, v%d" % (a+1, a+2, a+3)] + \
                   ["v_accvgpr_write_b32 a%d, v%d" % (d+r, a+r) for r in range(2)]
        parts = [(range(0, 3), valu[:nq]), (range(3, 7), sum([h_pair(u, rt) for u in range(2) for rt in range(4)], []))]
        late = sum([h_pair(2, rt) for rt in range(4)], []) + sum([h_last(rt) for rt in range(4)], [])
    else:
        parts = [(range(NPRO), valu)]
    for slots, work in parts:
        per = len(work)//(4*len(slots)); ii = 0
        for m in slots:
            grps, advs = kv_dma()
            for grp in grps:
                for t in grp: e(t, tag=tagkv(t, m))
                for t in work[ii:ii+per]: e(t)
                ii += per
            for t in advs: e(t)
        for t in work[ii:]: e(t)
    if pf2 and not pfg: pf_setup()
    if pf3:
        e("s_mul_i32 s%d, s2, %d\ns_lshl_b32 s%d, s%d, 13\ns_add_u32 s%d, s%d, s%d\ns_add_u32 s%d, s%d, 0x%x" % (S_T0, EX_STRIDE, S_T1, S_WAVE, S_T0, S_T0, S_T1, S_T0, S_T0, WS_EX))
        e("s_add_u32 s%d, s6, s%d\ns_addc_u32 s%d, s7, 0\ns_mov_b32 s%d, 8192\ns_mov_b32 s%d, 0x20000" % (SRD_W1, S_T0, SRD_W1+1, SRD_W1+2, SRD_W1+3))
        e("s_lshl_b32 s%d, s2, 14\ns_lshl_b32 s%d, s%d, 12\ns_add_u32 s%d, s%d, s%d" % (S_T0, S_T1, S_WAVE, S_T0, S_T0, S_T1))
        e("s_add_u32 s%d, s96, s%d\ns_addc_u32 s%d, s97, 0\ns_mov_b32 s%d, 4096\ns_mov_b32 s%d, 0x20000" % (SRD_WQ, S_T0, SRD_WQ+1, SRD_WQ+2, SRD_WQ+3))
        e("s_mov_b32 s%d, 0\ns_mov_b32 s%d, 0" % (S_Q, S_1))
    if pf3 == 2:
        for j in range(8):
            e("s_mov_b32 s%d, %d" % (S_1, j*1024))
            e("buffer_store_dwordx4 v[0:3], v%d, s[%d:%d], s%d offen" % (V_XO, SRD_W1, SRD_W1+3, S_1))
    stamp1()
    def koff(f): return (f >> 1)*4096 + (f & 1)*1024
    def kread(f, rel=0):
        return "ds_read_b128 a[%d:%d], v%d offset:%d" % (Kf(f//4, f % 4), Kf(f//4, f % 4)+3, V_KV, rel*KV_SLOT + koff(f))
    def vread(dt, rel=0):
        return "ds_read_b128 a[%d:%d], v%d offset:%d" % (Vf(dt), Vf(dt)+3, V_KV, rel*KV_SLOT + 2048 + koff(dt))
    def qk_mfmas(par, first):
        out = []
        for kt2 in range(2):
            for u in range(4):
                for qt in range(4):
                    s_ = Sreg(par, kt2, qt)
                    if u == 0: c = "0" if first else "v[%d:%d]" % (negm(qt), negm(qt)+3)
                    else: c = "v[%d:%d]" % (s_, s_+3)
                    out.append(Ins("v_mfma_f32_16x16x32_bf16 v[%d:%d], a[%d:%d], a[%d:%d], %s" % (s_, s_+3, Kf(kt2, u), Kf(kt2, u)+3, Qf(qt, u), Qf(qt, u)+3, c)))
        return out
    def pv_mfmas(par, first):
        out = []
        for dt in range(8):
            for qt in range(4):
                o = Oacc(dt, qt)
                c = "0" if first else "v[%d:%d]" % (o, o+3)
                out.append(Ins("v_mfma_f32_16x16x32_bf16 v[%d:%d], a[%d:%d], v[%d:%d], %s" % (o, o+3, Vf(dt), Vf(dt)+3, Preg(par, qt), Preg(par, qt)+3, c)))
        for qt in range(4):
            l = Lacc(qt)
            c = "0" if first else "a[%d:%d]" % (l, l+3)
            out.append(Ins("v_mfma_f32_16x16x32_bf16 a[%d:%d], a[%d:%d], v[%d:%d], %s" % (l, l+3, ONES, ONES+3, Preg(par, qt), Preg(par, qt)+3, c)))
        return out
    def softmax_ops(par):
        ops = []
        for qt in range(4):
            for kt2 in range(2):
                s_ = Sreg(par, kt2, qt)
                for h in range(2):
                    ops.append(("exp", "v_exp_f32 v%d, v%d" % (s_+2*h, s_+2*h)))
                    ops.append(("exp", "v_exp_f32 v%d, v%d" % (s_+2*h+1, s_+2*h+1)))
                    ops.append(("cvt", "v_cvt_pk_bf16_f32 v%d, v%d, v%d" % (Preg(par, qt)+2*kt2+h, s_+2*h, s_+2*h+1)))
        return ops
    pfn = [0]
    def pf_load():
        return None
    def step(j, qk, pv, pvfirst, sm, dma, rd_k, rd_v, rel, adj, dmatag=None, pf=None, hs_=None):
        par = j & 1
        mf = []
        kpos = {}; vpos = {}
        if qk:
            mf += qk_mfmas(1-par, False)
            for f in range(8): kpos[f] = 4*f + 3
        n0 = len(mf)
        if pv:
            mf += pv_mfmas(1-par, pvfirst)
            for f in range(8): vpos[f] = n0 + 4*f + 3
        n = len(mf)
        sc = Sched(mf)
        lastrd = 0
        if rd_k:
            for f in range(8): lastrd = max(lastrd, sc.put(kread(f, rel), kpos[f], force_gap=kpos[f]))
        if rd_v:
            for f in range(8):
                g = vpos.get(f, None)
                lastrd = max(lastrd, sc.put(vread(f, rel), g if g is not None else 4*f+1, force_gap=g))
        if dma:
            grps, advs = kv_dma()
            pos = 1
            for grp in grps:
                g = sc.put(Ins(grp[-1], tag=tagkv(grp[-1], dmatag)), pos)
                for t in grp[:-1]: sc.scalar(t, g-1)
                pos = g + 12
            for q, t in enumerate(advs): sc.scalar(t, min(n-1, pos - 10 + 2*q))
        if pf is not None:
            for q, (srd_, sreg) in enumerate(pf):
                g = sc.put(Ins("buffer_load_dwordx4 a[148:151], v%d, s[%d:%d], s%d offen%s" % (V_XO, srd_, srd_+3, sreg, " nt" if pfnt else ""), tag="pf"), 8 + 30*q)
                if (srd_, sreg) != (SRD_WQ, S_Q) or pf3: sc.scalar("s_add_u32 s%d, s%d, 1024" % (sreg, sreg), g)
        if hs_ is not None:
            for q, h_ in enumerate(hs_ if isinstance(hs_[0], list) else [hs_]):
                g = sc.put(Ins(h_[1]), 20 + 26*q)
                sc.scalar(h_[0], g-1)
        if adj:
            g = sc.put("v_add_u32 v%d, %d, v%d" % (V_KV, 2*KV_SLOT, V_KV), lastrd+1)
            sc.put("v_and_b32 v%d, 0x1ffff, v%d" % (V_KV, V_KV), g+1)
        if sm:
            pos = 0
            for kind, t in softmax_ops(par):
                g = sc.put(t, pos)
                pos = g if kind == "cvt" else g + (0 if False else 0)
                pos = g + 1 if kind == "exp" else g
        sc.emit(p)
    e("v_mov_b32 v%d, v%d" % (V_KV, V_XO))
    e("v_mov_b32 v%d, 0x3f803f80" % V_T0)
    for r in range(4): e("v_accvgpr_write_b32 a%d, v%d" % (ONES+r, V_T0))
    p.waitvm(("kv", 2)); p.waitvm(("kv", 1)); p.waitvm(("kv", 0))
    e("s_barrier")
    for f in range(8): e(kread(f, 0))
    for t in late[:24]: e(t)
    sc = Sched(qk_mfmas(0, True))
    for f in range(8): sc.put(kread(f, 1), 4*f+3, force_gap=4*f+3)
    for q, t in enumerate(late[24:]): sc.put(t, 0, force_gap=(q*32)//max(1, len(late) - 24))
    sc.emit(p)
    e("v_add_u32 v%d, %d, v%d" % (V_KV, 2*KV_SLOT, V_KV))
    def rowmax(qt, t0, t1):
        a, b = Sreg(0, 0, qt), Sreg(0, 1, qt)
        e("v_max3_f32 v%d, v%d, v%d, v%d" % (t0, a, a+1, a+2))
        e("v_max3_f32 v%d, v%d, v%d, v%d" % (t1, a+3, b, b+1))
        e("v_max3_f32 v%d, v%d, v%d, v%d" % (t0, t0, b+2, b+3))
        e("v_max_f32 v%d, v%d, v%d" % (t0, t0, t1))
    tm = [V_T0, V_T1, V_T2, V_T3]; tn = [251, 252, 253, 254]
    for qt in range(4): rowmax(qt, tm[qt], tn[qt])
    for qt in range(4): e("v_mov_b32 v%d, v%d" % (tn[qt], tm[qt]))
    for qt in range(4): e("v_permlane32_swap_b32 v%d, v%d" % (tm[qt], tn[qt]))
    for qt in range(4): e("v_max_f32 v%d, v%d, v%d" % (tm[qt], tm[qt], tn[qt]))
    for qt in range(4): e("v_mov_b32 v%d, v%d" % (tn[qt], tm[qt]))
    for qt in range(4): e("v_permlane16_swap_b32 v%d, v%d" % (tm[qt], tn[qt]))
    for qt in range(4): e("v_max_f32 v%d, v%d, v%d" % (tm[qt], tm[qt], tn[qt]))
    for qt in range(4):
        for r in range(4): e("v_sub_f32 v%d, 0, v%d" % (negm(qt)+r, tm[qt]))
    for qt in range(4):
        a, b = Sreg(0, 0, qt), Sreg(0, 1, qt)
        for r in range(4):
            e("v_sub_f32 v%d, v%d, v%d" % (a+r, a+r, tm[qt]))
            e("v_sub_f32 v%d, v%d, v%d" % (b+r, b+r, tm[qt]))
    stamp1()
    PO, P2 = [(SRD_PO, S_PF0)], [(SRD_P2, S_PF1)]
    if pf3 == 1: PO.append((SRD_W1, S_1)); P2.append((SRD_WQ, S_Q))
    pfs = lambda x: x if (pf2 and not pfg) else ([y for y in x if y not in PO[:1] + P2[:1]] or None)
    NPF = (2 if pf3 == 1 else 1) if (pf2 and not pfg) else 0
    if codepf & 4: code_srd(p, SRD_WQ, S_Q, START)
    CP = [(SRD_WQ, S_Q)] if codepf & 4 else []
    NH = 1 if hspread else 0
    NV = 4 + NPF + NH
    H = (lambda j: hstores[j]) if hspread else (lambda j: None)
    nh = [NH]*16
    if gearly:
        assert hspread and one
        nh = [2]*8 + [0]*8
        first = [sum(nh[:j]) for j in range(17)]
        H = lambda j: ([hstores[i] for i in range(first[j], first[j+1])] or None)
    nv = [(4 if j <= 13 else 0) + (NPF if j <= 14 else 0) + nh[j] for j in range(16)]
    step(0, True, False, False, True, True, True, True, 0, False, dmatag=7, pf=pfs(PO), hs_=H(0))
    p.waitvm(("kv", 4)); p.waitvm(("kv", 3))
    e("s_barrier")
    step(1, True, True, True, True, True, True, True, 1, True, dmatag=8, pf=pfs(P2), hs_=H(1))
    if not hspread:
        e("s_mov_b32 s%d, 6" % S_CNT)
        p.loop_begin("at")
        e("%s_at:" % name)
        step(2, True, True, False, True, True, True, True, 0, False, pf=pfs(PO))
        e("s_waitcnt vmcnt(%d)" % (3*NV))
        e("s_barrier")
        step(3, True, True, False, True, True, True, True, 1, True, pf=pfs(P2))
        e("s_sub_u32 s%d, s%d, 1" % (S_CNT, S_CNT))
        e("s_cmp_lg_u32 s%d, 0" % S_CNT)
        e("s_cbranch_scc1 %s_at" % name)
        p.loop_end()
    else:
        for j in range(2, 14, 2):
            step(j, True, True, False, True, True, True, True, 0, False, pf=pfs(PO + (CP if j in (4, 10) else [])), hs_=H(j))
            e("s_waitcnt vmcnt(%d)" % (nv[j] + nv[j-1] + nv[j-2]))
            e("s_barrier")
            if gearly and j == 10:
                e("s_cmp_lg_u32 s%d, 0" % S_WAVE)
                e("s_cbranch_scc1 %s_fh" % name)
                e("s_add_u32 s%d, s101, 0x%x" % (S_T0, (WS_FDW - WS_FD) & 0xffffffff))
                e("v_mov_b32 v%d, 0\nv_mov_b32 v%d, s100" % (V_T1, V_T2))
                e("s_mov_b64 exec, 1")
                e("buffer_store_dword v%d, v%d, s[%d:%d], s%d offen sc1" % (V_T2, V_T1, SRD_WS, SRD_WS+3, S_T0), tag="optional")
                e("s_mov_b64 exec, -1")
                e("%s_fh:" % name)
            step(j+1, True, True, False, True, True, True, True, 1, True, pf=pfs(P2), hs_=H(j+1))
    step(14, True, True, False, True, False, False, True, 0, False, pf=pfs(PO), hs_=H(14))
    e("s_waitcnt vmcnt(%d)" % ((nv[14] + nv[13] + nv[12] + nv[11]) if hspread else (3*NV + NPF + NH)))
    e("s_barrier")
    step(15, False, True, False, True, False, False, True, 1, False, hs_=H(15))
    if gearly:
        e("s_cmp_lg_u32 s%d, 0" % S_WAVE)
        e("s_cbranch_scc1 %s_fc" % name)
        e("s_and_b32 s%d, s2, 3\ns_lshl_b32 s%d, s%d, 1\ns_bfe_u32 s%d, s2, 0x10003\ns_add_u32 s%d, s%d, s%d\ns_lshl_b32 s%d, s%d, 12" % (S_T0, S_T0, S_T0, S_T1, S_T0, S_T0, S_T1, S_T0, S_T0))
        e("s_lshr_b32 s%d, s2, 7\ns_lshl_b32 s%d, s%d, 11\ns_add_u32 s%d, s%d, s%d\ns_add_u32 s%d, s%d, 0x%x" % (S_T1, S_T1, S_T1, S_T0, S_T0, S_T1, S_T0, S_T0, WS_FDW))
        e("v_lshlrev_b32 v%d, 7, v%d" % (V_T3, V_TID))
        e("s_mov_b64 exec, 0xffff")
        e("buffer_load_dword v252, v%d, s[%d:%d], s%d offen sc1" % (V_T3, SRD_WS, SRD_WS+3, S_T0), tag="optional")
        e("s_mov_b64 exec, -1")
        e("%s_fc:" % name)
    def check_list():
        c = ["v_accvgpr_read_b32 v%d, a%d" % (negm(qt), Lacc(qt)) for qt in range(4)]
        c += ["s_mov_b32 s%d, 0x%x" % (S_T0, f2u(2.0**thr_log2) if not force_slow else 0),
              "v_max3_f32 v%d, v%d, v%d, v%d" % (V_T0, negm(0), negm(1), negm(2)),
              "v_cmp_gt_f32 vcc, s%d, v%d" % (S_T0, V_T0),
              "v_cmp_gt_f32 s[62:63], s%d, v%d" % (S_T0, negm(3)),
              "s_and_b64 vcc, vcc, s[62:63]",
              "v_cmp_o_f32 s[62:63], v%d, v%d" % (negm(0), negm(1)),
              "s_and_b64 vcc, vcc, s[62:63]",
              "v_cmp_o_f32 s[62:63], v%d, v%d" % (negm(2), negm(3)),
              "s_and_b64 vcc, vcc, s[62:63]",
              "s_cmp_eq_u64 vcc, -1",
              "s_cbranch_scc0 %s_slow" % name]
        return c
    def rcp_list():
        c = ["v_rcp_f32 v%d, v%d" % (negm(qt)+2, negm(qt)) for qt in range(4)]
        for qt in range(4):
            c += ["v_fma_f32 v%d, -v%d, v%d, 2.0" % (negm(qt)+1, negm(qt), negm(qt)+2), "v_mul_f32 v%d, v%d, v%d" % (negm(qt)+2, negm(qt)+1, negm(qt)+2),
                  "v_mov_b32 v%d, v%d" % (negm(qt)+3, negm(qt)+2)]
        return c
    def oepi_list(qt, tag="ost"):
        c = []
        iv = negm(qt)+2
        for u in range(4):
            a_, b_ = Oacc(2*u, qt), Oacc(2*u+1, qt)
            for h in range(2):
                c.append("v_pk_mul_f32 v[%d:%d], v[%d:%d], v[%d:%d]" % (a_+2*h, a_+2*h+1, a_+2*h, a_+2*h+1, iv, iv+1))
                c.append("v_pk_mul_f32 v[%d:%d], v[%d:%d], v[%d:%d]" % (b_+2*h, b_+2*h+1, b_+2*h, b_+2*h+1, iv, iv+1))
            c += ["v_cvt_pk_bf16_f32 v%d, v%d, v%d" % (a_, a_, a_+1), "v_cvt_pk_bf16_f32 v%d, v%d, v%d" % (a_+1, a_+2, a_+3),
                  "v_cvt_pk_bf16_f32 v%d, v%d, v%d" % (a_+2, b_, b_+1), "v_cvt_pk_bf16_f32 v%d, v%d, v%d" % (a_+3, b_+2, b_+3)]
            off = (qt >> 1)*OF_RP + (qt & 1)*1024 + u*2048
            c.append("s_add_u32 s%d, s%d, %d" % (S_T0, S_OB, off))
            c.append(Ins("buffer_store_dwordx4 v[%d:%d], v%d, s[%d:%d], s%d offen%s" % (a_, a_+3, V_XO, SRD_WS, SRD_WS+3, S_T0, SCO), tag=tag))
        return c
    def emit_list(c):
        for t in c:
            if isinstance(t, Ins): p.add(t)
            else: e(t)
    if oint:
        pv = pv_mfmas(1, False)
        for ins in pv[32:]: p.add(ins)
        def mix(mf, fill):
            per = -(-len(fill)//len(mf))
            for i_, m_ in enumerate(mf):
                p.add(m_); emit_list(fill[i_*per:(i_+1)*per])
        tile = lambda qt: [pv[4*dt + qt] for dt in range(8)]
        for m_ in tile(0)[:3]: p.add(m_)
        st.stamp()
        mix(tile(0)[3:], check_list() + rcp_list())
        for qt in range(3): mix(tile(qt+1), oepi_list(qt))
        emit_list(oepi_list(3))
        e("%s_oend:" % name)
    else:
        step(16, False, True, False, False, False, False, False, 0, False)
        st.stamp()
        emit_list(check_list())
        e("%s_oepi:" % name)
        emit_list(rcp_list())
        for qt in range(4): emit_list(oepi_list(qt))
    if diag0: st.on = True
    if one:
        p.waitvm(("kv", None))
        tail(p, st)
    else:
        st.stamp()
        if tl: tl_end(p)
        if stamps:
            e("s_waitcnt vmcnt(0)")
            st.stamp(); st.stamp(True)
            st.dump(SRD_WS, V_T0, 1)
    e("s_endpgm")
    e("%s_slow:" % name)
    e("s_nop 15")
    e("s_waitcnt vmcnt(0) lgkmcnt(0)")
    for i in range(128): e("v_mov_b32 v%d, 0" % i)
    e("v_mov_b32 v%d, 0" % V_T0)
    for qt in range(4):
        for r in range(4): e("v_accvgpr_write_b32 a%d, v%d" % (Lacc(qt)+r, V_T0))
    M = [232, 233, 234, 235]
    for qt in range(4): e("v_mov_b32 v%d, 0xff7fffff" % M[qt])
    e("s_add_u32 s%d, s%d, %d" % (S_KS, S_KVR, WS_KP))
    e("s_add_u32 s%d, s%d, %d" % (S_RP, S_KVR, WS_VP))
    e("s_mov_b32 s%d, 16" % S_CNT)
    e("%s_sl:" % name)
    for f in range(8):
        e("s_add_u32 s%d, s%d, %d" % (S_T0, S_KS, f*1024))
        e("buffer_load_dwordx4 a[%d:%d], v%d, s[%d:%d], s%d offen" % (Kf(f//4, f % 4), Kf(f//4, f % 4)+3, V_XO, SRD_WS, SRD_WS+3, S_T0) + SC)
    for f in range(8):
        e("s_add_u32 s%d, s%d, %d" % (S_T0, S_RP, f*1024))
        e("buffer_load_dwordx4 a[%d:%d], v%d, s[%d:%d], s%d offen" % (Vf(f), Vf(f)+3, V_XO, SRD_WS, SRD_WS+3, S_T0) + SC)
    e("s_waitcnt vmcnt(0)")
    for ins in qk_mfmas(0, True): p.add(ins)
    e("s_nop 15")
    for qt in range(4):
        t0, t1, al = V_T0, V_T1, V_T2
        rowmax(qt, t0, t1)
        e("v_mov_b32 v%d, v%d" % (t1, t0))
        e("v_permlane32_swap_b32 v%d, v%d" % (t0, t1))
        e("v_max_f32 v%d, v%d, v%d" % (t0, t0, t1))
        e("v_mov_b32 v%d, v%d" % (t1, t0))
        e("v_permlane16_swap_b32 v%d, v%d" % (t0, t1))
        e("v_max3_f32 v%d, v%d, v%d, v%d" % (t0, t0, t1, M[qt]))
        e("v_sub_f32 v%d, v%d, v%d" % (al, M[qt], t0))
        e("v_exp_f32 v%d, v%d" % (al, al))
        e("v_mov_b32 v%d, v%d" % (M[qt], t0))
        a, b = Sreg(0, 0, qt), Sreg(0, 1, qt)
        for r in range(4):
            e("v_sub_f32 v%d, v%d, v%d" % (a+r, a+r, t0)); e("v_sub_f32 v%d, v%d, v%d" % (b+r, b+r, t0))
        for r in range(4):
            e("v_exp_f32 v%d, v%d" % (a+r, a+r)); e("v_exp_f32 v%d, v%d" % (b+r, b+r))
        e("v_cvt_pk_bf16_f32 v%d, v%d, v%d" % (Preg(0, qt), a, a+1))
        e("v_cvt_pk_bf16_f32 v%d, v%d, v%d" % (Preg(0, qt)+1, a+2, a+3))
        e("v_cvt_pk_bf16_f32 v%d, v%d, v%d" % (Preg(0, qt)+2, b, b+1))
        e("v_cvt_pk_bf16_f32 v%d, v%d, v%d" % (Preg(0, qt)+3, b+2, b+3))
        for dt in range(8):
            for r in range(4): e("v_mul_f32 v%d, v%d, v%d" % (Oacc(dt, qt)+r, Oacc(dt, qt)+r, al))
        e("v_accvgpr_read_b32 v%d, a%d" % (t1, Lacc(qt)))
        e("v_mul_f32 v%d, v%d, v%d" % (t1, t1, al))
        e("v_accvgpr_write_b32 a%d, v%d" % (Lacc(qt), t1))
    e("s_nop 3")
    for ins in pv_mfmas(0, False): p.add(ins)
    e("s_nop 15")
    e("s_add_u32 s%d, s%d, 8192" % (S_KS, S_KS))
    e("s_add_u32 s%d, s%d, 8192" % (S_RP, S_RP))
    e("s_sub_u32 s%d, s%d, 1" % (S_CNT, S_CNT))
    e("s_cmp_lg_u32 s%d, 0" % S_CNT)
    e("s_cbranch_scc1 %s_sl" % name)
    for qt in range(4):
        e("v_accvgpr_read_b32 v%d, a%d" % (negm(qt), Lacc(qt)))
    if oint:
        emit_list(rcp_list())
        for qt in range(4): emit_list(oepi_list(qt, tag=None))
        e("s_branch %s_oend" % name)
    else:
        e("s_branch %s_oepi" % name)
    e("%s_done:" % name)
    e("s_endpgm")
    return p
```

```python
import sys
from asmgen import *
from kern import *

IMG = 8448
def k2(name, DW=6, DA=3, BAR=2, stamps=False, slack=6, xnt=True, noact=False, now=False, tl=False, force_far=False, cmap=0, diag=0, exld=' sc1', exst='', PT=0, xlate=0, p=None, st=None, psleep=2, codepf=0, start=None, skew=0, ep2=0, wflag=0, osc='', dg=0, small=0, gpk=0, half16=0, spr=0, gearly=0, lds_word=0):
    one = p is not None
    if not one:
        p = Prog(); st = Stamps(p, stamps)
    else: stamps = st.on
    e = p.e
    SCA = " sc1" if one else ""
    p.lg_slack = slack
    U = 8
    assert BAR < DW <= U - BAR or (now and noact)
    def acc(nt, i): return 16*nt + 4*i
    V_PRE = 192
    R = 128
    V_TID, V_TR0, V_SP, V_DW, V_XA, V_XO, V_T0, V_T1, V_T2, V_T3, V_RM, V_DW2, V_FLAG, V_G8, V_LW, V_LR, V_Z = range(224, 241)
    V_PX = 242
    V_B2 = 246 if xlate == 2 else V_PRE
    S_TAG = 100
    def wfrag(nt): return 4*nt
    def afrag(ss, i): return 32 + 16*(ss % U) + 4*i
    S_WAVE = 3
    SRD_W, SRD_WS, SRD_X, SRD_OUT, SRD_A0, SRD_A1 = 8, 12, 16, 20, 56, 96
    S_A, S_W, S_MB, S_T0, S_T1, S_ROLE, S_RT, S_CT, S_CNT, S_KH, S_G, S_PAIR, S_XB, S_EXO, S_AB, S_FG, S_FP, S_FPP = 28, 29, 30, 31, 32, 33, 34, 35, 36, 37, 38, 39, 50, 51, 55, 60, 61, 62
    S_COL, S_EXI, S_FXP, S_XCC, S_NU, S_PT, S_4K = 90, 88, 89, 91, 92, 93, 94
    SRD_EX = 24
    A_PF = 192
    if not one:
        e("s_cmp_ge_u32 s2, 256")
        e("s_cbranch_scc1 %s_done" % name)
        st.stamp(True); st.stamp()
        if tl: tl_start(p)
        e("s_mov_b32 s%d, 1" % S_TAG)
    else:
        st.stamp()
    e("s_load_dwordx2 s[4:5], s[0:1], %d" % KA['wo'])
    e("s_load_dwordx4 s[40:43], s[0:1], %d" % KA['w2'])
    e("s_load_dwordx2 s[44:45], s[0:1], %d" % KA['out'])
    e("s_load_dwordx2 s[6:7], s[0:1], %d" % KA['ws'])
    e("s_load_dwordx2 s[48:49], s[0:1], %d" % KA['x'])
    e("s_getreg_b32 s%d, hwreg(HW_REG_XCC_ID, 0, 4)" % S_XCC)
    if not one:
        e("v_lshrrev_b32 v%d, 6, v0" % V_T0)
        e("v_and_b32 v%d, 63, v0" % V_TID)
        e("v_readfirstlane_b32 s%d, v%d" % (S_WAVE, V_T0))
    else:
        e("v_mov_b32 v%d, v240" % V_TID)
    e("s_bfe_u32 s%d, s2, 0x10002" % S_ROLE)
    e("s_and_b32 s%d, s2, 3" % S_T0)
    e("s_lshr_b32 s%d, s2, 3" % S_T1)
    e("s_lshr_b32 s%d, s2, 7" % S_KH)
    if cmap == 0:
        e("s_lshl_b32 s%d, s%d, 1" % (S_RT, S_T0))
        e("s_and_b32 s%d, s%d, 1" % (S_CT, S_T1))
        e("s_add_u32 s%d, s%d, s%d" % (S_RT, S_RT, S_CT))
        e("s_bfe_u32 s%d, s%d, 0x30001" % (S_CT, S_T1))
    else:
        e("s_lshr_b32 s%d, s%d, 1" % (S_RT, S_T0))
        e("s_lshl_b32 s%d, s%d, 2" % (S_RT, S_RT))
        e("s_and_b32 s%d, s%d, 3" % (S_CT, S_T1))
        e("s_add_u32 s%d, s%d, s%d" % (S_RT, S_RT, S_CT))
        e("s_and_b32 s%d, s%d, 1" % (S_CT, S_T0))
        e("s_lshl_b32 s%d, s%d, 2" % (S_CT, S_CT))
        e("s_bfe_u32 s%d, s%d, 0x20002" % (S_T0, S_T1))
        e("s_add_u32 s%d, s%d, s%d" % (S_CT, S_CT, S_T0))
    e("s_lshl_b32 s%d, s%d, 3" % (S_PAIR, S_RT))
    e("s_add_u32 s%d, s%d, s%d" % (S_PAIR, S_PAIR, S_CT))
    e("s_lshl_b32 s%d, s%d, 1" % (S_PAIR, S_PAIR))
    e("s_add_u32 s%d, s%d, s%d" % (S_PAIR, S_PAIR, S_KH))
    e("v_lshrrev_b32 v%d, 4, v%d" % (V_T0, V_TID))
    e("v_and_b32 v%d, 15, v%d" % (V_T1, V_TID))
    e("v_lshlrev_b32 v%d, 14, v%d" % (V_DW, V_T0))
    e("s_lshl_b32 s%d, s%d, 3" % (S_T0, S_KH))
    e("v_xor_b32 v%d, s%d, v%d" % (V_T2, S_T0, V_T1))
    e("v_lshl_add_u32 v%d, v%d, 4, v%d" % (V_DW, V_T2, V_DW))
    e("v_and_b32 v%d, 1, v%d" % (V_T2, V_T0))
    e("v_lshlrev_b32 v%d, 2, v%d" % (V_T2, V_T2))
    e("v_bfe_u32 v%d, v%d, 2, 2" % (V_T3, V_TID))
    e("v_add_u32 v%d, v%d, v%d" % (V_T2, V_T2, V_T3))
    e("v_mul_u32_u24 v%d, 1056, v%d" % (V_TR0, V_T2))
    e("v_lshrrev_b32 v%d, 1, v%d" % (V_T2, V_T0))
    e("v_lshl_add_u32 v%d, v%d, 8, v%d" % (V_TR0, V_T2, V_TR0))
    e("v_and_b32 v%d, 3, v%d" % (V_T2, V_TID))
    e("v_lshl_add_u32 v%d, v%d, 3, v%d" % (V_TR0, V_T2, V_TR0))
    e("v_add_u32 v%d, %d, v%d" % (V_DW2, 2048-1056, V_DW))
    e("v_lshlrev_b32 v%d, 4, v%d" % (V_XO, V_TID))
    e("v_lshlrev_b32 v%d, 3, v%d" % (V_G8, V_T0))
    e("v_mov_b32 v%d, 0" % V_Z)
    e("v_mov_b32 v%d, 0" % V_FLAG)
    e("v_mov_b32 v%d, 0" % V_PX)
    e("s_waitcnt lgkmcnt(0)")
    if gearly:
        assert one and skew and xlate == 2 and not (wflag & 1) and cmap == 0
        e("s_cmp_lg_u32 s%d, 0" % S_WAVE)
        e("s_cbranch_scc1 %s_dec" % name)
        p.add(RawWait("s_waitcnt vmcnt(16)"))
        e("s_mov_b64 exec, 0xffff")
        e("v_cmp_ne_u32 vcc, s%d, v252" % S_TAG)
        e("s_mov_b64 exec, -1")
        e("s_cmp_eq_u64 vcc, 0")
        e("s_cselect_b32 s63, 1, 0")
        e("s_cmp_eq_u32 s%d, 0" % S_ROLE)
        e("s_cselect_b32 s63, s63, 0")
        e("v_mov_b32 v%d, s63" % V_T2)
        e("v_mov_b32 v%d, %d" % (V_T3, lds_word))
        e("ds_write_b32 v%d, v%d" % (V_T3, V_T2))
        e("s_waitcnt lgkmcnt(0)")
        e("%s_dec:" % name)
    if one: e("s_barrier")
    if gearly:
        e("v_mov_b32 v%d, %d" % (V_T3, lds_word))
        e("ds_read_b32 v%d, v%d" % (V_T2, V_T3))
        e("v_readfirstlane_b32 s63, v%d" % V_T2)
    def sel(d, x, y):
        e("s_mov_b32 s%d, 0x%x" % (d, y))
        e("s_cselect_b32 s%d, 0x%x, s%d" % (d, x, d))
    e("s_cmp_eq_u32 s%d, 1" % S_ROLE)
    e("s_cselect_b32 s%d, s4, s40" % SRD_W)
    e("s_cselect_b32 s%d, s5, s41" % (SRD_W+1))
    sel(SRD_W+2, 8 << 20, 7 << 20)
    e("s_mov_b32 s%d, 0x20000" % (SRD_W+3))
    sel(S_NU, 64*2048, 56*2048)
    sel(S_T1, OF_RP, HF_RP)
    sel(S_AB, WS_OF, WS_HF)
    e("s_cselect_b32 s%d, %d, %d" % (S_CNT, 8 - skew, 7 - skew))
    e("s_cselect_b32 s%d, s48, s42" % SRD_X)
    e("s_cselect_b32 s%d, s49, s43" % (SRD_X+1))
    sel(SRD_X+2, 4 << 20, 2048)
    e("s_mov_b32 s%d, 0x20000" % (SRD_X+3))
    e("s_lshl_b32 s%d, s%d, 2" % (S_T0, S_RT))
    e("s_add_u32 s%d, s%d, s%d" % (S_T0, S_T0, S_WAVE))
    e("s_lshl_b32 s%d, s%d, 1" % (S_T0, S_T0))
    e("s_mul_i32 s%d, s%d, s%d" % (S_A, S_T0, S_T1))
    e("s_add_u32 s%d, s%d, s%d" % (S_A, S_A, S_AB))
    e("s_mul_i32 s%d, s%d, s%d" % (S_T0, S_KH, S_NU))
    e("s_add_u32 s%d, s%d, s%d" % (S_A, S_A, S_T0))
    e("s_add_u32 s%d, s6, s%d" % (SRD_A0, S_A))
    e("s_addc_u32 s%d, s7, 0" % (SRD_A0+1))
    e("s_mov_b32 s%d, s%d" % (SRD_A0+2, S_NU))
    e("s_mov_b32 s%d, 0x20000" % (SRD_A0+3))
    e("s_add_u32 s%d, s%d, s%d" % (SRD_A1, SRD_A0, S_T1))
    e("s_addc_u32 s%d, s%d, 0" % (SRD_A1+1, SRD_A0+1))
    e("s_mov_b32 s%d, s%d" % (SRD_A1+2, S_NU))
    e("s_mov_b32 s%d, 0x20000" % (SRD_A1+3))
    e("s_mov_b32 s%d, 0" % S_A)
    e("s_lshl_b32 s%d, s%d, 5" % (S_T0, S_NU))
    e("s_mul_i32 s%d, s%d, s%d" % (S_T1, S_T0, S_KH))
    e("s_add_u32 s%d, s%d, s%d" % (SRD_W, SRD_W, S_T1))
    e("s_addc_u32 s%d, s%d, 0" % (SRD_W+1, SRD_W+1))
    e("s_mov_b32 s%d, s%d" % (SRD_W+2, S_T0))
    e("s_lshl_b32 s%d, s%d, 8" % (S_W, S_CT))
    e("s_lshl_b32 s%d, s%d, 7" % (S_T0, S_KH))
    e("s_add_u32 s%d, s%d, s%d" % (S_COL, S_W, S_T0))
    e("s_lshl_b32 s%d, s%d, 12" % (S_T0, S_WAVE))
    e("s_add_u32 s%d, s%d, s%d" % (S_W, S_W, S_T0))
    e("s_mul_i32 s%d, s%d, %d" % (S_MB, S_WAVE, 2*1056))
    def dma_step(slot):
        b = slot*IMG
        return [["s_add_u32 m0, s%d, %d" % (S_MB, b), "buffer_load_dwordx4 v%d, s[%d:%d], s%d offen lds" % (V_DW, SRD_W, SRD_W+3, S_W)],
                ["buffer_load_dwordx4 v%d, s[%d:%d], s%d offen offset:1056 lds" % (V_DW2, SRD_W, SRD_W+3, S_W)]]
    adv_w = "s_add_u32 s%d, s%d, %d" % (S_W, S_W, 32*2048)
    def a_loads(ss, so=S_A):
        return ["buffer_load_dwordx4 a[%d:%d], v%d, s[%d:%d], s%d offen offset:%d" % (afrag(ss, i), afrag(ss, i)+3, V_XO, SRD_A0 if i < 2 else SRD_A1, (SRD_A0 if i < 2 else SRD_A1)+3, so, (i & 1)*1024) + SCA for i in range(4)]
    adv_a = "s_add_u32 s%d, s%d, 2048" % (S_A, S_A)
    def tr_reads(ss, nt):
        return ["ds_read_b64_tr_b16 a[%d:%d], v%d offset:%d" % (wfrag(nt)+2*t, wfrag(nt)+2*t+1, V_TR0, (ss % U)*IMG + nt*32 + t*512) for t in range(2)]
    setup = []
    setup += ["s_mov_b32 s%d, s6" % SRD_WS, "s_mov_b32 s%d, s7" % (SRD_WS+1), "s_mov_b32 s%d, 0x%x" % (SRD_WS+2, WS_SIZE), "s_mov_b32 s%d, 0x20000" % (SRD_WS+3)]
    setup += ["s_mov_b32 s%d, s44" % SRD_OUT, "s_mov_b32 s%d, s45" % (SRD_OUT+1), "s_mov_b32 s%d, 0x400000" % (SRD_OUT+2), "s_mov_b32 s%d, 0x20000" % (SRD_OUT+3)]
    setup += ["s_lshl_b32 s%d, s%d, 15" % (S_G, S_PAIR), "s_lshl_b32 s%d, s%d, 13" % (S_T0, S_WAVE), "s_add_u32 s%d, s%d, s%d" % (S_G, S_G, S_T0), "s_add_u32 s%d, s%d, 0x%x" % (S_G, S_G, WS_G)]
    setup += ["s_lshl_b32 s%d, s%d, 19" % (S_XB, S_RT), "s_lshl_b32 s%d, s%d, 17" % (S_T0, S_WAVE), "s_add_u32 s%d, s%d, s%d" % (S_XB, S_XB, S_T0),
              "s_add_u32 s%d, s%d, s%d" % (S_XB, S_XB, S_COL)]
    if wflag & 2:
        setup += ["s_lshl_b32 s%d, s%d, 2" % (S_FG, S_PAIR), "s_add_u32 s%d, s%d, s%d" % (S_FG, S_FG, S_WAVE)]
    else:
        setup += ["s_mov_b32 s%d, s%d" % (S_FG, S_PAIR)]
    setup += ["s_lshl_b32 s%d, s%d, 7" % (S_FG, S_FG), "s_add_u32 s%d, s%d, 0x%x" % (S_FG, S_FG, WS_F2 + 5*F2_STRIDE),
              "s_lshl_b32 s%d, s2, 7" % S_FP, "s_xor_b32 s%d, s%d, %d" % (S_FPP, S_FP, 128 << 7),
              "s_add_u32 s%d, s%d, 0x%x" % (S_FXP, S_FPP, WS_F2), "s_add_u32 s%d, s%d, 0x%x" % (S_T1, S_FP, WS_F2),
              "s_mul_i32 s%d, s%d, %d" % (S_T0, S_WAVE, F2_STRIDE), "s_add_u32 s%d, s%d, 0x%x" % (S_T0, S_T0, WS_F2 + F2_STRIDE),
              "s_add_u32 s%d, s%d, s%d" % (S_FP, S_FP, S_T0), "s_add_u32 s%d, s%d, s%d" % (S_FPP, S_FPP, S_T0),
              "v_mov_b32 v%d, s%d" % (V_PX+2, S_TAG), "v_mov_b32 v%d, s%d" % (V_PX+3, S_XCC)]
    setup += ["s_mul_i32 s%d, s2, %d" % (S_EXO, EX_STRIDE), "s_xor_b32 s%d, s2, 128" % S_EXI, "s_mul_i32 s%d, s%d, %d" % (S_EXI, S_EXI, EX_STRIDE),
              "s_lshl_b32 s%d, s%d, 13" % (S_T0, S_WAVE), "s_add_u32 s%d, s%d, 0x%x" % (S_T0, S_T0, WS_EX),
              "s_add_u32 s%d, s%d, s%d" % (S_EXO, S_EXO, S_T0), "s_add_u32 s%d, s%d, s%d" % (S_EXI, S_EXI, S_T0),
              "s_add_u32 s%d, s6, s%d" % (SRD_EX, S_EXO), "s_addc_u32 s%d, s7, 0" % (SRD_EX+1), "s_mov_b32 s%d, 8192" % (SRD_EX+2), "s_mov_b32 s%d, 0x20000" % (SRD_EX+3),
              "s_lshl_b32 s%d, s%d, 13" % (S_PT, S_CNT), "s_sub_u32 s%d, %d, s%d" % (S_PT, PT*1024, S_PT), "s_mov_b32 s%d, 4096" % S_4K]
    setup += ["v_lshlrev_b32 v%d, 11, v%d" % (V_RM, V_T1), "v_and_b32 v%d, 1, v%d" % (V_T2, V_T0), "v_lshl_add_u32 v%d, v%d, 5, v%d" % (V_RM, V_T2, V_RM),
              "v_lshrrev_b32 v%d, 1, v%d" % (V_T2, V_T0), "v_lshl_add_u32 v%d, v%d, 4, v%d" % (V_RM, V_T2, V_RM)]
    setup += ["v_mov_b32 v%d, 0" % i for i in range(128)]
    NP = max(DW, DA)
    seqs = []
    for ss in range(NP):
        if ss < DW:
            for grp in dma_step(ss): seqs.append([(t, ("w", ss) if t.startswith("buffer") else None) for t in grp])
            seqs[-1].append((adv_w, None))
        if ss < DA and not one:
            for t in a_loads(ss): seqs.append([(t, None)])
            seqs[-1].append((adv_a, None))
    per = -(-len(setup)//(len(seqs)-1)); ii = 0
    for grp in seqs:
        for t, tg in grp: e(t, tag=tg)
        for t in setup[ii:ii+per]: e(t)
        ii += per
    for t in setup[ii:]: e(t)
    if one and (wflag & 1):
        p.waitvm("ost")
        e("s_lshl_b32 s52, s%d, 15" % S_WAVE)
        e("s_add_u32 s53, s101, s52")
        e("s_mov_b64 exec, 1")
        e("buffer_store_dword v%d, v%d, s[%d:%d], s53 offen sc1" % (V_PX+2, V_Z, SRD_WS, SRD_WS+3))
        e("s_mov_b64 exec, 0xffff")
        e("v_lshlrev_b32 v%d, 7, v%d" % (V_T3, V_TID))
        e("s_lshl_b32 s53, s%d, 12" % S_RT)
        e("s_add_u32 s52, s52, s53")
        e("s_lshl_b32 s53, s%d, 11" % S_KH)
        e("s_add_u32 s52, s52, s53")
        e("s_add_u32 s52, s52, 0x%x" % WS_FDW)
        e("s_mov_b32 s53, 0x80000")
        e("%s_fdp:" % name)
        e("buffer_load_dword v%d, v%d, s[%d:%d], s52 offen sc1" % (V_T2, V_T3, SRD_WS, SRD_WS+3))
        e("s_waitcnt vmcnt(0)")
        e("v_cmp_ne_u32 vcc, s%d, v%d" % (S_TAG, V_T2))
        e("s_cbranch_vccz %s_fdq" % name)
        if psleep: e("s_sleep %d" % psleep)
        e("s_sub_u32 s53, s53, 1")
        e("s_cmp_lg_u32 s53, 0")
        e("s_cbranch_scc1 %s_fdp" % name)
        e("%s_fdq:" % name)
        e("s_mov_b64 exec, -1")
        st.stamp()
        for ss in range(DA):
            for t in a_loads(ss): e(t)
            e(adv_a)
        e("s_barrier")
    else:
        if gearly:
            e("s_cmp_lg_u32 s63, 0")
            e("s_cselect_b32 s52, 0, 0x7f000000")
            e("s_cselect_b32 s%d, %d, 0" % (S_A, DA*2048))
            for ss in range(DA):
                for t in a_loads(ss, 52): e(t)
                e("s_add_u32 s52, s52, 2048")
        if one:
            p.waitvm("ost")
            e("s_barrier")
        e("s_cmp_lg_u32 s%d, 0" % S_WAVE)
        e("s_cbranch_scc1 %s_xpub" % name)
        e("s_mov_b64 exec, 1")
        if one:
            e("buffer_store_dword v%d, v%d, s[%d:%d], s101 offen sc1" % (V_PX+2, V_Z, SRD_WS, SRD_WS+3), tag="optional")
        if not skew: e("buffer_store_dwordx2 v[%d:%d], v%d, s[%d:%d], s%d offen sc1" % (V_PX+2, V_PX+3, V_Z, SRD_WS, SRD_WS+3, S_T1), tag="optional")
        e("s_mov_b64 exec, -1")
        e("%s_xpub:" % name)
        if one:
            p.waitvm(("w", 1))
            if gearly:
                e("s_cmp_lg_u32 s63, 0")
                e("s_cbranch_scc1 %s_fdr" % name)
            e("s_cmp_lg_u32 s%d, 0" % S_WAVE)
            e("s_cbranch_scc1 %s_fdr" % name)
            e("s_mov_b64 exec, 0xffffffff" if not half16 else "s_mov_b64 exec, 0xffff")
            e("v_lshlrev_b32 v%d, 7, v%d" % (V_T3, V_TID))
            e("s_lshl_b32 s52, s%d, 12" % S_RT)
            e("s_add_u32 s52, s52, 0x%x" % WS_FD)
            if half16: e("s_lshl_b32 s53, s%d, 11\ns_add_u32 s52, s52, s53" % S_KH)
            e("s_mov_b32 s53, 0x80000")
            e("%s_fdp:" % name)
            e("buffer_load_dword v%d, v%d, s[%d:%d], s52 offen sc1" % (V_T2, V_T3, SRD_WS, SRD_WS+3), tag="optional")
            e("s_waitcnt vmcnt(0)", tag=None) if False else p.add(RawWait("s_waitcnt vmcnt(0)"))
            e("v_cmp_ne_u32 vcc, s%d, v%d" % (S_TAG, V_T2))
            e("s_cbranch_vccz %s_fdq" % name)
            if psleep: e("s_sleep %d" % psleep)
            e("s_sub_u32 s53, s53, 1")
            e("s_cmp_lg_u32 s53, 0")
            e("s_cbranch_scc1 %s_fdp" % name)
            e("%s_fdq:" % name)
            e("s_mov_b64 exec, -1")
            e("%s_fdr:" % name)
            e("s_barrier")
            st.stamp()
            if gearly:
                e("s_cmp_lg_u32 s63, 0")
                e("s_cbranch_scc1 %s_have" % name)
                for ss in range(DA):
                    for t in a_loads(ss): p.add(RawWait(t))
                    e(adv_a)
                e("%s_have:" % name)
            else:
                for ss in range(DA):
                    for t in a_loads(ss): e(t)
                    e(adv_a)
    def preload(lab):
        e("s_cmp_eq_u32 s%d, 1" % S_ROLE)
        e("s_cbranch_scc0 %s_preg%s" % (name, lab))
        for i in range(4):
            e("s_add_u32 s%d, s%d, %d" % (S_T0, S_XB, i*16*2048))
            for u in range(2):
                d = V_PRE + 4*(4*u+i)
                e("buffer_load_dwordx4 v[%d:%d], v%d, s[%d:%d], s%d offen offset:%d%s" % (d, d+3, V_RM, SRD_X, SRD_X+3, S_T0, u*64, " nt" if xnt else ""), tag="optional")
        e("s_branch %s_prej%s" % (name, lab))
        e("%s_preg%s:" % (name, lab))
        for nt in range(4):
            e("buffer_load_dwordx2 v[%d:%d], v%d, s[%d:%d], s%d offen offset:%d" % (V_PRE+2*nt, V_PRE+2*nt+1, V_G8, SRD_X, SRD_X+3, S_COL, nt*32), tag="optional")
        e("%s_prej%s:" % (name, lab))
    if not xlate: preload("a")
    if xlate == 2:
        for nt in range(4):
            e("buffer_load_dwordx2 v[%d:%d], v%d, s[%d:%d], s%d offen offset:%d" % (V_B2+2*nt, V_B2+2*nt+1, V_G8, SRD_X, SRD_X+3, S_COL, nt*32))
    if not one:
        if not diag: st.stamp()
        p.waitvm(("w", 0))
        e("s_barrier")
    for nt in range(8):
        for t in tr_reads(0, nt): e(t)
    if codepf & 8: code_srd(p, 40, 44, start)
    if not diag: st.stamp()
    p.loop_begin("g2")
    e("%s_g2:" % name)
    for ss in range(U):
        if ss % BAR == 0:
            p.waitvm(("w", (ss+BAR) % U))
            e("s_barrier")
        if ss == 6 and not skew:
            e("s_cmp_lg_u32 s%d, 1" % S_CNT)
            e("s_cbranch_scc1 %s_nofl" % name)
            e("buffer_load_dword v%d, v%d, s[%d:%d], s%d offen sc1" % (V_FLAG, V_Z, SRD_WS, SRD_WS+3, S_FG), tag="optional")
            e("buffer_load_dwordx2 v[%d:%d], v%d, s[%d:%d], s%d offen sc1" % (V_PX, V_PX+1, V_Z, SRD_WS, SRD_WS+3, S_FXP), tag="optional")
            e("%s_nofl:" % name)
        mf = []
        for nt in range(8):
            for i in range(4):
                a = acc(nt, i)
                mf.append(Ins("v_mfma_f32_16x16x32_bf16 v[%d:%d], a[%d:%d], a[%d:%d], v[%d:%d]" % (a, a+3, wfrag(nt), wfrag(nt)+3, afrag(ss, i), afrag(ss, i)+3, a, a+3)))
        sc = Sched(mf)
        if dg: sc.put(tr_reads(ss, 7)[1], spr)
        for nt in range(8):
            r = tr_reads(ss+1, nt)
            g = sc.put(r[0], min(4*nt+3, 31))
            if not (dg and nt == 7): sc.put(r[1], min(g+1+spr, 31))
        pos = 1
        slot = (ss + DW) % U
        for grp in dma_step(slot):
            if now: continue
            g = sc.put(Ins(grp[-1], tag=("w", slot)), pos)
            for t in grp[:-1]: sc.scalar(t, g-1)
            pos = g + 3
        sc.scalar(adv_w, pos - 2)
        pos = 9
        for t in a_loads(ss + DA):
            if noact: continue
            g = sc.put(t, pos); pos = g + 4
        sc.scalar(adv_a, 30)
        if (codepf & 8) and ss == 3:
            sc.put(Ins("buffer_load_dwordx4 a[%d:%d], v%d, s[40:43], s44 offen" % (A_PF, A_PF+3, V_XO), tag="pf"), 26)
        if PT:
            g = sc.put(Ins("buffer_load_dwordx4 a[%d:%d], v%d, s[%d:%d], s%d offen" % (A_PF, A_PF+3, V_XO, SRD_EX, SRD_EX+3, S_PT), tag="pf"), 26)
            sc.scalar("s_add_u32 s%d, s%d, 1024" % (S_PT, S_PT), g)
        sc.emit(p)
    e("s_sub_u32 s%d, s%d, 1" % (S_CNT, S_CNT))
    e("s_cmp_lg_u32 s%d, 0" % S_CNT)
    e("s_cbranch_scc1 %s_g2" % name)
    p.loop_end()
    if not skew: st.stamp()
    def mfma(nt, w, ss, i):
        a_ = acc(nt, i)
        return Ins("v_mfma_f32_16x16x32_bf16 v[%d:%d], a[%d:%d], a[%d:%d], v[%d:%d]" % (a_, a_+3, w, w+3, afrag(ss, i), afrag(ss, i)+3, a_, a_+3))
    if skew:
        assert (DW, DA, BAR) == (6, 3, 2)
        BL = [((4, j), (5, j)) for j in range(2, 8)]
        if small: BL += [((nt, j), (nt, j+1)) for nt in (6, 7) for j in (2, 4, 6)]
        else: BL += [((6, j), (7, j)) for j in range(2, 8)]
        BL += [((0, j), (1, j)) for j in range(2, 8)] + [((2, j), (3, j)) for j in range(2, 8)]
        def bl_reads(b_):
            base = 8*(b_ % 4)
            return ["ds_read_b64_tr_b16 a[%d:%d], v%d offset:%d" % (base+4*q+2*t, base+4*q+2*t+1, V_TR0, j*IMG + nt*32 + t*512) for q, (nt, j) in enumerate(BL[b_]) for t in range(2)]
        def bl_mfmas(b_):
            base = 8*(b_ % 4)
            r = [mfma(nt, base+4*q, j, i) for q, (nt, j) in enumerate(BL[b_]) for i in range(4)]
            for x in r: x.noslack = True
            return r
        def put_dma(sc, slot, pos):
            for grp in dma_step(slot):
                g = sc.put(Ins(grp[-1], tag=("w", slot)), pos)
                for t in grp[:-1]: sc.scalar(t, g-1)
                pos = g + 1
            sc.scalar(adv_w, pos - 1)
            return pos
        def put_a(sc, ss, pos, step=2):
            for t in a_loads(ss):
                g = sc.put(t, pos); pos = g + step
            sc.scalar(adv_a, pos - step)
            return pos
        p.waitvm(("w", 3))
        e("s_barrier")
        sc = Sched([mfma(nt, wfrag(nt), 0, i) for nt in range(8) for i in range(4)])
        if dg: sc.put(tr_reads(0, 7)[1], 0)
        for nt in range(8):
            r = tr_reads(1, nt)
            g = sc.put(r[0], min(4*nt+3, 31))
            if not (dg and nt == 7): sc.put(r[1], min(g+1, 31))
        pos = put_dma(sc, 6, 1); pos = put_dma(sc, 7, pos)
        pos = put_a(sc, 3, 2, 1); pos = put_a(sc, 4, pos, 1); pos = put_a(sc, 5, pos, 1)
        sc.emit(p)
        sc = Sched([mfma(nt, wfrag(nt), 1, i) for nt in range(8) for i in range(4)])
        if dg: sc.put(tr_reads(1, 7)[1], 0)
        pos = put_a(sc, 6, 0, 1); pos = put_a(sc, 7, pos, 1)
        pos = 9
        for t in bl_reads(0): pos = sc.put(t, pos) + 1
        pos = max(pos, 17)
        for t in bl_reads(1): pos = sc.put(t, pos) + 1
        if xlate == 2:
            pos = 13
            for i in range(4):
                for u in range(2):
                    d = V_PRE + 4*(4*u+i)
                    g = sc.put(Ins("buffer_load_dwordx4 v[%d:%d], v%d, s[%d:%d], s%d offen offset:%d%s" % (d, d+3, V_RM, SRD_X, SRD_X+3, S_EXO, u*64, " nt" if xnt else "")), pos)
                    if u == 0: sc.scalar("s_add_u32 s%d, s%d, %d" % (S_EXO, S_XB, i*16*2048), g-1)
                    pos = g + 1
        sc.emit(p)
        p.waitvm(("w", 5))
        e("s_barrier")
        sc = Sched(bl_mfmas(0) + bl_mfmas(1))
        pos = 0
        for t in bl_reads(2) + bl_reads(3): pos = sc.put(t, pos) + 2
        sc.emit(p)
        p.waitvm(("w", 7))
        e("s_barrier")
        mf = []
        for b_ in range(2, 24): mf += bl_mfmas(b_)
        sc = Sched(mf)
        G0 = lambda b_: 8*(b_ - 2)
        for b_ in range(2, 22):
            for q, t in enumerate(bl_reads(b_ + 2)): sc.put(t, G0(b_) + 2*q)
        def send(k_, pos):
            a_, d = 64 + 8*k_, 64 + 4*k_
            for t in ["v_cvt_pk_bf16_f32 v%d, v%d, v%d" % (d, a_, a_+1), "v_cvt_pk_bf16_f32 v%d, v%d, v%d" % (d+1, a_+2, a_+3),
                      "v_cvt_pk_bf16_f32 v%d, v%d, v%d" % (d+2, a_+4, a_+5), "v_cvt_pk_bf16_f32 v%d, v%d, v%d" % (d+3, a_+6, a_+7)]:
                pos = sc.put(t, pos) + 1
            return sc.put(Ins("buffer_store_dwordx4 v[%d:%d], v%d, s[%d:%d], %s offen offset:%d sc1" % (d, d+3, V_XO, SRD_EX, SRD_EX+3, "0" if k_ < 4 else "s%d" % S_4K, (k_ & 3)*1024), tag="xst"), pos) + 1
        pos = G0(6) + 3
        for k_ in range(4): pos = send(k_, pos)
        if small:
            pos = max(pos, G0(9) + 3)
            for k_ in (4, 5): pos = send(k_, pos)
            pos = max(pos, G0(12) + 3)
            for k_ in (6, 7): pos = send(k_, pos)
        else:
            pos = max(pos, G0(12) + 3)
            for k_ in range(4, 8): pos = send(k_, pos)
        sc.put(Ins("buffer_load_dword v%d, v%d, s[%d:%d], s%d offen sc1" % (V_FLAG, V_Z, SRD_WS, SRD_WS+3, S_FG)), G0(21) + 1)
        sc.emit(p)
        st.stamp()
        e("v_mov_b32 v%d, s%d" % (V_T0, S_TAG))
        p.waitvm("xst")
        e("s_mov_b64 exec, 1")
        e("buffer_store_dword v%d, v%d, s[%d:%d], s%d offen sc1" % (V_T0, V_Z, SRD_WS, SRD_WS+3, S_FP))
        e("s_mov_b64 exec, -1")
        e("v_readfirstlane_b32 s52, v%d" % V_FLAG)
        e("s_cmp_eq_u32 s52, s%d" % S_TAG)
        e("s_cselect_b32 s54, s%d, 0" % S_ROLE)
        e("s_cmp_lg_u32 s54, 0")
        e("s_cselect_b32 s55, s%d, 0x7f000000" % S_G)
        if diag: st.stamp()
        e("s_mov_b32 s53, 0x80000")
        e("%s_pp:" % name)
        e("buffer_load_dword v%d, v%d, s[%d:%d], s%d offen sc1" % (V_PX, V_Z, SRD_WS, SRD_WS+3, S_FPP))
        e("s_waitcnt vmcnt(0)")
        e("v_readfirstlane_b32 s52, v%d" % V_PX)
        e("s_cmp_eq_u32 s52, s%d" % S_TAG)
        e("s_cbranch_scc1 %s_pq" % name)
        e("s_sub_u32 s53, s53, 1")
        e("s_cmp_lg_u32 s53, 0")
        e("s_cbranch_scc1 %s_pp" % name)
        e("%s_pq:" % name)
        if diag: st.stamp()
        for k_ in range(8):
            e("s_add_u32 s%d, s%d, %d" % (S_T0, S_EXI, k_*1024))
            e("buffer_load_dwordx4 v[%d:%d], v%d, s[%d:%d], s%d offen sc1" % (96+4*k_, 96+4*k_+3, V_XO, SRD_WS, SRD_WS+3, S_T0))
        for k_ in range(8):
            e("s_add_u32 s%d, s55, %d" % (S_T0, k_*1024))
            e("buffer_load_dwordx4 v[%d:%d], v%d, s[%d:%d], s%d offen sc1" % (64+4*k_, 64+4*k_+3, V_XO, SRD_WS, SRD_WS+3, S_T0))
        if ep2:
            e("s_cmp_eq_u32 s%d, 1" % S_ROLE)
            e("s_cbranch_scc0 %s_wg" % name)
            for k_ in range(8):
                xr = V_PRE + 4*k_
                e("v_permlane16_swap_b32 v%d, v%d" % (xr, xr+2))
                e("v_permlane16_swap_b32 v%d, v%d" % (xr+1, xr+3))
            for j in range(32):
                e("v_lshlrev_b32 v%d, 16, v%d" % (128+2*j, V_PRE+j)); e("v_and_b32 v%d, 0xffff0000, v%d" % (129+2*j, V_PRE+j))
            e("s_branch %s_wj" % name)
            e("%s_wg:" % name)
            for ntl in range(4):
                b = V_B2 + 2*ntl
                e("v_lshlrev_b32 v%d, 16, v%d\nv_and_b32 v%d, 0xffff0000, v%d\nv_lshlrev_b32 v%d, 16, v%d\nv_and_b32 v%d, 0xffff0000, v%d" % (128+4*ntl, b, 129+4*ntl, b, 130+4*ntl, b+1, 131+4*ntl, b+1))
            for ntl in range(4):
                for i in range(4):
                    a_ = acc(ntl, i)
                    for h in range(2): e("v_pk_add_f32 v[%d:%d], v[%d:%d], v[%d:%d]" % (a_+2*h, a_+2*h+1, a_+2*h, a_+2*h+1, 128+4*ntl+2*h, 128+4*ntl+2*h+1))
            e("%s_wj:" % name)
            for j in range(32):
                t_ = V_PRE + 2*(j % 8)
                e("v_lshlrev_b32 v%d, 16, v%d" % (t_, 96+j)); e("v_and_b32 v%d, 0xffff0000, v%d" % (t_+1, 96+j))
                e("v_pk_add_f32 v[%d:%d], v[%d:%d], v[%d:%d]" % (2*j, 2*j+1, 2*j, 2*j+1, t_, t_+1))
        else:
            for j in range(32):
                e("v_lshlrev_b32 v%d, 16, v%d" % (R+2*j, 96+j)); e("v_and_b32 v%d, 0xffff0000, v%d" % (R+2*j+1, 96+j))
                e("v_pk_add_f32 v[%d:%d], v[%d:%d], v[%d:%d]" % (R+2*j, R+2*j+1, R+2*j, R+2*j+1, 2*j, 2*j+1))
        st.stamp()
        def gloads():
            for k_ in range(8):
                e("s_add_u32 s%d, s%d, %d" % (S_T0, S_G, k_*1024))
                e("buffer_load_dwordx4 v[%d:%d], v%d, s[%d:%d], s%d offen sc1" % (64+4*k_, 64+4*k_+3, V_XO, SRD_WS, SRD_WS+3, S_T0), tag="optional")
    else:
        A_G = 160
        e("s_waitcnt vmcnt(0) lgkmcnt(0)")
        if xlate == 1: preload("b")
        e("s_mov_b32 s53, 0x80000")
        e("%s_xp:" % name)
        e("v_readfirstlane_b32 s54, v%d" % V_PX)
        e("s_cmp_eq_u32 s54, s%d" % S_TAG)
        e("s_cbranch_scc1 %s_xq" % name)
        e("s_sleep 1")
        e("buffer_load_dwordx2 v[%d:%d], v%d, s[%d:%d], s%d offen sc1" % (V_PX, V_PX+1, V_Z, SRD_WS, SRD_WS+3, S_FXP))
        e("s_waitcnt vmcnt(0)")
        e("s_sub_u32 s53, s53, 1")
        e("s_cmp_lg_u32 s53, 0")
        e("s_cbranch_scc1 %s_xp" % name)
        e("%s_xq:" % name)
        e("v_readfirstlane_b32 s54, v%d" % (V_PX+1))
        if force_far: e("s_mov_b32 s54, 99")
        e("v_mov_b32 v%d, s%d" % (V_T0, S_TAG))
        e("s_cmp_eq_u32 s54, s%d" % S_XCC)
        e("s_cbranch_scc0 %s_far" % name)
        for far in range(2):
            if far: e("%s_far:" % name)
            for k_ in range(8):
                a_, d = 64 + 8*k_, 64 + 4*k_
                e("v_cvt_pk_bf16_f32 v%d, v%d, v%d" % (d, a_, a_+1)); e("v_cvt_pk_bf16_f32 v%d, v%d, v%d" % (d+1, a_+2, a_+3))
                e("v_cvt_pk_bf16_f32 v%d, v%d, v%d" % (d+2, a_+4, a_+5)); e("v_cvt_pk_bf16_f32 v%d, v%d, v%d" % (d+3, a_+6, a_+7))
                e("buffer_store_dwordx4 v[%d:%d], v%d, s[%d:%d], %s offen offset:%d%s" % (d, d+3, V_XO, SRD_EX, SRD_EX+3, "0" if k_ < 4 else "s%d" % S_4K, (k_ & 3)*1024, " sc1" if far else exst))
            e("s_waitcnt vmcnt(0)")
            if diag and far == 0: st.stamp()
            if diag and far == 1:
                st.n -= 1; st.stamp()
            e("s_mov_b64 exec, 1")
            e("buffer_store_dword v%d, v%d, s[%d:%d], s%d offen%s" % (V_T0, V_Z, SRD_WS, SRD_WS+3, S_FP, " sc1" if far else ""), tag="optional")
            e("s_mov_b64 exec, -1")
            if not far: e("s_branch %s_sent" % name)
        e("%s_sent:" % name)
        if not diag and not one: st.stamp()
        e("s_mov_b32 s54, 0")
        e("s_cmp_eq_u32 s%d, 1" % S_ROLE)
        e("s_cbranch_scc0 %s_nog" % name)
        e("v_readfirstlane_b32 s52, v%d" % V_FLAG)
        e("s_cmp_eq_u32 s52, s%d" % S_TAG)
        e("s_cbranch_scc0 %s_nog" % name)
        e("s_mov_b32 s54, 1")
        def gloads():
            for k_ in range(8):
                e("s_add_u32 s%d, s%d, %d" % (S_T0, S_G, k_*1024))
                e("buffer_load_dwordx4 a[%d:%d], v%d, s[%d:%d], s%d offen sc1" % (A_G+4*k_, A_G+4*k_+3, V_XO, SRD_WS, SRD_WS+3, S_T0), tag="optional")
        gloads()
        e("%s_nog:" % name)
        e("s_mov_b32 s53, 0x80000")
        e("%s_pp:" % name)
        e("buffer_load_dword v%d, v%d, s[%d:%d], s%d offen sc1" % (V_PX, V_Z, SRD_WS, SRD_WS+3, S_FPP))
        e("s_waitcnt vmcnt(0)")
        e("v_readfirstlane_b32 s52, v%d" % V_PX)
        e("s_cmp_eq_u32 s52, s%d" % S_TAG)
        e("s_cbranch_scc1 %s_pq" % name)
        e("s_sub_u32 s53, s53, 1")
        e("s_cmp_lg_u32 s53, 0")
        e("s_cbranch_scc1 %s_pp" % name)
        e("%s_pq:" % name)
        if diag: st.stamp()
        for k_ in range(8):
            e("s_add_u32 s%d, s%d, %d" % (S_T0, S_EXI, k_*1024))
            e("buffer_load_dwordx4 v[%d:%d], v%d, s[%d:%d], s%d offen%s" % (96+4*k_, 96+4*k_+3, V_XO, SRD_WS, SRD_WS+3, S_T0, exld))
        if diag:
            e("s_waitcnt vmcnt(0)")
            st.stamp()
        if ep2:
            e("s_cmp_eq_u32 s%d, 1" % S_ROLE)
            e("s_cbranch_scc0 %s_wg" % name)
            for k_ in range(8):
                xr = V_PRE + 4*k_
                e("v_permlane16_swap_b32 v%d, v%d" % (xr, xr+2))
                e("v_permlane16_swap_b32 v%d, v%d" % (xr+1, xr+3))
            for j in range(32):
                e("v_lshlrev_b32 v%d, 16, v%d" % (128+2*j, V_PRE+j)); e("v_and_b32 v%d, 0xffff0000, v%d" % (129+2*j, V_PRE+j))
            e("s_branch %s_wj" % name)
            e("%s_wg:" % name)
            for ntl in range(4):
                b = V_B2 + 2*ntl
                e("v_lshlrev_b32 v%d, 16, v%d\nv_and_b32 v%d, 0xffff0000, v%d\nv_lshlrev_b32 v%d, 16, v%d\nv_and_b32 v%d, 0xffff0000, v%d" % (128+4*ntl, b, 129+4*ntl, b, 130+4*ntl, b+1, 131+4*ntl, b+1))
            for ntl in range(4):
                for i in range(4):
                    a_ = acc(ntl, i)
                    for h in range(2): e("v_pk_add_f32 v[%d:%d], v[%d:%d], v[%d:%d]" % (a_+2*h, a_+2*h+1, a_+2*h, a_+2*h+1, 128+4*ntl+2*h, 128+4*ntl+2*h+1))
            e("%s_wj:" % name)
            for j in range(32):
                t_ = V_PRE + 2*(j % 8)
                e("v_lshlrev_b32 v%d, 16, v%d" % (t_, 96+j)); e("v_and_b32 v%d, 0xffff0000, v%d" % (t_+1, 96+j))
                e("v_pk_add_f32 v[%d:%d], v[%d:%d], v[%d:%d]" % (2*j, 2*j+1, 2*j, 2*j+1, t_, t_+1))
        else:
            for j in range(32):
                e("v_lshlrev_b32 v%d, 16, v%d" % (R+2*j, 96+j)); e("v_and_b32 v%d, 0xffff0000, v%d" % (R+2*j+1, 96+j))
                e("v_pk_add_f32 v[%d:%d], v[%d:%d], v[%d:%d]" % (R+2*j, R+2*j+1, R+2*j, R+2*j+1, 2*j, 2*j+1))
        st.stamp()
    def res(ntl, i): return (0 if ep2 else R) + 16*ntl + 4*i
    e("s_cmp_eq_u32 s%d, 1" % S_ROLE)
    e("s_cbranch_scc1 %s_epis" % name)
    if skew and not ep2: e("s_waitcnt vmcnt(0)")
    LOG2E = f2u(1.4426950408889634)
    e("s_mov_b32 s52, 0x%x" % (LOG2E ^ 0x80000000))
    if gpk: e("s_mov_b32 s53, s52\ns_mov_b32 s46, 1.0\ns_mov_b32 s47, 1.0")
    for ntl in range(4 if not ep2 else 0):
        b = V_PRE + 2*ntl
        e("v_lshlrev_b32 v%d, 16, v%d\nv_and_b32 v%d, 0xffff0000, v%d\nv_lshlrev_b32 v%d, 16, v%d\nv_and_b32 v%d, 0xffff0000, v%d" % (64+4*ntl, b, 65+4*ntl, b, 66+4*ntl, b+1, 67+4*ntl, b+1))
    for u in range(2):
        for i in range(4):
            d = (96 if ep2 else 0) + 4*(4*u+i)
            T = (V_PRE + 8*(i & 1)) if ep2 else 96
            tiles = [res(2*u, i), res(2*u+1, i)]
            for half in range(2 if not ep2 else 0):
                a = tiles[half]; ntl = 2*u + half
                for h in range(2): e("v_pk_add_f32 v[%d:%d], v[%d:%d], v[%d:%d]" % (a+2*h, a+2*h+1, a+2*h, a+2*h+1, 64+4*ntl+2*h, 64+4*ntl+2*h+1))
            if gpk:
                for half in range(2):
                    for h in range(2): e("v_pk_mul_f32 v[%d:%d], v[%d:%d], s[52:53]" % (T+4*half+2*h, T+4*half+2*h+1, tiles[half]+2*h, tiles[half]+2*h+1))
                for q in range(8): e("v_exp_f32 v%d, v%d" % (T+q, T+q))
                for q in range(4): e("v_pk_add_f32 v[%d:%d], v[%d:%d], s[46:47]" % (T+2*q, T+2*q+1, T+2*q, T+2*q+1))
            else:
                for half in range(2):
                    for r in range(4): e("v_mul_f32 v%d, s52, v%d" % (T+4*half+r, tiles[half]+r))
                for q in range(8): e("v_exp_f32 v%d, v%d" % (T+q, T+q))
                for q in range(8): e("v_add_f32 v%d, 1.0, v%d" % (T+q, T+q))
            for q in range(8): e("v_rcp_f32 v%d, v%d" % (T+q, T+q))
            for half in range(2):
                a = tiles[half]
                for h in range(2): e("v_pk_mul_f32 v[%d:%d], v[%d:%d], v[%d:%d]" % (a+2*h, a+2*h+1, a+2*h, a+2*h+1, T+4*half+2*h, T+4*half+2*h+1))
            for half in range(2):
                a = tiles[half]
                e("v_cvt_pk_bf16_f32 v%d, v%d, v%d" % (d+2*half, a, a+1))
                e("v_cvt_pk_bf16_f32 v%d, v%d, v%d" % (d+2*half+1, a+2, a+3))
            e("s_add_u32 s%d, s%d, %d" % (S_T0, S_G, (4*u+i)*1024))
            e("buffer_store_dwordx4 v[%d:%d], v%d, s[%d:%d], s%d offen sc1" % (d, d+3, V_XO, SRD_WS, SRD_WS+3, S_T0))
    if not one:
        st.stamp()
        st.n -= 1
    e("s_waitcnt vmcnt(0)")
    if not (wflag & 2):
        e("s_barrier")
        e("s_cmp_lg_u32 s%d, 0" % S_WAVE)
        e("s_cbranch_scc1 %s_fin" % name)
    e("s_mov_b64 exec, 1")
    e("v_mov_b32 v%d, s%d" % (V_T0, S_TAG))
    e("buffer_store_dword v%d, v%d, s[%d:%d], s%d offen sc1" % (V_T0, V_Z, SRD_WS, SRD_WS+3, S_FG))
    e("s_waitcnt vmcnt(0)")
    e("s_branch %s_fin" % name)
    e("%s_epis:" % name)
    e("s_cmp_lg_u32 s54, 0")
    e("s_cbranch_scc1 %s_haveg" % name)
    e("s_mov_b32 s53, 0x80000")
    e("%s_poll:" % name)
    e("buffer_load_dword v%d, v%d, s[%d:%d], s%d offen sc1" % (V_FLAG, V_Z, SRD_WS, SRD_WS+3, S_FG))
    e("s_waitcnt vmcnt(0)")
    e("v_readfirstlane_b32 s54, v%d" % V_FLAG)
    e("s_cmp_eq_u32 s54, s%d" % S_TAG)
    e("s_cbranch_scc1 %s_polled" % name)
    e("s_sleep 1")
    e("s_sub_u32 s53, s53, 1")
    e("s_cmp_lg_u32 s53, 0")
    e("s_cbranch_scc1 %s_poll" % name)
    e("%s_polled:" % name)
    gloads()
    e("%s_haveg:" % name)
    for k_ in range(8 if not ep2 else 0):
        xr = V_PRE + 4*k_
        e("v_permlane16_swap_b32 v%d, v%d" % (xr, xr+2))
        e("v_permlane16_swap_b32 v%d, v%d" % (xr+1, xr+3))
    e("s_waitcnt vmcnt(0)")
    if not one: st.stamp()
    if not skew:
        for k_ in range(8):
            for r in range(4): e("v_accvgpr_read_b32 v%d, a%d" % (4*k_+r, A_G+4*k_+r))
    for i in range(4):
        e("s_add_u32 s%d, s%d, %d" % (S_T0, S_XB, i*16*2048))
        for u in range(2):
            k_ = 4*u + i
            gq, xr, o = (64 if skew else 0) + 4*k_, V_PRE + 4*k_, (96 if ep2 else 32) + 4*k_
            TB = (V_PRE + 16*(u & 1)) if ep2 else 96
            for half in range(2):
                T = TB + 8*half
                e("v_lshlrev_b32 v%d, 16, v%d\nv_and_b32 v%d, 0xffff0000, v%d\nv_lshlrev_b32 v%d, 16, v%d\nv_and_b32 v%d, 0xffff0000, v%d" % (T, gq+2*half, T+1, gq+2*half, T+2, gq+2*half+1, T+3, gq+2*half+1))
                if not ep2:
                    e("v_lshlrev_b32 v%d, 16, v%d\nv_and_b32 v%d, 0xffff0000, v%d\nv_lshlrev_b32 v%d, 16, v%d\nv_and_b32 v%d, 0xffff0000, v%d" % (T+4, xr+2*half, T+5, xr+2*half, T+6, xr+2*half+1, T+7, xr+2*half+1))
            for half in range(2):
                a = res(2*u+half, i); T = TB + 8*half
                X = (128 + 8*k_ + 4*half) if ep2 else T + 4
                for h in range(2): e("v_pk_fma_f32 v[%d:%d], v[%d:%d], v[%d:%d], v[%d:%d]" % (a+2*h, a+2*h+1, a+2*h, a+2*h+1, T+2*h, T+2*h+1, X+2*h, X+1+2*h))
            for half in range(2):
                a = res(2*u+half, i)
                e("v_cvt_pk_bf16_f32 v%d, v%d, v%d" % (o+2*half, a, a+1))
                e("v_cvt_pk_bf16_f32 v%d, v%d, v%d" % (o+2*half+1, a+2, a+3))
            e("v_permlane16_swap_b32 v%d, v%d" % (o, o+2))
            e("v_permlane16_swap_b32 v%d, v%d" % (o+1, o+3))
            e("buffer_store_dwordx4 v[%d:%d], v%d, s[%d:%d], s%d offen offset:%d%s" % (o, o+3, V_RM, SRD_OUT, SRD_OUT+3, S_T0, u*64, osc))
    e("%s_fin:" % name)
    if tl:
        e("s_mov_b64 exec, -1")
        tl_end(p, last=True)
    if stamps:
        e("s_waitcnt vmcnt(0)")
        e("s_mov_b64 exec, -1")
        st.stamp(); st.stamp(True)
        st.dump(SRD_WS, V_T0, 2)
    if not one:
        e("%s_done:" % name)
        e("s_endpgm")
    return p
```

```python
import sys, math
from asmgen import *

WS_XN = 0
XN_RG = 131072 + 8192
OF_RP = 262144 + 8192
HF_RP = 229376 + 8192
WS_KP = 5 << 20
WS_VP = (5 << 20) + (512 << 10)
WS_OF = 8 << 20
WS_HF = 25 << 20
WS_G  = 40 << 20
WS_WO = 64 << 20
WS_W2 = 80 << 20
WO_CT = 128*8192 + 8192
W2_CT = 112*8192 + 8192
WS_FLAG = 47 << 20
WS_FD = (47 << 20) + (32 << 10)
WS_F2 = (47 << 20) + (64 << 10)
F2_STRIDE = 32 << 10
WS_FDW = 46 << 20
WS_EX = 96 << 20
EX_STRIDE = 32768 + 1024
WS_DBG = 48 << 20
WS_SIZE = 256 << 20
KA = dict(x=0, k=8, v=16, wq=24, wo=32, bx=40, w1=48, b1=56, w2=64, b2=72, out=80, dbg=88, ws=96)
CSCALE = math.log2(math.e) / math.sqrt(128.0)

def f2u(x):
    import struct
    return struct.unpack('<I', struct.pack('<f', x))[0]

def srd(p, d, base, nbytes, add=0):
    if add:
        p.e("s_add_u32 s%d, s%d, 0x%x" % (d, base, add))
        p.e("s_addc_u32 s%d, s%d, 0" % (d+1, base+1))
    else:
        p.e("s_mov_b32 s%d, s%d" % (d, base))
        p.e("s_mov_b32 s%d, s%d" % (d+1, base+1))
    p.e("s_mov_b32 s%d, 0x%x" % (d+2, nbytes))
    p.e("s_mov_b32 s%d, 0x20000" % (d+3))

def tl_start(p, sreg=98):
    p.e("s_memrealtime s[%d:%d]" % (sreg, sreg+1))
    p.e("s_waitcnt lgkmcnt(0)")
def tl_end(p, last=False, sreg=98, vt=250):
    e = p.e
    lab = "tlskip_%d" % (id(p) % 100000 + len(p.stack[-1]))
    e("s_waitcnt vmcnt(0) lgkmcnt(0)")
    e("s_lshr_b32 s70, s2, 5\ns_and_b32 s71, s2, 7\ns_cmp_eq_u32 s70, s71")
    e("s_cbranch_scc0 %s" % lab)
    e("s_cmp_eq_u32 s3, 0")
    e("s_cbranch_scc0 %s" % lab)
    e("s_load_dwordx2 s[72:73], s[0:1], %d" % KA['dbg'])
    e("s_memrealtime s[70:71]")
    e("s_waitcnt lgkmcnt(0)")
    e("s_mov_b32 s76, s72\ns_mov_b32 s77, s73\ns_mov_b32 s78, 256\ns_mov_b32 s79, 0x20000")
    e("s_mov_b64 exec, 1")
    e("v_mov_b32 v%d, 0\nv_mov_b32 v%d, s70\ns_not_b32 s71, s%d\nv_mov_b32 v%d, s71" % (vt, vt+1, sreg, vt+2))
    e("buffer_atomic_umax v%d, v%d, s[76:79], 0 offen sc1" % (vt+1, vt))
    e("buffer_atomic_umax v%d, v%d, s[76:79], 0 offen offset:4 sc1" % (vt+2, vt))
    if last:
        e("s_sub_u32 s72, s72, 1024\ns_subb_u32 s73, s73, 0")
        e("s_mov_b32 s76, s72\ns_mov_b32 s77, s73\ns_mov_b32 s78, 2048\ns_mov_b32 s79, 0x20000")
        e("buffer_load_dwordx2 v[%d:%d], v%d, s[76:79], 0 offen sc1" % (vt+2, vt+3, vt))
        e("s_waitcnt vmcnt(0)")
        e("buffer_store_dwordx2 v[%d:%d], v%d, s[76:79], 0 offen offset:1032 sc1" % (vt+2, vt+3, vt))
        e("buffer_load_dwordx2 v[%d:%d], v%d, s[76:79], 0 offen offset:512 sc1" % (vt+2, vt+3, vt))
        e("s_waitcnt vmcnt(0)")
        e("buffer_store_dwordx2 v[%d:%d], v%d, s[76:79], 0 offen offset:1040 sc1" % (vt+2, vt+3, vt))
    e("s_waitcnt vmcnt(0)")
    e("%s:" % lab)

_cpf = [0]
def code_srd(p, d, so, start, wave=3):
    _cpf[0] += 1
    lab = "%s_pc%d" % (start, _cpf[0])
    e = p.e
    e("s_getpc_b64 s[%d:%d]" % (d, d+1))
    e("%s:" % lab)
    e("s_sub_u32 s%d, s%d, %s-%s" % (d, d, lab, start))
    e("s_subb_u32 s%d, s%d, 0" % (d+1, d+1))
    e("s_mov_b32 s%d, code_end_label-%s" % (d+2, start))
    e("s_mov_b32 s%d, 0x20000" % (d+3))
    e("s_lshr_b32 s%d, s2, 3\ns_lshl_b32 s%d, s%d, 2\ns_add_u32 s%d, s%d, s%d\ns_lshl_b32 s%d, s%d, 10" % (so, so, so, so, so, wave, so, so))

DSTAMP = [0]
class Stamps:
    def __init__(self, p, on): self.p = p; self.on = on; self.n = 0
    def stamp(self, real=False):
        if not self.on: return
        r = 64 + 2*self.n; self.n += 1
        self.p.e("%s s[%d:%d]" % ("s_memrealtime" if (real or DSTAMP[0]) else "s_memtime", r, r+1))
        self.p.e("s_waitcnt lgkmcnt(0)")
    def dump(self, srd_ws, vtmp, kidx):
        if not self.on: return
        e = self.p.e
        if DSTAMP[0]:
            lab = "dst_skip"
            e("s_cmp_lg_u32 s3, 0\ns_cbranch_scc1 %s" % lab)
            if DSTAMP[0] > 1:
                e("s_bfe_u32 s62, s2, 0x10002\ns_cmp_lg_u32 s62, %d\ns_cbranch_scc1 %s" % (DSTAMP[0] - 2, lab))
            e("s_load_dwordx2 s[56:57], s[0:1], %d\ns_waitcnt lgkmcnt(0)\ns_mov_b32 s58, 256\ns_mov_b32 s59, 0x20000" % KA['dbg'])
            e("s_mov_b64 exec, 1\nv_mov_b32 v%d, 0" % vtmp)
            e("s_not_b32 s63, s64\nv_mov_b32 v%d, s63" % (vtmp+1))
            e("buffer_atomic_umax v%d, v%d, s[56:59], 0 offen offset:4 sc1" % (vtmp+1, vtmp))
            for k, i in enumerate(DSTAMP[1]):
                e("v_mov_b32 v%d, s%d" % (vtmp+1, 64+2*i))
                e("buffer_atomic_umax v%d, v%d, s[56:59], 0 offen offset:%d sc1" % (vtmp+1, vtmp, 8 + 4*k))
                e("s_not_b32 s63, s%d\nv_mov_b32 v%d, s63" % (64+2*i, vtmp+1))
                e("buffer_atomic_umax v%d, v%d, s[56:59], 0 offen offset:%d sc1" % (vtmp+1, vtmp, 36 + 4*k))
            e("s_waitcnt vmcnt(0)\n%s:" % lab)
            return
        e("s_mov_b64 exec, 1")
        e("s_lshl_b32 s62, s2, 9")
        e("s_lshl_b32 s63, s3, 6")
        e("s_add_u32 s62, s62, s63")
        e("s_add_u32 s62, s62, 0x%x" % (WS_DBG + kidx*(1 << 20)))
        e("v_mov_b32 v%d, 0" % vtmp)
        for i in range(self.n):
            e("v_mov_b32 v%d, s%d" % (vtmp+1, 64+2*i))
            e("buffer_store_dword v%d, v%d, s[%d:%d], s62 offen offset:%d" % (vtmp+1, vtmp, srd_ws, srd_ws+3, 4*i))
        e("s_waitcnt vmcnt(0)")

def k0(name, prefetch=True, stamps=False, codepf=None, tl=False, sleep=0):
    p = Prog(); e = p.e
    st = Stamps(p, stamps)
    e("s_cmp_ge_u32 s2, 256")
    e("s_cbranch_scc1 %s_done" % name)
    st.stamp(True)
    if tl: tl_start(p)
    e("s_load_dwordx2 s[4:5], s[0:1], %d" % KA['x'])
    e("s_load_dwordx2 s[6:7], s[0:1], %d" % KA['ws'])
    e("s_load_dwordx4 s[24:27], s[0:1], %d" % KA['k'])
    e("s_load_dwordx2 s[28:29], s[0:1], %d" % KA['wq'])
    e("s_load_dwordx2 s[30:31], s[0:1], %d" % KA['w1'])
    e("v_and_b32 v1, 63, v0")
    e("v_lshrrev_b32 v2, 6, v0")
    e("v_and_b32 v3, 15, v1")
    e("v_lshrrev_b32 v4, 4, v1")
    e("v_readfirstlane_b32 s3, v2")
    def pf():
        if not prefetch: return
        srd(p, 32, 28, 8 << 20)
        srd(p, 36, 30, 7 << 20)
        e("s_and_b32 s40, s2, 7\ns_lshr_b32 s41, s2, 3")
        e("s_lshl_b32 s41, s41, 5\ns_lshl_b32 s42, s3, 2\ns_add_u32 s41, s41, s42")
        e("s_lshl_b32 s42, s41, 13\ns_lshl_b32 s43, s40, 10\ns_add_u32 s42, s42, s43")
        e("s_mul_i32 s43, s41, 7168\ns_mul_i32 s44, s40, 896\ns_add_u32 s43, s43, s44")
        e("v_lshlrev_b32 v88, 4, v1")
        e("v_min_u32 v89, 55, v1\nv_lshlrev_b32 v89, 4, v89")
        if codepf:
            lab = "%s_pc%d" % (name, len(p.items))
            e("s_getpc_b64 s[44:45]")
            e("%s:" % lab)
            e("s_add_u32 s44, s44, %s-%s" % (codepf[0], lab))
            e("s_addc_u32 s45, s45, 0")
            e("s_mov_b32 s46, %s-%s" % (codepf[1], codepf[0]))
            e("s_mov_b32 s47, 0x20000")
            e("s_lshl_b32 s48, s41, 6")
            e("v_lshlrev_b32 v90, 2, v1")
            e("buffer_load_dword v91, v90, s[44:47], s48 offen nt", tag="pf")
        for r in range(4):
            e("buffer_load_dwordx4 v[84:87], v88, s[32:35], s42 offen nt", tag="pf")
            e("buffer_load_dwordx4 v[84:87], v89, s[36:39], s43 offen nt", tag="pf")
            if r < 3: e("s_add_u32 s42, s42, 8192\ns_add_u32 s43, s43, 7168")
    e("s_cmp_ge_u32 s2, 128")
    e("s_cbranch_scc1 %s_kv" % name)
    e("s_waitcnt lgkmcnt(0)")
    srd(p, 8, 4, 4 << 20)
    srd(p, 12, 6, 32*XN_RG, WS_XN)
    e("s_lshl_b32 s16, s2, 15")
    e("s_lshl_b32 s17, s3, 8")
    e("s_add_u32 s16, s16, s17")
    e("v_lshlrev_b32 v5, 11, v3")
    e("v_lshl_add_u32 v5, v4, 3, v5")
    for q in range(4):
        e("buffer_load_dwordx2 v[%d:%d], v5, s[8:11], s16 offen offset:%d nt" % (16+4*q, 17+4*q, q*64))
        e("buffer_load_dwordx2 v[%d:%d], v5, s[8:11], s16 offen offset:%d nt" % (18+4*q, 19+4*q, q*64+32))
    pf()
    e("v_mul_u32_u24 v6, 48, v3")
    e("s_lshl_b32 s18, s3, 2")
    e("v_add_u32 v7, s18, v6")
    for r in range(16):
        e("v_lshlrev_b32 v%d, 16, v%d" % (32+2*r, 16+r))
        e("v_and_b32 v%d, 0xffff0000, v%d" % (33+2*r, 16+r))
    def reduce_all(src, lds_off):
        e("v_mov_b32 v9, v%d" % src)
        e("v_permlane32_swap_b32 v%d, v9" % src)
        e("v_add_f32 v%d, v%d, v9" % (src, src))
        e("v_mov_b32 v9, v%d" % src)
        e("v_permlane16_swap_b32 v%d, v9" % src)
        e("v_add_f32 v%d, v%d, v9" % (src, src))
        e("ds_write_b32 v7, v%d offset:%d" % (src, lds_off))
        e("s_waitcnt lgkmcnt(0)")
        e("s_barrier")
        e("ds_read_b128 v[64:67], v6 offset:%d" % lds_off)
        e("ds_read_b128 v[68:71], v6 offset:%d" % (lds_off+16))
        e("v_add_f32 v64, v64, v65\nv_add_f32 v66, v66, v67\nv_add_f32 v68, v68, v69\nv_add_f32 v70, v70, v71")
        e("v_add_f32 v64, v64, v66\nv_add_f32 v68, v68, v70\nv_add_f32 v8, v64, v68")
    for i in range(4):
        e("v_add_f32 v%d, v%d, v%d" % (72+i, 32+i, 36+i))
    for r in range(8, 32):
        e("v_add_f32 v%d, v%d, v%d" % (72+(r % 4), 72+(r % 4), 32+r))
    e("v_add_f32 v72, v72, v73\nv_add_f32 v74, v74, v75\nv_add_f32 v72, v72, v74")
    reduce_all(72, 0)
    e("v_mul_f32 v10, 0x%x, v8" % f2u(1.0/1024))
    for r in range(32):
        e("v_sub_f32 v%d, v%d, v10" % (80+(r % 4), 32+r))
        if r < 4: e("v_mul_f32 v%d, v%d, v%d" % (72+r, 80+(r % 4), 80+(r % 4)))
        else: e("v_fmac_f32 v%d, v%d, v%d" % (72+(r % 4), 80+(r % 4), 80+(r % 4)))
    e("v_add_f32 v72, v72, v73\nv_add_f32 v74, v74, v75\nv_add_f32 v72, v72, v74")
    reduce_all(72, 1024)
    e("v_mul_f32 v11, 0x%x, v8" % f2u(1.0/1024))
    e("v_cvt_pk_bf16_f32 v12, v10, v11")
    e("v_and_b32 v11, 0xffff0000, v12")
    e("v_lshlrev_b32 v10, 16, v12")
    e("v_add_f32 v11, 0x%x, v11" % f2u(1e-5))
    e("v_cvt_pk_bf16_f32 v12, v11, v11")
    e("v_and_b32 v11, 0xffff0000, v12")
    e("v_sqrt_f32 v11, v11")
    e("v_cvt_pk_bf16_f32 v12, v11, v11")
    e("v_and_b32 v11, 0xffff0000, v12")
    e("v_rcp_f32 v13, v11")
    for r in range(16):
        a, b = 32+2*r, 33+2*r
        e("v_sub_f32 v%d, v%d, v10" % (a, a))
        e("v_sub_f32 v%d, v%d, v10" % (b, b))
        e("v_cvt_pk_bf16_f32 v%d, v%d, v%d" % (16+r, a, b))
        e("v_lshlrev_b32 v%d, 16, v%d" % (a, 16+r))
        e("v_and_b32 v%d, 0xffff0000, v%d" % (b, 16+r))
        e("v_mul_f32 v80, v%d, v13" % a)
        e("v_mul_f32 v81, v%d, v13" % b)
        e("v_fma_f32 v%d, -v80, v11, v%d" % (a, a))
        e("v_fma_f32 v%d, -v81, v11, v%d" % (b, b))
        e("v_fmac_f32 v80, v%d, v13" % a)
        e("v_fmac_f32 v81, v%d, v13" % b)
        e("v_cvt_pk_bf16_f32 v%d, v80, v81" % (16+r))
    e("s_lshr_b32 s16, s2, 2\ns_mul_i32 s16, s16, %d" % XN_RG)
    e("s_and_b32 s17, s2, 3\ns_lshl_b32 s17, s17, 10")
    e("s_add_u32 s16, s16, s17")
    e("s_lshl_b32 s17, s3, 14")
    e("s_add_u32 s16, s16, s17")
    e("v_lshlrev_b32 v5, 4, v1")
    for q in range(4):
        e("s_add_u32 s17, s16, %d" % (q*4096))
        e("buffer_store_dwordx4 v[%d:%d], v5, s[12:15], s17 offen" % (16+4*q, 19+4*q))
    def fin():
        for _ in range(sleep): e("s_sleep 64")
        if tl: tl_end(p, vt=90)
        if stamps:
            e("s_waitcnt vmcnt(0)")
            e("s_memrealtime s[66:67]")
            e("s_waitcnt lgkmcnt(0)")
            srd(p, 48, 6, WS_SIZE)
            n0 = st.n; st.n = 2
            st.dump(48, 90, 0)
            st.n = n0
    fin()
    e("s_endpgm")
    e("%s_kv:" % name)
    e("s_waitcnt lgkmcnt(0)")
    e("s_sub_u32 s16, s2, 128")
    e("s_lshl_b32 s16, s16, 3")
    e("s_add_u32 s16, s16, s3")
    e("s_and_b32 s17, s16, 511")
    e("s_lshr_b32 s18, s17, 7")
    e("s_lshr_b32 s19, s17, 3\ns_and_b32 s19, s19, 15")
    e("s_lshl_b32 s20, s18, 19")
    e("s_lshl_b32 s21, s19, 13")
    e("s_add_u32 s20, s20, s21")
    e("s_add_u32 s20, s20, %d" % (1536*256))
    e("s_lshl_b32 s22, s17, 10")
    e("v_lshlrev_b32 v5, 4, v1")
    e("s_cmp_ge_u32 s16, 512")
    e("s_cbranch_scc1 %s_v" % name)
    srd(p, 8, 24, 2 << 20)
    srd(p, 12, 6, 512 << 10, WS_KP)
    e("s_lshr_b32 s21, s17, 2\ns_and_b32 s21, s21, 1\ns_lshl_b32 s21, s21, 12")
    e("s_add_u32 s20, s20, s21")
    e("s_and_b32 s21, s17, 3\ns_lshl_b32 s21, s21, 6")
    e("s_add_u32 s20, s20, s21")
    e("v_lshlrev_b32 v6, 8, v3")
    e("v_lshl_add_u32 v6, v4, 3, v6")
    e("buffer_load_dwordx2 v[16:17], v6, s[8:11], s20 offen nt")
    e("buffer_load_dwordx2 v[18:19], v6, s[8:11], s20 offen offset:32 nt")
    pf()
    e("s_mov_b32 s23, 0x%x" % f2u(CSCALE))
    for r in range(4):
        e("v_lshlrev_b32 v20, 16, v%d" % (16+r))
        e("v_and_b32 v21, 0xffff0000, v%d" % (16+r))
        e("v_mul_f32 v20, s23, v20")
        e("v_mul_f32 v21, s23, v21")
        e("v_cvt_pk_bf16_f32 v%d, v20, v21" % (16+r))
    e("buffer_store_dwordx4 v[16:19], v5, s[12:15], s22 offen")
    fin()
    e("s_endpgm")
    e("%s_v:" % name)
    srd(p, 8, 26, 2 << 20)
    srd(p, 12, 6, 512 << 10, WS_VP)
    e("s_and_b32 s21, s17, 7\ns_lshl_b32 s21, s21, 5")
    e("s_add_u32 s20, s20, s21")
    e("s_add_u32 s21, s20, 4096")
    e("v_lshlrev_b32 v6, 1, v3")
    e("v_lshl_add_u32 v6, v4, 10, v6")
    for j in range(4):
        e("buffer_load_ushort v%d, v6, s[8:11], s20 offen offset:%d nt" % (24+j, j*256))
    for j in range(4):
        e("buffer_load_ushort v%d, v6, s[8:11], s21 offen offset:%d nt" % (28+j, j*256))
    pf()
    for r in range(4):
        e("v_lshl_or_b32 v%d, v%d, 16, v%d" % (16+r, 25+2*r, 24+2*r))
    e("buffer_store_dwordx4 v[16:19], v5, s[12:15], s22 offen")
    fin()
    e("%s_done:" % name)
    e("s_endpgm")
    return p

def assemble(kernels, launches, header=""):
    out = []
    if header: out.append(header.rstrip("\n"))
    for (n, g, b, l) in launches:
        out.append("; @launch kernel=%s grid=(%d,%d,%d) block=(%d,%d,%d) lds=%d" % (n, g[0], g[1], g[2], b[0], b[1], b[2], l))
    out.append('.amdgcn_target "amdgcn-amd-amdhsa--gfx950"')
    out.append(".text")
    for (n, prog, v, s, a) in kernels:
        out += [".globl %s" % n, ".p2align 8", ".type %s,@function" % n, "%s:" % n]
        out += finish(prog)
    out.append("code_end_label:")
    out.append("    s_endpgm")
    out.append('.section .rodata,"a"')
    for (n, prog, v, s, a) in kernels:
        out += [".p2align 6", ".amdhsa_kernel %s" % n,
                "  .amdhsa_next_free_vgpr %d" % v, "  .amdhsa_next_free_sgpr %d" % s, "  .amdhsa_accum_offset %d" % a,
                "  .amdhsa_group_segment_fixed_size 0", "  .amdhsa_kernarg_size 104", "  .amdhsa_user_sgpr_count 2",
                "  .amdhsa_user_sgpr_kernarg_segment_ptr 1", "  .amdhsa_system_sgpr_workgroup_id_x 1",
                "  .amdhsa_float_denorm_mode_32 3", "  .amdhsa_float_denorm_mode_16_64 3",
                ".end_amdhsa_kernel"]
    return "\n".join(out) + "\n"

if __name__ == "__main__":
    ks = [("prep_kernel", k0("prep"), 96, 48, 96)]
    ls = [("prep_kernel", (256,1,1), (512,1,1), 4096)]
    open("t0.s", "w").write(assemble(ks, ls))
    import build
    print(build.build("t0.s"))
```

```python
import sys
from asmgen import *
from kern import *

IMG = 8448
def k2(name, DW=8, DA=8, BAR=4, stamps=False, same=0, noact=False, now=False, slack=4, xnt=True, notr=False, nomfma=False):
    p = Prog(); e = p.e
    st = Stamps(p, stamps)
    p.lg_slack = slack
    U = 16
    def acc(nt, rt): return 8*nt + 4*rt
    V_PRE = 64
    V_TID, V_TR0, V_TR1, V_TR2, V_DW, V_XO, V_T0, V_T1, V_T2, V_T3, V_RM, V_DW2, V_FLAG, V_G8, V_LW, V_LR = 100, 101, 102, 103, 104, 105, 106, 107, 108, 109, 110, 111, 120, 121, 122, 123
    def wfrag(nt): return 4*nt
    def afrag(step, rt): return 32 + 8*(step % U) + 4*rt
    S_WAVE = 3
    SRD_W, SRD_WS, SRD_X, SRD_OUT, SRD_DBG, SRD_A = 8, 12, 16, 20, 24, 56
    S_A, S_W, S_MB, S_T0, S_T1, S_ROLE, S_RT, S_CT, S_CNT, S_G, S_PAIR, S_XB, S_NU, S_AB, S_FOFF, S_FMASK = 28, 29, 30, 31, 32, 33, 34, 35, 36, 38, 39, 50, 51, 55, 60, 61
    e("s_cmp_ge_u32 s2, 256")
    e("s_cbranch_scc1 %s_done" % name)
    st.stamp(True); st.stamp()
    e("s_load_dwordx2 s[4:5], s[0:1], %d" % KA['wo'])
    e("s_load_dwordx4 s[40:43], s[0:1], %d" % KA['w2'])
    e("s_load_dwordx4 s[44:47], s[0:1], %d" % KA['out'])
    e("s_load_dwordx2 s[6:7], s[0:1], %d" % KA['ws'])
    e("s_load_dwordx2 s[48:49], s[0:1], %d" % KA['x'])
    e("v_lshrrev_b32 v%d, 6, v0" % V_T0)
    e("v_and_b32 v%d, 63, v0" % V_TID)
    e("v_readfirstlane_b32 s%d, v%d" % (S_WAVE, V_T0))
    e("s_bfe_u32 s%d, s2, 0x10002" % S_ROLE)
    e("s_and_b32 s%d, s2, 3" % S_T0)
    e("s_lshr_b32 s%d, s2, 3" % S_T1)
    e("s_lshr_b32 s%d, s%d, 1" % (S_RT, S_T0))
    e("s_lshl_b32 s%d, s%d, 3" % (S_RT, S_RT))
    e("s_lshr_b32 s%d, s%d, 2" % (S_CT, S_T1))
    e("s_add_u32 s%d, s%d, s%d" % (S_RT, S_RT, S_CT))
    e("s_and_b32 s%d, s%d, 1" % (S_CT, S_T0))
    e("s_lshl_b32 s%d, s%d, 2" % (S_CT, S_CT))
    e("s_and_b32 s%d, s%d, 3" % (S_T1, S_T1))
    e("s_add_u32 s%d, s%d, s%d" % (S_CT, S_CT, S_T1))
    e("s_lshl_b32 s%d, s%d, 3" % (S_PAIR, S_RT))
    e("s_add_u32 s%d, s%d, s%d" % (S_PAIR, S_PAIR, S_CT))
    if same & 1: e("s_mov_b32 s%d, 0" % S_RT)
    if same & 2: e("s_mov_b32 s%d, 0" % S_CT)
    e("v_lshrrev_b32 v%d, 4, v%d" % (V_T0, V_TID))
    e("v_and_b32 v%d, 15, v%d" % (V_T1, V_TID))
    e("v_lshlrev_b32 v%d, 14, v%d" % (V_DW, V_T0))
    e("v_lshl_add_u32 v%d, v%d, 4, v%d" % (V_DW, V_T1, V_DW))
    e("v_and_b32 v%d, 1, v%d" % (V_T2, V_T0))
    e("v_lshlrev_b32 v%d, 2, v%d" % (V_T2, V_T2))
    e("v_bfe_u32 v%d, v%d, 2, 2" % (V_T3, V_TID))
    e("v_add_u32 v%d, v%d, v%d" % (V_T2, V_T2, V_T3))
    e("v_mul_u32_u24 v%d, 1056, v%d" % (V_TR0, V_T2))
    e("v_lshrrev_b32 v%d, 1, v%d" % (V_T2, V_T0))
    e("v_lshl_add_u32 v%d, v%d, 8, v%d" % (V_TR0, V_T2, V_TR0))
    e("v_and_b32 v%d, 3, v%d" % (V_T2, V_TID))
    e("v_lshl_add_u32 v%d, v%d, 3, v%d" % (V_TR0, V_T2, V_TR0))
    e("v_add_u32 v%d, %d, v%d" % (V_DW2, 2048-1056, V_DW))
    e("v_add_u32 v%d, %d, v%d" % (V_TR1, 7*IMG, V_TR0))
    e("v_add_u32 v%d, %d, v%d" % (V_TR2, 14*IMG, V_TR0))
    e("v_lshlrev_b32 v%d, 4, v%d" % (V_XO, V_TID))
    e("v_lshlrev_b32 v%d, 11, v%d" % (V_RM, V_T0))
    e("v_lshl_add_u32 v%d, v%d, 4, v%d" % (V_RM, V_T1, V_RM))
    e("v_lshlrev_b32 v%d, 3, v%d" % (V_G8, V_T0))
    e("v_mul_u32_u24 v%d, 272, v%d" % (V_LW, V_T1))
    e("v_add_u32 v%d, v%d, v%d" % (V_LW, V_LW, V_G8))
    e("v_mul_u32_u24 v%d, 272, v%d" % (V_LR, V_T0))
    e("v_lshl_add_u32 v%d, v%d, 4, v%d" % (V_LR, V_T1, V_LR))
    e("s_mul_i32 s%d, s%d, %d" % (S_T0, S_WAVE, 32*272))
    e("v_add_u32 v%d, s%d, v%d" % (V_LW, S_T0, V_LW))
    e("v_add_u32 v%d, s%d, v%d" % (V_LR, S_T0, V_LR))
    e("s_waitcnt lgkmcnt(0)")
    def sel(d, x, y):
        e("s_mov_b32 s%d, 0x%x" % (d, y))
        e("s_cselect_b32 s%d, 0x%x, s%d" % (d, x, d))
    e("s_cmp_eq_u32 s%d, 1" % S_ROLE)
    e("s_cselect_b32 s%d, s4, s40" % SRD_W)
    e("s_cselect_b32 s%d, s5, s41" % (SRD_W+1))
    sel(SRD_W+2, 8 << 20, 7 << 20)
    e("s_mov_b32 s%d, 0x20000" % (SRD_W+3))
    sel(S_NU, 128*2048, 112*2048)
    sel(62, OF_RP, HF_RP)
    sel(S_AB, WS_OF, WS_HF)
    e("s_cselect_b32 s%d, 8, 7" % S_CNT)
    e("s_cselect_b32 s%d, s48, s42" % SRD_X)
    e("s_cselect_b32 s%d, s49, s43" % (SRD_X+1))
    sel(SRD_X+2, 4 << 20, 2048)
    e("s_mov_b32 s%d, 0x20000" % (SRD_X+3))
    e("s_lshl_b32 s%d, s%d, 2" % (S_T0, S_RT))
    e("s_add_u32 s%d, s%d, s%d" % (S_T0, S_T0, S_WAVE))
    e("s_mul_i32 s%d, s%d, s62" % (S_A, S_T0))
    e("s_add_u32 s%d, s%d, s%d" % (S_A, S_A, S_AB))
    e("s_add_u32 s%d, s6, s%d" % (SRD_A, S_A))
    e("s_addc_u32 s%d, s7, 0" % (SRD_A+1))
    e("s_mov_b32 s%d, s%d" % (SRD_A+2, S_NU))
    e("s_mov_b32 s%d, 0x20000" % (SRD_A+3))
    e("s_mov_b32 s%d, 0" % S_A)
    e("s_lshl_b32 s%d, s%d, 8" % (S_W, S_CT))
    e("s_lshl_b32 s%d, s%d, 12" % (S_T0, S_WAVE))
    e("s_add_u32 s%d, s%d, s%d" % (S_W, S_W, S_T0))
    e("s_mul_i32 s%d, s%d, %d" % (S_MB, S_WAVE, 2*1056))
    def dma_step(slot):
        b = slot*IMG
        return [["s_add_u32 m0, s%d, %d" % (S_MB, b), "buffer_load_dwordx4 v%d, s[%d:%d], s%d offen lds" % (V_DW, SRD_W, SRD_W+3, S_W)],
                ["buffer_load_dwordx4 v%d, s[%d:%d], s%d offen offset:1056 lds" % (V_DW2, SRD_W, SRD_W+3, S_W)]]
    adv_w = ["s_add_u32 s%d, s%d, %d" % (S_W, S_W, 32*2048)]
    def a_loads(step):
        return ["buffer_load_dwordx4 a[%d:%d], v%d, s[%d:%d], s%d offen offset:%d" % (afrag(step, rt), afrag(step, rt)+3, V_XO, SRD_A, SRD_A+3, S_A, (step % 2)*2048 + rt*1024) for rt in range(2)]
    adv_a = "s_add_u32 s%d, s%d, 4096" % (S_A, S_A)
    def tr_reads(step, nt):
        slot = step % U
        v, o = (V_TR0, slot) if slot < 7 else (V_TR1, slot-7) if slot < 14 else (V_TR2, slot-14)
        return ["ds_read_b64_tr_b16 a[%d:%d], v%d offset:%d" % (wfrag(nt)+2*t, wfrag(nt)+2*t+1, v, o*IMG + nt*32 + t*512) for t in range(2)]
    DM = max(DW, DA)
    for s in range(DM):
        if s < DW:
            for grp in dma_step(s):
                for t in grp: e(t, tag=("w", s) if t.startswith("buffer") else None)
            for t in adv_w: e(t)
        if s < DA:
            for t in a_loads(s): e(t)
            if s % 2 == 1: e(adv_a)
        if s == 0:
            srd(p, SRD_WS, 6, WS_SIZE)
            srd(p, SRD_OUT, 44, 4 << 20)
            srd(p, SRD_DBG, 46, 256)
            e("s_lshl_b32 s%d, s%d, 15" % (S_G, S_PAIR))
            e("s_lshl_b32 s%d, s%d, 13" % (S_T0, S_WAVE))
            e("s_add_u32 s%d, s%d, s%d" % (S_G, S_G, S_T0))
            e("s_add_u32 s%d, s%d, 0x%x" % (S_G, S_G, WS_G))
            e("s_lshl_b32 s%d, s%d, 18" % (S_XB, S_RT))
            e("s_lshl_b32 s%d, s%d, 16" % (S_T0, S_WAVE))
            e("s_add_u32 s%d, s%d, s%d" % (S_XB, S_XB, S_T0))
            e("s_lshl_b32 s%d, s%d, 8" % (S_T0, S_CT))
            e("s_add_u32 s%d, s%d, s%d" % (S_XB, S_XB, S_T0))
            e("s_lshr_b32 s%d, s%d, 1" % (S_FOFF, S_PAIR))
            e("s_lshl_b32 s%d, s%d, 2" % (S_FOFF, S_FOFF))
            e("s_and_b32 s%d, s%d, 1" % (S_T1, S_PAIR))
            e("s_lshl_b32 s%d, s%d, 4" % (S_T1, S_T1))
            e("s_lshl_b32 s%d, 1, s%d" % (S_FMASK, S_T1))
            e("v_mov_b32 v%d, 0" % V_FLAG)
            e("v_mov_b32 v%d, 0" % V_T3)
        if s == 1:
            for i in range(64): e("v_mov_b32 v%d, 0" % i)
    e("s_cmp_eq_u32 s%d, 1" % S_ROLE)
    e("s_cbranch_scc0 %s_preg" % name)
    for i in range(8):
        e("s_add_u32 s%d, s%d, %d" % (S_T0, S_XB, i*8192))
        e("buffer_load_dwordx4 v[%d:%d], v%d, s[%d:%d], s%d offen%s" % (V_PRE+4*i, V_PRE+4*i+3, V_RM, SRD_X, SRD_X+3, S_T0, " nt" if xnt else ""), tag="optional")
    e("s_branch %s_prej" % name)
    e("%s_preg:" % name)
    e("s_lshl_b32 s%d, s%d, 8" % (S_T0, S_CT))
    for nt in range(8):
        e("buffer_load_dwordx2 v[%d:%d], v%d, s[%d:%d], s%d offen offset:%d" % (V_PRE+2*nt, V_PRE+2*nt+1, V_G8, SRD_X, SRD_X+3, S_T0, nt*32), tag="optional")
    e("%s_prej:" % name)
    st.stamp()
    p.waitvm(("w", 0))
    e("s_barrier")
    for nt in range(8):
        for t in tr_reads(0, nt): e(t)
    st.stamp()
    p.loop_begin("g2")
    e("%s_g2:" % name)
    for s in range(U):
        if s % BAR == 0:
            p.waitvm(("w", (s+BAR) % U))
            e("s_barrier")
        if s == 13:
            e("s_cmp_lg_u32 s%d, 1" % S_CNT)
            e("s_cbranch_scc1 %s_nofl" % name)
            e("buffer_load_dword v%d, v%d, s[%d:%d], s%d offen sc1" % (V_FLAG, V_T3, SRD_DBG, SRD_DBG+3, S_FOFF), tag="optional")
            e("%s_nofl:" % name)
        mf = []
        for nt in range(8):
            for rt in range(2):
                a = acc(nt, rt)
                mf.append(Ins("v_mfma_f32_16x16x32_bf16 v[%d:%d], a[%d:%d], a[%d:%d], v[%d:%d]" % (a, a+3, wfrag(nt), wfrag(nt)+3, afrag(s, rt), afrag(s, rt)+3, a, a+3)))
        fill = []
        for nt in range(8):
            r = tr_reads(s+1, nt)
            if notr: continue
            fill.append((min(2*nt+1, 15), Ins(r[0])))
            fill.append((min(2*nt+2, 15), Ins(r[1])))
        dm = dma_step((s + DW) % U)
        posd = [2, 8]
        for q, grp in enumerate(dm):
            for k_, t in enumerate(grp):
                if now and t.startswith("buffer"): continue
                fill.append((posd[q] - (len(grp)-1-k_), Ins(t, tag=("w", (s+DW) % U) if t.startswith("buffer") else None)))
        for q, t in enumerate(adv_w): fill.append((10+q, Ins(t)))
        for q, t in enumerate(a_loads(s + DA)):
            if not noact: fill.append((4+8*q, Ins(t)))
        if (s + DA) % 2 == 1: fill.append((14, Ins(adv_a)))
        fill.sort(key=lambda x: x[0])
        for ins in weave(mf, fill):
            if nomfma and ins.kind == 'mfma': continue
            p.add(ins)
    e("s_sub_u32 s%d, s%d, 1" % (S_CNT, S_CNT))
    e("s_cmp_lg_u32 s%d, 0" % S_CNT)
    e("s_cbranch_scc1 %s_g2" % name)
    p.loop_end()
    st.stamp()
    e("s_waitcnt vmcnt(0) lgkmcnt(0)")
    e("s_cmp_eq_u32 s%d, 1" % S_ROLE)
    e("s_cbranch_scc1 %s_epis" % name)
    LOG2E = f2u(1.4426950408889634)
    def rnd(a, b, t):
        e("v_cvt_pk_bf16_f32 v%d, v%d, v%d" % (t, a, b))
        e("v_lshlrev_b32 v%d, 16, v%d" % (a, t))
        e("v_and_b32 v%d, 0xffff0000, v%d" % (b, t))
    e("s_mov_b32 s52, 0x%x" % (LOG2E ^ 0x80000000))
    for u in range(4):
        for rt in range(2):
            d = 128 + 4*(2*u+rt)
            for half in range(2):
                nt = 2*u + half
                b = V_PRE + 2*nt
                a = acc(nt, rt)
                T = 112 + 4*half
                e("v_lshlrev_b32 v96, 16, v%d\nv_and_b32 v97, 0xffff0000, v%d\nv_lshlrev_b32 v98, 16, v%d\nv_and_b32 v99, 0xffff0000, v%d" % (b, b, b+1, b+1))
                rnd(a, a+1, V_T0); rnd(a+2, a+3, V_T1)
                for r in range(4): e("v_add_f32 v%d, v%d, v%d" % (a+r, a+r, 96+r))
                rnd(a, a+1, V_T0); rnd(a+2, a+3, V_T1)
                for r in range(4): e("v_mul_f32 v%d, s52, v%d" % (T+r, a+r))
                for r in range(4): e("v_exp_f32 v%d, v%d" % (T+r, T+r))
                for r in range(4): e("v_add_f32 v%d, 1.0, v%d" % (T+r, T+r))
                for r in range(4): e("v_rcp_f32 v%d, v%d" % (T+r, T+r))
                for r in range(4): e("v_mul_f32 v%d, v%d, v%d" % (a+r, a+r, T+r))
                e("v_cvt_pk_bf16_f32 v%d, v%d, v%d" % (d+2*half, a, a+1))
                e("v_cvt_pk_bf16_f32 v%d, v%d, v%d" % (d+2*half+1, a+2, a+3))
            e("s_add_u32 s%d, s%d, %d" % (S_T0, S_G, (2*u+rt)*1024))
            e("buffer_store_dwordx4 v[%d:%d], v%d, s[%d:%d], s%d offen sc1" % (d, d+3, V_XO, SRD_WS, SRD_WS+3, S_T0))
    e("s_waitcnt vmcnt(0)")
    e("s_barrier")
    e("s_cmp_lg_u32 s%d, 0" % S_WAVE)
    e("s_cbranch_scc1 %s_fin" % name)
    e("s_mov_b64 exec, 1")
    e("v_mov_b32 v%d, s%d" % (V_T0, S_FMASK))
    e("buffer_atomic_add v%d, v%d, s[%d:%d], s%d offen sc1" % (V_T0, V_T3, SRD_DBG, SRD_DBG+3, S_FOFF))
    e("s_waitcnt vmcnt(0)")
    e("s_branch %s_fin" % name)
    e("%s_epis:" % name)
    e("s_barrier")
    e("s_mov_b32 s53, 0x400000")
    e("%s_poll:" % name)
    e("v_readfirstlane_b32 s54, v%d" % V_FLAG)
    e("s_and_b32 s54, s54, s%d" % S_FMASK)
    e("s_cbranch_scc1 %s_polled" % name)
    e("s_sleep 1")
    e("buffer_load_dword v%d, v%d, s[%d:%d], s%d offen sc1" % (V_FLAG, V_T3, SRD_DBG, SRD_DBG+3, S_FOFF))
    e("s_waitcnt vmcnt(0)")
    e("s_sub_u32 s53, s53, 1")
    e("s_cmp_lg_u32 s53, 0")
    e("s_cbranch_scc1 %s_poll" % name)
    e("%s_polled:" % name)
    for k_ in range(8):
        e("s_add_u32 s%d, s%d, %d" % (S_T0, S_G, k_*1024))
        e("buffer_load_dwordx4 v[%d:%d], v%d, s[%d:%d], s%d offen sc1" % (128+4*k_, 128+4*k_+3, V_XO, SRD_WS, SRD_WS+3, S_T0))
    for nt in range(8):
        for rt in range(2):
            a = acc(nt, rt)
            rnd(a, a+1, V_T0); rnd(a+2, a+3, V_T1)
    for u in range(4):
        for rt in range(2):
            gq = 128 + 4*(2*u+rt)
            for half in range(2):
                nt = 2*u + half
                a = acc(nt, rt)
                T = 112 + 4*half
                e("v_lshlrev_b32 v%d, 16, v%d\nv_and_b32 v%d, 0xffff0000, v%d\nv_lshlrev_b32 v%d, 16, v%d\nv_and_b32 v%d, 0xffff0000, v%d" % (T, gq+2*half, T+1, gq+2*half, T+2, gq+2*half+1, T+3, gq+2*half+1))
                for r in range(4): e("v_mul_f32 v%d, v%d, v%d" % (a+r, a+r, T+r))
                e("v_cvt_pk_bf16_f32 v%d, v%d, v%d" % (a, a, a+1))
                e("v_cvt_pk_bf16_f32 v%d, v%d, v%d" % (a+1, a+2, a+3))
                e("ds_write_b64 v%d, v[%d:%d] offset:%d" % (V_LW, a, a+1, rt*16*272 + nt*32))
    e("s_waitcnt lgkmcnt(0)")
    for i in range(8):
        e("ds_read_b128 v[%d:%d], v%d offset:%d" % (128+4*i, 128+4*i+3, V_LR, i*4*272))
    for i in range(8):
        pr, xr = 128+4*i, V_PRE+4*i
        for h in range(2):
            T = 112 + 8*0
            for q in range(2):
                di = 2*h + q
                e("v_lshlrev_b32 v%d, 16, v%d" % (112+4*q, pr+di)); e("v_and_b32 v%d, 0xffff0000, v%d" % (113+4*q, pr+di))
                e("v_lshlrev_b32 v%d, 16, v%d" % (114+4*q, xr+di)); e("v_and_b32 v%d, 0xffff0000, v%d" % (115+4*q, xr+di))
            for q in range(2):
                e("v_add_f32 v%d, v%d, v%d" % (112+4*q, 112+4*q, 114+4*q)); e("v_add_f32 v%d, v%d, v%d" % (113+4*q, 113+4*q, 115+4*q))
            for q in range(2):
                e("v_cvt_pk_bf16_f32 v%d, v%d, v%d" % (pr+2*h+q, 112+4*q, 113+4*q))
        e("s_add_u32 s%d, s%d, %d" % (S_T0, S_XB, i*8192))
        e("buffer_store_dwordx4 v[%d:%d], v%d, s[%d:%d], s%d offen" % (pr, pr+3, V_RM, SRD_OUT, SRD_OUT+3, S_T0))
    e("%s_fin:" % name)
    if stamps:
        e("s_waitcnt vmcnt(0)")
        e("s_mov_b64 exec, -1")
        st.stamp(); st.stamp(True)
        st.dump(SRD_WS, V_T0, 2)
    e("%s_done:" % name)
    e("s_endpgm")
    return p

def arg(n, d):
    for a in sys.argv:
        if a.startswith(n + "="): return int(a[len(n)+1:])
    return d
def build_all(fn, stamps=False, k0kw={}, k1kw={}, k2kw={}):
    k0kw = dict(k0kw, sleep=arg("sleep0", 0), prefetch=bool(arg("pf0", 0)))
    if arg("tl", 0):
        k0kw = dict(k0kw, tl=True); k1kw = dict(k1kw, tl=True); k2kw = dict(k2kw, tl=True)
    import kern
    if arg("dstamp", 0):
        kern.DSTAMP[0] = arg("dstamp", 0); kern.DSTAMP.append([2, 3, 4, 6, 8, 9, 11])
    from k1 import k1, STEP_LDS
    import k2b, k2c
    KV = arg('kv', 2)
    fused = bool(arg("fused", 0))
    k1kw = dict(k1kw, fused=fused, diag0=bool(arg("diag0", 0)), psleep=arg("psleep", 1), pf3=arg("pf3", 0), pfnt=bool(arg("pfnt", 0)), xnt0=bool(arg("xnt0", 0)), sch=arg("sch", 0), sco=arg("sco", 0), hspread=bool(arg("hspread", 0)), p0v=arg("p0v", 2), refine=bool(arg("refine", 0)), codepf=arg("codepf1", 13 if arg("one", 0) else 0), cpos=arg("cpos", 1), kvchk=arg("kvchk", 1), wpf=arg("wpf", 0), gearly=arg("gearly", 1), nlate=arg("nlate", 1), tint=arg("tint", 0), lnfast=arg("lnfast", 0), oint=arg("oint", 1), rot1=arg("rot1", 0), wpp=arg("wpp", 0), kvnt=arg("kvnt", 1), wpos=arg("wpos", 52), wnt=arg("wnt", 1), cgmap=arg("cgmap", 0), pfg=arg("pfg", 0), wflag=arg("wflag", 2), dg=arg("dg", 0))
    if arg("one", 0):
        KN = "recurrent_scan__sliding_block_cached__dense_activation_squared_relu__prompt_kernel"
        prog = k1("pa", stamps=stamps, tail=lambda p, st: k2c.k2("pb", p=p, st=st, codepf=k1kw["codepf"], start="pa_start", psleep=arg("psleep2", 2), gearly=arg("gearly", 1), lds_word=8*STEP_LDS + 260, **k2kw), **k1kw)
        hdr = open("recurrent_scan__sliding_block_cached__dense_activation_squared_relu__prompt.s.ref").read().split("; Override")[0]
        if arg("plain", 0):
            txt = assemble([(KN, prog, 512, 102, 256)], [], header=hdr + "; @launch grid=(256,1,1) block=(256,1,1) lds=%d" % (8*STEP_LDS + 512 + 4096))
        else:
            txt = assemble([("pa_kernel", prog, 512, 102, 256)], [("pa_kernel", (256,1,1), (256,1,1), 8*STEP_LDS + 512 + 4096)], header=hdr)
        open(fn + ".s", "w").write(txt)
        import build
        return build.build(fn + ".s")
    ks = [("pa_kernel", k1("pa", stamps=stamps, **k1kw), 512, 102, 256),
          ("pb_kernel", (k2c.k2 if KV == 3 else k2b.k2 if arg("v2", 1) else k2)("pb", stamps=stamps, **k2kw), 512, 102, 256)]
    ls = [("pa_kernel", (256,1,1), (256,1,1), 8*STEP_LDS + (512 + 4096 if fused else 0)), ("pb_kernel", (256,1,1), (256,1,1), 16*IMG if KV != 3 else arg("lds2", 8*IMG))]
    if not fused:
        ks.insert(0, ("prep_kernel", k0("prep", stamps=stamps, codepf=("pa_kernel", "code_end_label") if arg("codepf", 0) else None, **k0kw), 96, 102, 96))
        ls.insert(0, ("prep_kernel", (256,1,1), (512,1,1), 4096))
    hdr = open("recurrent_scan__sliding_block_cached__dense_activation_squared_relu__prompt.s.ref").read().split("; Override")[0]
    open(fn + ".s", "w").write(assemble(ks, ls, header=hdr))
    import build
    return build.build(fn + ".s")
if __name__ == "__main__":
    fn = ([a[3:] for a in sys.argv if a.startswith("fn=")] + ["t2"])[0]
    print(build_all(fn, stamps="stamps" in sys.argv, k1kw=dict(D=arg("D", 3), BAR=arg("BAR1", 1), slack=arg("slack1", 6), pf2=bool(arg("pf2", 1)), force_slow=bool(arg("slow", 0))),
          k2kw=(dict(DW=arg("DW", 6), DA=arg("DA", 3), BAR=arg("BAR2", 2), slack=arg("slack", 6), force_far=bool(arg("far", 0)), cmap=arg("cmap", 0), PT=arg("PT", 0), skew=arg("skew", 1), spr=arg("spr", 0), half16=arg("half16", 1), xnt=bool(arg("xnt2", 0)), small=arg("small", 1), gpk=arg("gpk", 1), dg=arg("dg", 0), ep2=arg("ep2", 1), osc=["", " sc1", " nt", " sc0 sc1", " sc1 nt"][arg("osc", 1)], wflag=arg("wflag", 2), xlate=arg("xlate", 2), exld=["", " sc0", " nt", " sc1", " sc0 sc1"][arg("exld", 3)], exst=["", " sc0", " nt"][arg("exst", 0)], diag=arg("diag", 0), noact=bool(arg("noact", 0)), now=bool(arg("now", 0))) if arg("kv", 2) == 3 else dict(DW=arg("DW", 8), DA=arg("DA", 3), mapping=arg("map", 2), split=arg("split", 0), wlin=arg("wlin", 0), rot=arg("rot", 0), exp=arg("exp", 0), slack=arg("slack", 6), noact=bool(arg("noact", 0)), now=bool(arg("now", 0)), same=arg("same", 0)) if arg("v2", 1) else dict())))
```

```python
import sys
from asmgen import *
from kern import *

STEP_LDS = 16896
IMG = 8448
KV_SLOT = 16384

def k1(name, U=8, D=3, BAR=1, stamps=False, wnt=True, pf2=True, slack=6, force_slow=False, thr_log2=30, tl=False, fused=False, psleep=4, diag0=False, pf3=False, pfnt=False, xnt0=True, tail=None, st=None, sch=None, sco=None, hspread=False, p0v=2, refine=True, codepf=False, spin=0x80000, cpos=1, kvchk=1, wflag=0, dg=0, pfg=0, cgmap=0, wpf=0, wpos=52, kvnt=1, wpp=0, rot1=0, oint=0, lnfast=0, tint=0, nlate=1, gearly=0, snake=0, dearly=None, ln1=0, cmap2=0):
    p = Prog(); e = p.e
    p.lg_slack = slack
    st = Stamps(p, stamps)
    one = tail is not None
    if dearly is None: dearly = D
    if one: assert fused and not tl
    SCO = " sc1" if (one or sco) else ""
    SCH = " sc1" if (one or sch) else ""
    def stamp1():
        if not one: st.stamp()
    assert BAR < D <= U - BAR
    def accQ(nt, rt): return 16*nt + 4*rt
    def accH(nt, rt): return 128 + 16*nt + 4*rt
    V_TID, V_TR, V_DQ, V_D1, V_XO, V_T0, V_T1, V_T2, V_T3, V_DQ2, V_D12 = 240, 241, 242, 243, 244, 245, 246, 247, 248, 249, 250
    def wfrag(nt): return 4*nt
    def xfrag(step, rt): return 60 + 16*(step % U) + 4*rt
    V_NONCE = 251
    S_WAVE = 3
    SRD_WQ, SRD_W1, SRD_WS, SRD_B1, SRD_XN, SRD_K, SRD_V, SRD_PO, SRD_P2 = 8, 12, 16, 20, 24, 28, 32, 52, 56
    S_XN, S_Q, S_1, S_MB, S_T0, S_T1, S_CG, S_RG, S_CNT, S_H0, S_H6, S_KS, S_RP, S_OB, S_KVR, S_PF0, S_PF1 = 36, 37, 38, 39, 40, 41, 42, 43, 44, 45, 46, 47, 48, 49, 50, 51, 60
    NT = {True: " nt", False: "", 1: " nt", 0: "", 2: " sc1", 3: " sc0 sc1", 4: " sc1 nt", 5: " sc0 nt", 6: " sc0", 7: " sc0 sc1 nt", 8: " nt"}[wnt]
    e("%s_start:" % name)
    e("s_cmp_ge_u32 s2, 256")
    e("s_cbranch_scc1 %s_done" % name)
    st.stamp(True); st.stamp()
    if tl: tl_start(p)
    e("s_load_dwordx2 s[4:5], s[0:1], %d" % KA['wq'])
    e("s_load_dwordx4 s[88:91], s[0:1], %d" % KA['w1'])
    e("s_load_dwordx2 s[6:7], s[0:1], %d" % KA['ws'])
    e("s_load_dwordx2 s[92:93], s[0:1], %d" % KA['wo'])
    e("s_load_dwordx2 s[94:95], s[0:1], %d" % KA['w2'])
    if fused:
        e("s_load_dwordx2 s[96:97], s[0:1], %d" % KA['x'])
        e("s_load_dwordx4 s[52:55], s[0:1], %d" % KA['k'])
        e("s_load_dwordx2 s[56:57], s[0:1], %d" % KA['dbg'])
    e("v_lshrrev_b32 v%d, 6, v0" % V_T0)
    e("v_and_b32 v%d, 63, v0" % V_TID)
    e("v_readfirstlane_b32 s%d, v%d" % (S_WAVE, V_T0))
    START = "%s_start" % name
    def first_codepf(d, so):
        code_srd(p, d, so, START)
        e("v_lshlrev_b32 v%d, 4, v%d" % (V_T1, V_TID))
        e("buffer_load_dwordx4 v[124:127], v%d, s[%d:%d], s%d offen" % (V_T1, d, d+3, so), tag="pf")
    if codepf and cpos == 0: first_codepf(60, S_T0)
    e("s_and_b32 s%d, s2, 7" % S_T0)
    e("s_lshr_b32 s%d, s2, 3" % S_T1)
    if cgmap == 0:
        e("s_lshl_b32 s%d, s%d, 2" % (S_CG, S_T0))
        e("s_and_b32 s%d, s%d, 3" % (S_T0, S_T1))
        e("s_add_u32 s%d, s%d, s%d" % (S_CG, S_CG, S_T0))
    elif cgmap == 1:
        e("s_lshr_b32 s%d, s%d, 1\ns_lshl_b32 s%d, s%d, 3\ns_and_b32 s%d, s%d, 1\ns_add_u32 s%d, s%d, s%d" % (S_CG, S_T0, S_CG, S_CG, S_T0, S_T0, S_CG, S_CG, S_T0))
        e("s_and_b32 s%d, s%d, 3\ns_lshl_b32 s%d, s%d, 1\ns_add_u32 s%d, s%d, s%d" % (S_T0, S_T1, S_T0, S_T0, S_CG, S_CG, S_T0))
    elif cgmap == 2:
        e("s_lshr_b32 s%d, s%d, 1\ns_lshl_b32 s%d, s%d, 3\ns_and_b32 s%d, s%d, 1\ns_lshl_b32 s%d, s%d, 1\ns_add_u32 s%d, s%d, s%d" % (S_CG, S_T0, S_CG, S_CG, S_T0, S_T0, S_T0, S_T0, S_CG, S_CG, S_T0))
        e("s_and_b32 s%d, s%d, 1\ns_add_u32 s%d, s%d, s%d" % (S_T0, S_T1, S_CG, S_CG, S_T0))
        e("s_and_b32 s%d, s%d, 2\ns_lshl_b32 s%d, s%d, 1\ns_add_u32 s%d, s%d, s%d" % (S_T0, S_T1, S_T0, S_T0, S_CG, S_CG, S_T0))
    elif cgmap == 3:
        e("s_lshr_b32 s%d, s%d, 1\ns_lshl_b32 s%d, s%d, 3" % (S_CG, S_T0, S_CG, S_CG))
        e("s_and_b32 s%d, s%d, 3" % (S_H0, S_T1))
        e("s_and_b32 s%d, s%d, 2\ns_lshl_b32 s%d, s%d, 1" % (S_H6, S_H0, S_H6, S_H6))
        e("s_add_u32 s%d, s%d, s%d" % (S_CG, S_CG, S_H6))
        e("s_and_b32 s%d, s%d, 1" % (S_H0, S_H0))
        e("s_and_b32 s%d, s%d, 1" % (S_T0, S_T0))
        e("s_mul_i32 s%d, s%d, 3\ns_xor_b32 s%d, s%d, s%d\ns_add_u32 s%d, s%d, s%d" % (S_H0, S_H0, S_H0, S_H0, S_T0, S_CG, S_CG, S_H0))
    e("s_lshr_b32 s%d, s%d, 2" % (S_T1, S_T1))
    e("s_lshl_b32 s%d, s%d, 2" % (S_RG, S_T1))
    e("s_add_u32 s%d, s%d, s%d" % (S_RG, S_RG, S_WAVE))
    e("v_lshrrev_b32 v%d, 4, v%d" % (V_T0, V_TID))
    e("v_and_b32 v%d, 15, v%d" % (V_T1, V_TID))
    e("v_lshlrev_b32 v%d, 16, v%d" % (V_DQ, V_T0))
    e("v_lshl_add_u32 v%d, v%d, 4, v%d" % (V_DQ, V_T1, V_DQ))
    e("v_add_u32 v%d, 2, v%d" % (V_T2, V_T1))
    e("v_and_b32 v%d, 1, v%d" % (V_T3, V_T1))
    e("v_cmp_gt_u32 vcc, 12, v%d" % V_T1)
    e("v_cndmask_b32 v%d, v%d, v%d, vcc" % (V_T2, V_T3, V_T2))
    e("s_bitcmp1_b32 s%d, 0" % S_CG)
    e("s_cselect_b64 vcc, -1, 0")
    e("v_cndmask_b32 v%d, v%d, v%d, vcc" % (V_T2, V_T1, V_T2))
    e("v_mul_u32_u24 v%d, %d, v%d" % (V_D1, 8*7168, V_T0))
    e("v_lshl_add_u32 v%d, v%d, 4, v%d" % (V_D1, V_T2, V_D1))
    e("v_add_u32 v%d, %d, v%d" % (V_DQ2, 8192-1056, V_DQ))
    e("v_add_u32 v%d, %d, v%d" % (V_D12, 7168-1056, V_D1))
    e("v_and_b32 v%d, 1, v%d" % (V_T2, V_T0))
    e("v_lshlrev_b32 v%d, 2, v%d" % (V_T2, V_T2))
    e("v_bfe_u32 v%d, v%d, 2, 2" % (V_T3, V_TID))
    e("v_add_u32 v%d, v%d, v%d" % (V_T2, V_T2, V_T3))
    e("v_mul_u32_u24 v%d, 1056, v%d" % (V_TR, V_T2))
    e("v_lshrrev_b32 v%d, 1, v%d" % (V_T2, V_T0))
    e("v_lshl_add_u32 v%d, v%d, 8, v%d" % (V_TR, V_T2, V_TR))
    e("v_and_b32 v%d, 3, v%d" % (V_T2, V_TID))
    e("v_lshl_add_u32 v%d, v%d, 3, v%d" % (V_TR, V_T2, V_TR))
    e("v_lshlrev_b32 v%d, 4, v%d" % (V_XO, V_TID))
    e("v_lshlrev_b32 v%d, 3, v%d" % (V_T0, V_T0))
    e("s_lshl_b32 s%d, s%d, 8" % (S_Q, S_CG))
    e("s_lshl_b32 s%d, s%d, 14" % (S_T0, S_WAVE))
    e("s_add_u32 s%d, s%d, s%d" % (S_Q, S_Q, S_T0))
    e("s_mul_i32 s%d, s%d, 224" % (S_1, S_CG))
    e("s_mul_i32 s%d, s%d, %d" % (S_T0, S_WAVE, 2*7168))
    e("s_add_u32 s%d, s%d, s%d" % (S_H0, S_1, S_T0))
    e("s_mul_i32 s%d, s%d, %d" % (S_MB, S_WAVE, 2*1056))
    e("s_mul_i32 s%d, s%d, %d" % (S_T0, S_RG, XN_RG))
    e("s_and_b32 s%d, s%d, 1" % (S_T1, S_CG))
    e("s_lshl_b32 s%d, s%d, 5" % (S_T1, S_T1))
    e("s_add_u32 s%d, s%d, s%d" % (S_H6, S_1, S_T1))
    e("s_bitcmp1_b32 s%d, 0" % S_CG)
    e("s_cselect_b32 s%d, 0, 192" % S_T1)
    e("s_add_u32 s%d, s%d, s%d" % (S_T1, S_1, S_T1))
    e("s_mov_b32 s%d, s%d" % (S_1, S_H0))
    e("s_mov_b32 s%d, 0" % S_XN)
    if rot1:
        e("s_lshr_b32 s%d, s2, %d\ns_and_b32 s%d, s%d, 3" % (S_H0, 5 if rot1 == 1 else 6, S_H0, S_H0))
        e("s_lshl_b32 s%d, s%d, 21\ns_add_u32 s%d, s%d, s%d" % (S_XN, S_H0, S_Q, S_Q, S_XN))
        e("s_mul_i32 s%d, s%d, %d\ns_add_u32 s%d, s%d, s%d" % (S_XN, S_H0, 8*32*7168, S_1, S_1, S_XN))
        e("s_lshl_b32 s%d, s%d, 15" % (S_XN, S_H0))
    if fused:
        V_L8, V_B3, V_B4, V_B5, V_A = 100, 101, 102, 103, 104
        e("v_and_b32 v%d, 7, v%d" % (V_L8, V_TID))
        e("v_bfe_u32 v%d, v%d, 3, 1" % (V_B3, V_TID))
        e("v_bfe_u32 v%d, v%d, 4, 1" % (V_B4, V_TID))
        e("v_lshrrev_b32 v%d, 5, v%d" % (V_B5, V_TID))
        e("v_lshlrev_b32 v%d, 11, v%d" % (V_A, V_L8))
        e("v_lshl_add_u32 v%d, v%d, 6, v%d" % (V_A, V_B4, V_A))
        e("v_lshl_add_u32 v%d, v%d, 4, v%d" % (V_A, V_B3, V_A))
        e("v_lshl_add_u32 v%d, v%d, 5, v%d" % (V_A, V_B5, V_A))
        e("s_lshr_b32 s47, s2, 5")
        e("s_lshl_b32 s48, s47, 8\ns_lshl_b32 s49, s%d, 3\ns_add_u32 s48, s48, s49" % S_CG)
        e("s_lshl_b32 s48, s48, 11\ns_lshl_b32 s49, s%d, 9\ns_add_u32 s48, s48, s49" % S_WAVE)
    e("s_waitcnt lgkmcnt(0)")
    SC = " sc1" if fused else ""
    if fused:
        SRD_T0, SRD_T1 = 60, 28
        S_NONCE = 100
        V_L8, V_B3, V_B4, V_B5, V_A = 100, 101, 102, 103, 104
        e("s_mov_b32 s72, s56\ns_mov_b32 s73, s57\ns_mov_b32 s74, 256\ns_mov_b32 s75, 0x20000") if False else None
        srd(p, SRD_T0, 96, 4 << 20)
        for q in range(4):
            e("buffer_load_dwordx4 v[%d:%d], v%d, s[%d:%d], s48 offen offset:%d%s" % (16+4*q, 19+4*q, V_A, SRD_T0, SRD_T0+3, q*128, " nt" if xnt0 else ""))
        e("s_mov_b32 s32, s56\ns_mov_b32 s33, s57\ns_mov_b32 s34, 256\ns_mov_b32 s35, 0x20000")
        e("v_mov_b32 v121, 0")
        e("s_or_b32 s49, s2, s%d" % S_WAVE)
        e("s_cmp_lg_u32 s49, 0")
        e("s_cbranch_scc1 %s_nonce" % name)
        e("s_memrealtime s[50:51]")
        e("s_waitcnt lgkmcnt(0)")
        e("s_or_b32 s50, s50, 1")
        e("v_mov_b32 v120, s50")
        e("buffer_store_dword v120, v121, s[32:35], 0 offen sc1", tag="optional")
        e("%s_nonce:" % name)
        e("s_lshl_b32 s49, s2, 2\ns_add_u32 s49, s49, s%d" % S_WAVE)
        e("s_and_b32 s50, s49, 511")
        e("s_lshr_b32 s51, s50, 7\ns_lshl_b32 s51, s51, 19")
        e("s_lshr_b32 s%d, s50, 3\ns_and_b32 s%d, s%d, 15\ns_lshl_b32 s%d, s%d, 13" % (S_T0, S_T0, S_T0, S_T0, S_T0))
        e("s_add_u32 s51, s51, s%d\ns_add_u32 s51, s51, %d" % (S_T0, 1536*256))
        e("s_cmp_ge_u32 s49, 512")
        e("s_cselect_b32 s%d, s54, s52" % SRD_T1)
        e("s_cselect_b32 s%d, s55, s53" % (SRD_T1+1))
        e("s_mov_b32 s%d, %d" % (SRD_T1+2, 2 << 20))
        e("s_mov_b32 s%d, 0x20000" % (SRD_T1+3))
        e("s_cbranch_scc1 %s_ldv" % name)
        e("s_lshr_b32 s%d, s50, 2\ns_and_b32 s%d, s%d, 1\ns_lshl_b32 s%d, s%d, 12\ns_add_u32 s51, s51, s%d" % (S_T0, S_T0, S_T0, S_T0, S_T0, S_T0))
        e("s_and_b32 s%d, s50, 3\ns_lshl_b32 s%d, s%d, 6\ns_add_u32 s51, s51, s%d" % (S_T0, S_T0, S_T0, S_T0))
        e("v_and_b32 v106, 15, v%d\nv_lshlrev_b32 v106, 8, v106\nv_lshrrev_b32 v105, 4, v%d\nv_lshl_add_u32 v106, v105, 4, v106" % (V_TID, V_TID))
        e("s_branch %s_ldj" % name)
        e("%s_ldv:" % name)
        e("s_and_b32 s%d, s50, 7\ns_lshl_b32 s%d, s%d, 5\ns_add_u32 s51, s51, s%d" % (S_T0, S_T0, S_T0, S_T0))
        e("v_lshrrev_b32 v106, 1, v%d\nv_lshlrev_b32 v106, 8, v106\nv_and_b32 v105, 1, v%d\nv_lshl_add_u32 v106, v105, 4, v106" % (V_TID, V_TID))
        e("%s_ldj:" % name)
        e("buffer_load_dwordx4 v[108:111], v106, s[%d:%d], s51 offen%s" % (SRD_T1, SRD_T1+3, " nt" if kvnt else ""))
        if codepf and cpos == 1: first_codepf(60, S_T0)
        def nonce_load():
            e("s_cmp_lg_u32 s%d, 0" % S_WAVE)
            e("s_cbranch_scc1 %s_nl" % name)
            e("buffer_load_dword v%d, v121, s[32:35], 0 offen sc1" % V_NONCE, tag="optional")
            e("%s_nl:" % name)
        if not nlate: nonce_load()
    if fused:
        e("s_mul_i32 s%d, s%d, %d" % (S_T0, S_RG, XN_RG))
    srd(p, SRD_B1, 90, 7168)
    def bias_loads():
        for nt in range(6):
            e("buffer_load_dwordx2 v[%d:%d], v%d, s[%d:%d], s%d offen offset:%d" % (accH(nt, 3)+2, accH(nt, 3)+3, V_T0, SRD_B1, SRD_B1+3, S_H6, nt*32), tag="bias")
        e("buffer_load_dwordx2 v[%d:%d], v%d, s[%d:%d], s%d offen" % (accH(6, 3)+2, accH(6, 3)+3, V_T0, SRD_B1, SRD_B1+3, S_T1 if not (fused and p0v == 3) else S_CNT), tag="bias")
    if not (fused and p0v == 3): bias_loads()
    else: e("s_mov_b32 s%d, s%d" % (S_CNT, S_T1))
    srd(p, SRD_WQ, 4, 8 << 20)
    srd(p, SRD_W1, 88, 7 << 20)
    e("s_add_u32 s%d, s6, s%d" % (SRD_XN, S_T0))
    e("s_addc_u32 s%d, s7, 0" % (SRD_XN+1))
    e("s_mov_b32 s%d, 131072" % (SRD_XN+2))
    e("s_mov_b32 s%d, 0x20000" % (SRD_XN+3))
    def dma_step(slot, NT=NT):
        b = slot*STEP_LDS
        return [["s_add_u32 m0, s%d, %d" % (S_MB, b), "buffer_load_dwordx4 v%d, s[%d:%d], s%d offen%s lds" % (V_DQ, SRD_WQ, SRD_WQ+3, S_Q, NT)],
                ["buffer_load_dwordx4 v%d, s[%d:%d], s%d offen offset:1056%s lds" % (V_DQ2, SRD_WQ, SRD_WQ+3, S_Q, NT)],
                ["s_add_u32 m0, s%d, %d" % (S_MB, b+IMG), "buffer_load_dwordx4 v%d, s[%d:%d], s%d offen%s lds" % (V_D1, SRD_W1, SRD_W1+3, S_1, NT)],
                ["buffer_load_dwordx4 v%d, s[%d:%d], s%d offen offset:1056%s lds" % (V_D12, SRD_W1, SRD_W1+3, S_1, NT)]]
    adv_dma = ["s_add_u32 s%d, s%d, %d" % (S_Q, S_Q, 32*8192), "s_add_u32 s%d, s%d, %d" % (S_1, S_1, 32*7168)]
    def xn_loads(step):
        return ["buffer_load_dwordx4 a[%d:%d], v%d, s[%d:%d], s%d offen offset:%d" % (xfrag(step, rt), xfrag(step, rt)+3, V_XO, SRD_XN, SRD_XN+3, S_XN, rt*1024) + SC for rt in range(4)]
    adv_xn = "s_add_u32 s%d, s%d, 4096" % (S_XN, S_XN)
    def tr_reads(step, nt):
        slot = step % U
        off = (slot % 4)*STEP_LDS + (IMG if nt >= 8 else 0) + ((nt - 8) if nt >= 8 else nt)*32
        return ["ds_read_b64_tr_b16 a[%d:%d], v%d offset:%d" % (wfrag(nt)+2*t, wfrag(nt)+2*t+1, V_TR, off + t*512) for t in range(2)]
    init = ["v_mov_b32 v%d, 0" % i for i in range(128)]
    NZ = len(init)
    for nt in range(7):
        b = accH(nt, 3)
        for rt in range(3):
            a = accH(nt, rt)
            init += ["v_lshlrev_b32 v%d, 16, v%d" % (a, b+2), "v_and_b32 v%d, 0xffff0000, v%d" % (a+1, b+2),
                     "v_lshlrev_b32 v%d, 16, v%d" % (a+2, b+3), "v_and_b32 v%d, 0xffff0000, v%d" % (a+3, b+3)]
        init += ["v_lshlrev_b32 v%d, 16, v%d" % (b, b+2), "v_and_b32 v%d, 0xffff0000, v%d" % (b+1, b+2),
                 "v_lshlrev_b32 v%d, 16, v%d" % (b+2, b+3), "v_mov_b32 v%d, v%d" % (b+3, accH(nt, 2)+3)]
    if not fused:
        nvm = 8*D; per = -(-len(init)//nvm); ii = 0
        for s in range(D):
            seq = []
            for grp in dma_step(s): seq.append([(t, ("dma", s % U) if t.startswith("buffer") else None) for t in grp])
            for t in xn_loads(s): seq.append([(t, None)])
            for grp in seq:
                for t, tg in grp: e(t, tag=tg)
                for t in init[ii:ii+per]: e(t)
                ii += per
            for t in adv_dma: e(t)
            e(adv_xn)
        for t in init[ii:]: e(t)
    else:
        if p0v != 3:
            for s_ in range(dearly if p0v != 4 else 1):
                for grp in dma_step(s_):
                    for t in grp: e(t, tag=("dma", s_ % U) if t.startswith("buffer") else None)
                for t in adv_dma: e(t)
        srd(p, SRD_WS, 6, WS_SIZE)
        LNS = 8*STEP_LDS
        def kv_block(nwait):
            e("s_lshl_b32 s51, s50, 10")
            e("s_cmp_ge_u32 s49, 512")
            e("s_cbranch_scc1 %s_stv" % name)
            e("s_mov_b32 s%d, 0x%x" % (S_T1, f2u(CSCALE)))
            for r in range(4):
                e("v_lshlrev_b32 v112, 16, v%d\nv_and_b32 v113, 0xffff0000, v%d" % (108+r, 108+r))
                e("v_mul_f32 v112, s%d, v112\nv_mul_f32 v113, s%d, v113" % (S_T1, S_T1))
                e("v_cvt_pk_bf16_f32 v%d, v112, v113" % (108+r))
            e("v_permlane32_swap_b32 v108, v110")
            e("v_permlane32_swap_b32 v109, v111")
            e("v_and_b32 v114, 15, v%d\nv_lshlrev_b32 v114, 4, v114\nv_lshl_add_u32 v114, v%d, 9, v114\nv_lshl_add_u32 v114, v%d, 8, v114" % (V_TID, V_B4, V_B5))
            e("s_add_u32 s51, s51, %d" % WS_KP)
            e("s_branch %s_stj" % name)
            e("%s_stv:" % name)
            e("s_waitcnt vmcnt(%d)" % nwait)
            e("s_lshl_b32 s%d, s%d, 10\ns_add_u32 s%d, s%d, %d" % (S_T1, S_WAVE, S_T1, S_T1, LNS + 512))
            e("v_add_u32 v114, s%d, v%d" % (S_T1, V_XO))
            e("ds_write_b128 v114, v[108:111]")
            e("v_lshrrev_b32 v115, 2, v%d\nv_lshlrev_b32 v115, 5, v115\nv_and_b32 v116, 3, v%d\nv_lshl_add_u32 v115, v116, 3, v115\nv_add_u32 v115, s%d, v115" % (V_TID, V_TID, S_T1))
            e("s_waitcnt lgkmcnt(0)")
            e("ds_read_b64_tr_b16 v[108:109], v115")
            e("ds_read_b64_tr_b16 v[110:111], v115 offset:512")
            e("s_waitcnt lgkmcnt(0)")
            e("v_mov_b32 v114, v%d" % V_XO)
            e("s_add_u32 s51, s51, %d" % WS_VP)
            e("%s_stj:" % name)
            e("buffer_store_dwordx4 v[108:111], v114, s[%d:%d], s51 offen sc1" % (SRD_WS, SRD_WS+3), tag="p0st" if p0v != 4 else None)
        if p0v == 4: kv_block(7 + 4 + (1 if codepf and cpos == 1 else 0))
        def xn_dest():
            e("s_lshl_b32 s48, s47, 2\ns_lshr_b32 s%d, s%d, 3\ns_add_u32 s48, s48, s%d\ns_mul_i32 s48, s48, %d" % (S_T1, S_CG, S_T1, XN_RG))
            e("s_lshr_b32 s%d, s%d, 1\ns_and_b32 s%d, s%d, 3\ns_lshl_b32 s%d, s%d, 10\ns_add_u32 s48, s48, s%d" % (S_T1, S_CG, S_T1, S_T1, S_T1, S_T1, S_T1))
            e("s_and_b32 s%d, s%d, 1\ns_lshl_b32 s%d, s%d, 7\ns_add_u32 s48, s48, s%d" % (S_T1, S_CG, S_T1, S_T1, S_T1))
            e("s_lshl_b32 s%d, s%d, 15\ns_add_u32 s48, s48, s%d" % (S_T1, S_WAVE, S_T1))
            e("v_lshlrev_b32 v5, 12, v%d" % V_B4)
            e("v_lshl_add_u32 v5, v%d, 9, v5" % V_B3)
            e("v_lshl_add_u32 v5, v%d, 8, v5" % V_B5)
            e("v_lshl_add_u32 v5, v%d, 4, v5" % V_L8)
        if lnfast: xn_dest()
        for r in range(16):
            e("v_lshlrev_b32 v%d, 16, v%d" % (32+2*r, 16+r))
            e("v_and_b32 v%d, 0xffff0000, v%d" % (33+2*r, 16+r))
        if diag0: st.stamp()
        e("v_lshlrev_b32 v6, 4, v%d" % V_L8)
        e("v_add_u32 v6, %d, v6" % LNS)
        e("s_lshl_b32 s%d, s%d, 2" % (S_T1, S_WAVE))
        e("v_add_u32 v7, s%d, v6" % S_T1)
        def pk(op, d, a_, b_, c_=None):
            t = "v_pk_%s_f32 v[%d:%d], v[%d:%d], v[%d:%d]" % (op, d, d+1, a_, a_+1, b_, b_+1)
            if c_ is not None: t += ", v[%d:%d]" % (c_, c_+1)
            e(t)
        def wave_sum(src):
            e("v_add_f32_dpp v%d, v%d, v%d row_ror:8 row_mask:0xf bank_mask:0xf" % (src, src, src))
            e("v_mov_b32 v9, v%d" % src)
            e("v_permlane16_swap_b32 v%d, v9" % src)
            e("v_add_f32 v%d, v%d, v9" % (src, src))
            e("v_mov_b32 v9, v%d" % src)
            e("v_permlane32_swap_b32 v%d, v9" % src)
            e("v_add_f32 v%d, v%d, v9" % (src, src))
        def reduce_all(src, off):
            wave_sum(src)
            e("ds_write_b32 v7, v%d offset:%d" % (src, off))
            e("s_waitcnt lgkmcnt(0)")
            e("s_barrier")
            e("ds_read_b128 v[64:67], v6 offset:%d" % off)
            e("v_add_f32 v64, v64, v65\nv_add_f32 v66, v66, v67\nv_add_f32 v8, v64, v66")
        for i in range(4): pk("add", 72+2*i, 32+2*i, 40+2*i)
        for r in range(8, 16): pk("add", 72+2*(r % 4), 72+2*(r % 4), 32+2*r)
        pk("add", 72, 72, 74); pk("add", 76, 76, 78); pk("add", 72, 72, 76)
        e("v_add_f32 v72, v72, v73")
        if not ln1:
            reduce_all(72, 0)
            e("v_mul_f32 v10, 0x%x, v8" % f2u(-1.0/1024))
        else:
            wave_sum(72)
            e("ds_write_b32 v7, v72 offset:0")
            e("v_mul_f32 v10, 0x%x, v72" % f2u(-1.0/256))
        e("v_mov_b32 v11, v10")
        for r in range(16):
            pk("add", 80+2*(r % 4), 32+2*r, 10)
            if r < 4: pk("mul", 72+2*r, 80+2*(r % 4), 80+2*(r % 4))
            else: pk("fma", 72+2*(r % 4), 80+2*(r % 4), 80+2*(r % 4), 72+2*(r % 4))
        pk("add", 72, 72, 74); pk("add", 76, 76, 78); pk("add", 72, 72, 76)
        e("v_add_f32 v72, v72, v73")
        if not ln1:
            reduce_all(72, 128)
            if nlate: nonce_load()
            e("v_mul_f32 v12, 0x%x, v8" % f2u(1.0/1024))
        else:
            wave_sum(72)
            e("ds_write_b32 v7, v72 offset:128")
            e("s_waitcnt lgkmcnt(0)")
            e("s_barrier")
            e("ds_read_b128 v[64:67], v6 offset:0")
            e("ds_read_b128 v[68:71], v6 offset:128")
            if nlate: nonce_load()
            e("v_add_f32 v8, v64, v65\nv_add_f32 v9, v66, v67\nv_add_f32 v8, v8, v9")
            e("v_mul_f32 v10, 0x%x, v8" % f2u(-1.0/1024))
            e("v_mul_f32 v9, 0x%x, v8" % f2u(-0.25))
            for i in range(4): e("v_add_f32 v%d, v%d, v9" % (64+i, 64+i))
            e("v_mul_f32 v64, v64, v64")
            for i in range(1, 4): e("v_fma_f32 v64, v%d, v%d, v64" % (64+i, 64+i))
            e("v_add_f32 v68, v68, v69\nv_add_f32 v70, v70, v71\nv_add_f32 v68, v68, v70")
            e("v_mul_f32 v64, 0x%x, v64" % f2u(1.0/256))
            e("v_add_f32 v68, v68, v64")
            e("v_mul_f32 v12, 0x%x, v68" % f2u(1.0/1024))
        e("v_cvt_pk_bf16_f32 v14, v10, v12")
        e("v_and_b32 v12, 0xffff0000, v14")
        e("v_lshlrev_b32 v10, 16, v14")
        e("v_add_f32 v12, 0x%x, v12" % f2u(1e-5))
        e("v_mov_b32 v11, v10")
        e("v_cvt_pk_bf16_f32 v14, v12, v12")
        e("v_and_b32 v12, 0xffff0000, v14")
        e("v_sqrt_f32 v12, v12")
        e("v_cvt_pk_bf16_f32 v14, v12, v12")
        e("v_and_b32 v12, 0xffff0000, v14")
        e("v_rcp_f32 v14, v12")
        e("v_sub_f32 v12, 0, v12")
        e("v_mov_b32 v15, v14")
        e("v_mov_b32 v13, v12")
        if not lnfast: xn_dest()
        for q in range(4):
            for r in range(4*q, 4*q+4):
                a_ = 32+2*r
                pk("add", a_, a_, 10)
                if not lnfast:
                    e("v_cvt_pk_bf16_f32 v%d, v%d, v%d" % (16+r, a_, a_+1))
                    e("v_lshlrev_b32 v%d, 16, v%d" % (a_, 16+r)); e("v_and_b32 v%d, 0xffff0000, v%d" % (a_+1, 16+r))
                t = 80 + 2*(r % 4)
                pk("mul", t, a_, 14)
                if refine:
                    pk("fma", a_, t, 12, a_)
                    pk("fma", t, a_, 14, t)
                e("v_cvt_pk_bf16_f32 v%d, v%d, v%d" % (16+r, t, t+1))
            e("v_permlane32_swap_b32 v%d, v%d" % (16+4*q, 18+4*q))
            e("v_permlane32_swap_b32 v%d, v%d" % (17+4*q, 19+4*q))
            e("buffer_store_dwordx4 v[%d:%d], v5, s[%d:%d], s48 offen sc1" % (16+4*q, 19+4*q, SRD_WS, SRD_WS+3), tag="p0st" if p0v == 4 else None)
            if q < 3: e("s_add_u32 s48, s48, 8192")
        if diag0: st.stamp()
        if p0v != 4: kv_block(4 if p0v == 3 else 4 + 7 + 4*dearly + (1 if codepf and cpos == 1 else 0))
        if p0v == 4:
            for t in init[:NZ]: e(t)
            if diag0: st.stamp()
            p.waitvm("p0st")
            if diag0: st.stamp()
            e("s_barrier")
        elif p0v != 3:
            for t in init: e(t)
            if diag0: st.stamp()
            e("s_waitcnt vmcnt(0)")
            if diag0: st.stamp()
            e("s_barrier")
        else:
            bias_loads()
            per = -(-NZ//(4*D)); ii = 0
            for s_ in range(D):
                for grp in dma_step(s_):
                    for t in grp: e(t, tag=("dma", s_ % U) if t.startswith("buffer") else None)
                    for t in init[ii:min(ii+per, NZ)]: e(t)
                    ii += per
                for t in adv_dma: e(t)
            if diag0: st.stamp()
            p.waitvm("p0st")
            if diag0: st.stamp()
            e("s_barrier")
        e("s_cmp_lg_u32 s%d, 0" % S_WAVE)
        e("s_cbranch_scc1 %s_xnf" % name)
        e("s_mov_b32 s48, 0x%x" % spin)
        e("%s_np:" % name)
        e("v_readfirstlane_b32 s%d, v%d" % (S_NONCE, V_NONCE))
        e("s_cmp_lg_u32 s%d, 0" % S_NONCE)
        e("s_cbranch_scc1 %s_nok" % name)
        e("v_mov_b32 v%d, 0" % V_T1)
        e("buffer_load_dword v%d, v%d, s[32:35], 0 offen sc1" % (V_NONCE, V_T1), tag="optional")
        p.add(RawWait("s_waitcnt vmcnt(0)"))
        e("s_sub_u32 s48, s48, 1")
        e("s_cmp_lg_u32 s48, 0")
        e("s_cbranch_scc1 %s_np" % name)
        e("%s_nok:" % name)
        e("s_lshl_b32 s48, s47, 5")
        e("s_add_u32 s49, s48, s%d" % S_CG)
        e("s_lshl_b32 s48, s48, 7\ns_add_u32 s48, s48, %d" % WS_FLAG)
        e("s_lshl_b32 s49, s49, 7\ns_add_u32 s49, s49, %d" % WS_FLAG)
        e("v_mov_b32 v%d, 0" % V_T1)
        e("v_mov_b32 v%d, s%d" % (V_T2, S_NONCE))
        e("s_mov_b64 exec, 1")
        e("buffer_store_dword v%d, v%d, s[%d:%d], s49 offen sc1" % (V_T2, V_T1, SRD_WS, SRD_WS+3), tag="optional")
        e("s_mov_b64 exec, -1")
        if one:
            e("v_mov_b32 v%d, %d" % (V_T1, LNS + 256))
            e("ds_write_b32 v%d, v%d" % (V_T1, V_T2))
            e("s_waitcnt lgkmcnt(0)")
        e("%s_xnf:" % name)
        if p0v == 4 or dearly < D:
            for s_ in range(1 if p0v == 4 else dearly, D):
                for grp in dma_step(s_):
                    for t in grp: e(t, tag=("dma", s_ % U) if t.startswith("buffer") else None)
                for t in adv_dma: e(t)
        if p0v in (3, 4):
            for t in init[NZ:]: e(t)
        e("s_cmp_lg_u32 s%d, 0" % S_WAVE)
        e("s_cbranch_scc1 %s_xnok" % name)
        e("s_mov_b64 exec, 0xffffffff")
        e("v_lshlrev_b32 v%d, 7, v%d" % (V_T3, V_TID))
        e("s_mov_b32 s49, 0x%x" % spin)
        e("%s_xnp:" % name)
        e("buffer_load_dword v%d, v%d, s[%d:%d], s48 offen sc1" % (V_T2, V_T3, SRD_WS, SRD_WS+3), tag="optional")
        p.add(RawWait("s_waitcnt vmcnt(0)"))
        e("v_cmp_ne_u32 vcc, s%d, v%d" % (S_NONCE, V_T2))
        e("s_cbranch_vccz %s_xnq" % name)
        if psleep: e("s_sleep %d" % psleep)
        e("s_sub_u32 s49, s49, 1")
        e("s_cmp_lg_u32 s49, 0")
        e("s_cbranch_scc1 %s_xnp" % name)
        e("%s_xnq:" % name)
        e("s_mov_b64 exec, -1")
        e("%s_xnok:" % name)
        if p0v in (3, 4): p.waitvm(("dma", 0))
        e("s_barrier")
        if diag0:
            st.stamp(); st.on = False
        if one and kvchk:
            e("v_mov_b32 v%d, %d" % (V_T1, LNS + 256))
            e("ds_read_b32 v%d, v%d" % (V_T2, V_T1))
        for s_ in range(D):
            for t in xn_loads(s_): e(t)
            e(adv_xn)
        if kvchk:
            e("v_and_b32 v%d, 31, v%d" % (V_T3, V_TID))
            e("v_lshlrev_b32 v%d, 7, v%d" % (V_T3, V_T3))
            e("v_lshrrev_b32 v%d, 5, v%d" % (V_T1, V_TID))
            e("v_lshl_add_u32 v%d, v%d, 14, v%d" % (V_T3, V_T1, V_T3))
            e("s_lshr_b32 s%d, s%d, 3\ns_lshl_b32 s%d, s%d, 12\ns_add_u32 s%d, s%d, %d" % (S_RP, S_CG, S_RP, S_RP, S_RP, S_RP, WS_FLAG))
            e("s_cmp_eq_u32 s%d, 0\ns_cselect_b32 s%d, 1, 0x7fff" % (S_WAVE, S_KS))
    if not fused: srd(p, SRD_WS, 6, WS_SIZE)
    stamp1()
    if not (fused and p0v in (3, 4)):
        p.waitvm(("dma", 0))
        e("s_barrier")
    for nt in range(15):
        for t in tr_reads(0, nt): e(t)
    if one and kvchk: e("v_readfirstlane_b32 s100, v%d" % V_T2)
    e("s_mov_b32 s%d, %d" % (S_CNT, 32//U))
    if codepf & 2: code_srd(p, 60, S_OB, START)
    def pf_setup():
        srd(p, SRD_PO, 92, 8 << 20)
        srd(p, SRD_P2, 94, 7 << 20)
        e("s_lshl_b32 s%d, s2, 15\ns_lshl_b32 s%d, s%d, 13\ns_add_u32 s%d, s%d, s%d" % (S_PF0, S_T0, S_WAVE, S_PF0, S_PF0, S_T0))
        e("s_mul_i32 s%d, s2, 28672\ns_mul_i32 s%d, s%d, 7168\ns_add_u32 s%d, s%d, s%d" % (S_PF1, S_T0, S_WAVE, S_PF1, S_PF1, S_T0))
    if wpf:
        e("s_lshr_b32 s58, s2, 5")
        e("s_cmp_ge_u32 s58, 2")
        e("s_cselect_b32 s52, s88, s4\ns_cselect_b32 s53, s89, s5")
        e("s_cselect_b32 s54, 0x%x, 0x%x" % (7 << 20, 8 << 20) if False else "s_mov_b32 s54, 0x%x\ns_cselect_b32 s54, 0x%x, s54" % (8 << 20, 7 << 20))
        e("s_mov_b32 s55, 0x20000")
        e("s_mov_b32 s57, %d\ns_cselect_b32 s57, %d, s57" % (32*8192, 32*7168))
        e("s_cselect_b32 s56, s%d, s%d" % (S_1, S_Q))
        e("s_cselect_b64 vcc, -1, 0")
        e("v_cndmask_b32 v251, v%d, v%d, vcc" % (V_DQ, V_D1))
        e("s_lshr_b32 s59, s57, 5")
        e("s_bitcmp1_b32 s58, 0")
        e("s_cselect_b32 s59, s59, 0")
        e("v_add_u32 v251, s59, v251")
        for _ in range(wpf - 1): e("s_add_u32 s56, s56, s57")
        e("s_cmp_ge_u32 s58, 4")
        e("s_cselect_b32 s54, 0, s54")
    if pfg:
        assert not (codepf & 2)
        pf_setup()
    st.stamp()
    p.loop_begin("g1")
    e("%s_g1:" % name)
    for s in range(U):
        if s % BAR == 0:
            p.waitvm(("dma", (s+BAR) % U))
            e("s_barrier")
        if fused and kvchk and s == 5:
            e("s_cmp_eq_u32 s%d, s%d" % (S_CNT, S_KS))
            e("s_cbranch_scc0 %s_kvl" % name)
            e("buffer_load_dword v252, v%d, s[%d:%d], s%d offen sc1" % (V_T3, SRD_WS, SRD_WS+3, S_RP), tag="optional")
            e("%s_kvl:" % name)
        mf = []
        order = [(nt, rt) for nt in range(15) for rt in (range(4) if not ((snake & 1) and nt & 1) else range(3, -1, -1))]
        if snake & 8:
            order = []
            for n in range(0, 14, 2):
                for rt in (range(4) if not (n & 2) else range(3, -1, -1)):
                    order += [(n, rt), (n+1, rt)] if (len(order)//2) % 2 == 0 else [(n+1, rt), (n, rt)]
            order += [(14, rt) for rt in (range(4) if True else [])]
        lastuse = {}
        for k_, (nt, rt) in enumerate(order):
            lastuse[nt] = k_
            acc = accQ(nt, rt) if nt < 8 else accH(nt-8, rt)
            mf.append(Ins("v_mfma_f32_16x16x32_bf16 v[%d:%d], a[%d:%d], a[%d:%d], v[%d:%d]" % (acc, acc+3, wfrag(nt), wfrag(nt)+3, xfrag(s, rt), xfrag(s, rt)+3, acc, acc+3)))
        sc = Sched(mf)
        if dg: sc.put(tr_reads(s, 14)[1], 0)
        if (s+1) % 4 == 0 and U > 4:
            delta = 4*STEP_LDS if ((s+1) % U) // 4 == 1 else -(U-4)*STEP_LDS
            sc.put("v_add_u32 v%d, %d, v%d" % (V_TR, delta, V_TR) if delta > 0 else "v_subrev_u32 v%d, %d, v%d" % (V_TR, -delta, V_TR), 0)
        for nt in range(15):
            r = tr_reads(s+1, nt)
            g = sc.put(r[0], min(lastuse[nt], 59))
            if not (dg and nt == 14): sc.put(r[1], min(g+1, 59))
        pos = 1
        for grp in dma_step((s + D) % U, "" if (wpf or wnt == 8) else NT):
            g = sc.put(Ins(grp[-1], tag=("dma", (s+D) % U)), pos)
            for t in grp[:-1]: sc.scalar(t, g-1)
            pos = g + 4
        for q, t in enumerate(adv_dma): sc.scalar(t, pos + q)
        pos = 30
        for t in xn_loads(s + D):
            g = sc.put(t, pos); pos = g + 4
        sc.scalar(adv_xn, pos)
        if rot1 and s == U - D - 1:
            for t in ["s_cmp_ge_u32 s%d, 0x20000" % S_XN, "s_cselect_b32 s%d, 0x800000, 0" % S_T0, "s_cselect_b32 s%d, 0x700000, 0" % S_T1, "s_cselect_b32 s%d, 0x20000, 0" % S_H0]:
                sc.scalar(t, pos + 1)
            for t in ["s_sub_u32 s%d, s%d, s%d" % (S_Q, S_Q, S_T0), "s_sub_u32 s%d, s%d, s%d" % (S_1, S_1, S_T1), "s_sub_u32 s%d, s%d, s%d" % (S_XN, S_XN, S_H0)]:
                sc.scalar(t, pos + 2)
        if wpf:
            g = sc.put(Ins("buffer_load_dwordx4 a[188:191], v251, s[52:55], s56 offen%s" % (" nt" if wpp else ""), tag="pf"), wpos)
            sc.scalar("s_add_u32 s56, s56, s57", g)
        if pfg and s % 2 == 1:
            srd_, sreg = (SRD_PO, S_PF0) if s % 4 == 1 else (SRD_P2, S_PF1)
            g = sc.put(Ins("buffer_load_dwordx4 a[188:191], v%d, s[%d:%d], s%d offen" % (V_XO, srd_, srd_+3, sreg), tag="pf"), 48)
            sc.scalar("s_add_u32 s%d, s%d, 1024" % (sreg, sreg), g)
        if (codepf & 2) and s == 2:
            sc.put(Ins("buffer_load_dwordx4 a[188:191], v%d, s[60:63], s%d offen" % (V_XO, S_OB), tag="pf"), 50)
        sc.emit(p)
    e("s_sub_u32 s%d, s%d, 1" % (S_CNT, S_CNT))
    e("s_cmp_lg_u32 s%d, 0" % S_CNT)
    e("s_cbranch_scc1 %s_g1" % name)
    p.loop_end()
    st.stamp()
    def Oacc(dt, qt): return 16*dt + 4*qt
    def Sreg(par, kt2, qt): return 128 + 32*par + 16*kt2 + 4*qt
    def Preg(par, qt): return 192 + 16*par + 4*qt
    def negm(qt): return 224 + 4*qt
    def Qf(qt, u): return 16*qt + 4*u
    def Kf(kt2, u): return 64 + 16*kt2 + 4*u
    def Vf(dt): return 96 + 4*dt
    def Lacc(qt): return 128 + 4*qt
    ONES = 144
    V_KV = V_TR
    def kv_dma():
        return [["s_mov_b32 m0, s%d" % S_RP, "buffer_load_dwordx4 v%d, s[%d:%d], s%d offen%s lds" % (V_XO, SRD_K, SRD_K+3, S_KS, SC)],
                ["buffer_load_dwordx4 v%d, s[%d:%d], s%d offen offset:1024%s lds" % (V_XO, SRD_K, SRD_K+3, S_KS, SC)],
                ["buffer_load_dwordx4 v%d, s[%d:%d], s%d offen offset:2048%s lds" % (V_XO, SRD_V, SRD_V+3, S_KS, SC)],
                ["buffer_load_dwordx4 v%d, s[%d:%d], s%d offen offset:3072%s lds" % (V_XO, SRD_V, SRD_V+3, S_KS, SC)]], \
               ["s_add_u32 s%d, s%d, 8192" % (S_KS, S_KS), "s_add_u32 s%d, s%d, %d" % (S_RP, S_RP, KV_SLOT), "s_and_b32 s%d, s%d, 0x1ffff" % (S_RP, S_RP)]
    def tagkv(t, m): return ("kv", m) if t.startswith("buffer") else None
    if one:
        if not kvchk:
            e("v_mov_b32 v%d, %d" % (V_T1, 8*STEP_LDS + 256))
            e("ds_read_b32 v%d, v%d" % (V_T2, V_T1))
            e("v_readfirstlane_b32 s100, v%d" % V_T2)
        e("s_lshr_b32 s101, s2, 5\ns_lshl_b32 s101, s101, 5\ns_add_u32 s101, s101, s%d\ns_lshl_b32 s101, s101, 7\ns_add_u32 s101, s101, 0x%x" % (S_CG, WS_FDW if (wflag & 1) else WS_FD))
    if fused and kvchk:
        for s_ in range(U): p.waitvm(("dma", s_))
        e("s_cmp_lg_u32 s%d, 0" % S_WAVE)
        e("s_cbranch_scc1 %s_kvok" % name)
        e("s_mov_b32 s49, 0x%x" % spin)
        e("%s_kvp:" % name)
        e("v_cmp_ne_u32 vcc, s100, v252")
        e("s_cbranch_vccz %s_kvok" % name)
        e("s_sleep 1")
        e("buffer_load_dword v252, v%d, s[%d:%d], s%d offen sc1" % (V_T3, SRD_WS, SRD_WS+3, S_RP), tag="optional")
        p.add(RawWait("s_waitcnt vmcnt(0)"))
        e("s_sub_u32 s49, s49, 1")
        e("s_cmp_lg_u32 s49, 0")
        e("s_cbranch_scc1 %s_kvp" % name)
        e("%s_kvok:" % name)
    if fused and not kvchk:
        e("s_cmp_lg_u32 s%d, 0" % S_WAVE)
        e("s_cbranch_scc1 %s_kvok" % name)
        e("v_lshlrev_b32 v%d, 7, v%d" % (V_T3, V_TID))
        e("s_mov_b32 s49, 0x%x" % spin)
        e("%s_kvp:" % name)
        for q in range(4):
            e("s_mov_b32 s48, %d" % (WS_FLAG + q*64*128))
            e("buffer_load_dword v%d, v%d, s[%d:%d], s48 offen sc1" % (252+q, V_T3, SRD_WS, SRD_WS+3), tag="optional")
        p.add(RawWait("s_waitcnt vmcnt(0)"))
        e("v_cmp_ne_u32 vcc, s100, v252\nv_cmp_ne_u32 s[60:61], s100, v253\ns_or_b64 vcc, vcc, s[60:61]")
        e("v_cmp_ne_u32 s[60:61], s100, v254\ns_or_b64 vcc, vcc, s[60:61]\nv_cmp_ne_u32 s[60:61], s100, v255\ns_or_b64 vcc, vcc, s[60:61]")
        e("s_cmp_eq_u64 vcc, 0")
        e("s_cbranch_scc1 %s_kvok" % name)
        e("s_sleep 4")
        e("s_sub_u32 s49, s49, 1")
        e("s_cmp_lg_u32 s49, 0")
        e("s_cbranch_scc1 %s_kvp" % name)
        e("%s_kvok:" % name)
    for s_ in range(U): p.waitvm(("dma", s_))
    e("s_barrier")
    e("s_cmp_lg_u32 s%d, %d" % (S_WAVE, 0 if not one else 99))
    e("s_cbranch_scc1 %s_clr" % name)
    e("s_mov_b64 exec, 127")
    e("v_lshlrev_b32 v%d, 15, v%d" % (V_T0, V_TID))
    e("v_mov_b32 v%d, 0" % V_T1)
    e("s_lshl_b32 s%d, s2, 7" % S_T0)
    e("s_add_u32 s%d, s%d, 0x%x" % (S_T0, S_T0, WS_F2))
    e("buffer_store_dword v%d, v%d, s[%d:%d], s%d offen" % (V_T1, V_T0, SRD_WS, SRD_WS+3, S_T0), tag="optional")
    e("s_mov_b64 exec, -1")
    e("%s_clr:" % name)
    e("s_lshr_b32 s%d, s%d, 3" % (S_T0, S_CG))
    e("s_lshl_b32 s%d, s%d, 17" % (S_KVR, S_T0))
    e("s_lshl_b32 s%d, s%d, 11" % (S_T1, S_WAVE))
    e("s_add_u32 s%d, s%d, s%d" % (S_T0, S_KVR, S_T1))
    e("s_add_u32 s%d, s%d, %d" % (S_T1, S_T0, WS_KP))
    e("s_add_u32 s%d, s6, s%d" % (SRD_K, S_T1))
    e("s_addc_u32 s%d, s7, 0" % (SRD_K+1))
    e("s_mov_b32 s%d, %d" % (SRD_K+2, 16*8192))
    e("s_mov_b32 s%d, 0x20000" % (SRD_K+3))
    e("s_add_u32 s%d, s%d, %d" % (S_T1, S_T0, WS_VP - 2*8192 - 2048))
    e("s_add_u32 s%d, s6, s%d" % (SRD_V, S_T1))
    e("s_addc_u32 s%d, s7, 0" % (SRD_V+1))
    e("s_mov_b32 s%d, %d" % (SRD_V+2, 18*8192 + 2048))
    e("s_mov_b32 s%d, 0x20000" % (SRD_V+3))
    e("s_mov_b32 s%d, 0" % S_KS)
    e("s_lshl_b32 s%d, s%d, 12" % (S_RP, S_WAVE))
    valu = []
    for qt in range(4):
        for u in range(4):
            a, b = accQ(2*u, qt), accQ(2*u+1, qt)
            valu += ["v_cvt_pk_bf16_f32 v%d, v%d, v%d" % (a, a, a+1), "v_cvt_pk_bf16_f32 v%d, v%d, v%d" % (a+1, a+2, a+3),
                     "v_cvt_pk_bf16_f32 v%d, v%d, v%d" % (a+2, b, b+1), "v_cvt_pk_bf16_f32 v%d, v%d, v%d" % (a+3, b+2, b+3)]
            valu += ["v_accvgpr_write_b32 a%d, v%d" % (Qf(qt, u)+r, a+r) for r in range(4)]
    hs = []
    hs.append("s_lshr_b32 s%d, s%d, 1" % (S_T0, S_CG))
    hs.append("s_mul_i32 s%d, s%d, 7" % (S_T0, S_T0))
    hs.append("s_and_b32 s%d, s%d, 1" % (S_T1, S_CG))
    hs.append("s_lshl_b32 s%d, s%d, 2" % (S_H0, S_T1))
    hs.append("s_add_u32 s%d, s%d, s%d" % (S_H0, S_H0, S_T0))
    hs.append("s_lshl_b32 s%d, s%d, 11" % (S_H0, S_H0))
    hs.append("s_add_u32 s%d, s%d, 3" % (S_H6, S_T0))
    hs.append("s_lshl_b32 s%d, s%d, 11" % (S_H6, S_H6))
    hs.append("s_lshl_b32 s%d, s%d, 3" % (S_T1, S_T1))
    hs.append("s_add_u32 s%d, s%d, s%d" % (S_H6, S_H6, S_T1))
    hs.append("s_mul_i32 s%d, s%d, %d" % (S_T0, S_RG, 2*HF_RP))
    hs.append("s_add_u32 s%d, s%d, %d" % (S_T0, S_T0, WS_HF))
    hs.append("s_add_u32 s%d, s%d, s%d" % (S_H0, S_H0, S_T0))
    hs.append("s_add_u32 s%d, s%d, s%d" % (S_H6, S_H6, S_T0))
    hs.append("s_mul_i32 s%d, s%d, %d" % (S_T0, S_RG, 2*OF_RP))
    hs.append("s_lshl_b32 s%d, s%d, 13" % (S_T1, S_CG))
    hs.append("s_add_u32 s%d, s%d, s%d" % (S_T0, S_T0, S_T1))
    hs.append("s_add_u32 s%d, s%d, %d" % (S_OB, S_T0, WS_OF))
    valu += hs
    HPARK = 152
    hstores = []
    for rt in range(4):
        for nt in range(7):
            a = accH(nt, rt)
            valu += ["v_max_f32 v%d, 0, v%d" % (a+r, a+r) for r in range(4)]
            valu += ["v_pk_mul_f32 v[%d:%d], v[%d:%d], v[%d:%d]" % (a+2*h, a+2*h+1, a+2*h, a+2*h+1, a+2*h, a+2*h+1) for h in range(2)]
        for u in range(3):
            a, b = accH(2*u, rt), accH(2*u+1, rt)
            valu += ["v_cvt_pk_bf16_f32 v%d, v%d, v%d" % (a, a, a+1), "v_cvt_pk_bf16_f32 v%d, v%d, v%d" % (a+1, a+2, a+3),
                     "v_cvt_pk_bf16_f32 v%d, v%d, v%d" % (a+2, b, b+1), "v_cvt_pk_bf16_f32 v%d, v%d, v%d" % (a+3, b+2, b+3)]
            off = (rt >> 1)*HF_RP + (rt & 1)*1024 + u*2048
            if hspread:
                d = HPARK + 14*rt + 4*u + (14*rt) % 2
                d = HPARK + 16*rt + 4*u
                valu += ["v_accvgpr_write_b32 a%d, v%d" % (d+r, a+r) for r in range(4)]
                hstores.append(["s_add_u32 s%d, s%d, %d" % (S_T1, S_H0, off),
                                "buffer_store_dwordx4 a[%d:%d], v%d, s[%d:%d], s%d offen%s" % (d, d+3, V_XO, SRD_WS, SRD_WS+3, S_T1, SCH)])
                continue
            valu += ["s_add_u32 s%d, s%d, %d" % (S_T0, S_H0, off),
                     "buffer_store_dwordx4 v[%d:%d], v%d, s[%d:%d], s%d offen%s" % (a, a+3, V_XO, SRD_WS, SRD_WS+3, S_T0, SCH)]
        a = accH(6, rt)
        valu += ["v_cvt_pk_bf16_f32 v%d, v%d, v%d" % (a, a, a+1), "v_cvt_pk_bf16_f32 v%d, v%d, v%d" % (a+1, a+2, a+3)]
        off = (rt >> 1)*HF_RP + (rt & 1)*1024
        if hspread:
            d = HPARK + 16*rt + 12
            valu += ["v_accvgpr_write_b32 a%d, v%d" % (d+r, a+r) for r in range(2)]
            hstores.append(["s_add_u32 s%d, s%d, %d" % (S_T1, S_H6, off),
                            "buffer_store_dwordx2 a[%d:%d], v%d, s[%d:%d], s%d offen%s" % (d, d+1, V_XO, SRD_WS, SRD_WS+3, S_T1, SCH)])
            continue
        valu += ["s_add_u32 s%d, s%d, %d" % (S_T0, S_H6, off),
                 "buffer_store_dwordx2 v[%d:%d], v%d, s[%d:%d], s%d offen%s" % (a, a+1, V_XO, SRD_WS, SRD_WS+3, S_T0, SCH)]
    NPRO = 7
    late = []
    if tint:
        assert hspread
        nq = 128 + len(hs)
        def h_tile(nt, rt):
            a = accH(nt, rt)
            return ["v_max_f32 v%d, 0, v%d" % (a+r, a+r) for r in range(4)] + \
                   ["v_pk_mul_f32 v[%d:%d], v[%d:%d], v[%d:%d]" % (a+2*h, a+2*h+1, a+2*h, a+2*h+1, a+2*h, a+2*h+1) for h in range(2)]
        def h_pair(u, rt):
            a, b = accH(2*u, rt), accH(2*u+1, rt); d = HPARK + 16*rt + 4*u
            return h_tile(2*u, rt) + h_tile(2*u+1, rt) + \
                   ["v_cvt_pk_bf16_f32 v%d, v%d, v%d" % (a, a, a+1), "v_cvt_pk_bf16_f32 v%d, v%d, v%d" % (a+1, a+2, a+3),
                    "v_cvt_pk_bf16_f32 v%d, v%d, v%d" % (a+2, b, b+1), "v_cvt_pk_bf16_f32 v%d, v%d, v%d" % (a+3, b+2, b+3)] + \
                   ["v_accvgpr_write_b32 a%d, v%d" % (d+r, a+r) for r in range(4)]
        def h_last(rt):
            a = accH(6, rt); d = HPARK + 16*rt + 12
            return h_tile(6, rt) + ["v_cvt_pk_bf16_f32 v%d, v%d, v%d" % (a, a, a+1), "v_cvt_pk_bf16_f32 v%d, v%d, v%d" % (a+1, a+2, a+3)] + \
                   ["v_accvgpr_write_b32 a%d, v%d" % (d+r, a+r) for r in range(2)]
        parts = [(range(0, 3), valu[:nq]), (range(3, 7), sum([h_pair(u, rt) for u in range(2) for rt in range(4)], []))]
        late = sum([h_pair(2, rt) for rt in range(4)], []) + sum([h_last(rt) for rt in range(4)], [])
    else:
        parts = [(range(NPRO), valu)]
    for slots, work in parts:
        per = len(work)//(4*len(slots)); ii = 0
        for m in slots:
            grps, advs = kv_dma()
            for grp in grps:
                for t in grp: e(t, tag=tagkv(t, m))
                for t in work[ii:ii+per]: e(t)
                ii += per
            for t in advs: e(t)
        for t in work[ii:]: e(t)
    if pf2 and not pfg: pf_setup()
    if pf3:
        e("s_mul_i32 s%d, s2, %d\ns_lshl_b32 s%d, s%d, 13\ns_add_u32 s%d, s%d, s%d\ns_add_u32 s%d, s%d, 0x%x" % (S_T0, EX_STRIDE, S_T1, S_WAVE, S_T0, S_T0, S_T1, S_T0, S_T0, WS_EX))
        e("s_add_u32 s%d, s6, s%d\ns_addc_u32 s%d, s7, 0\ns_mov_b32 s%d, 8192\ns_mov_b32 s%d, 0x20000" % (SRD_W1, S_T0, SRD_W1+1, SRD_W1+2, SRD_W1+3))
        e("s_lshl_b32 s%d, s2, 14\ns_lshl_b32 s%d, s%d, 12\ns_add_u32 s%d, s%d, s%d" % (S_T0, S_T1, S_WAVE, S_T0, S_T0, S_T1))
        e("s_add_u32 s%d, s96, s%d\ns_addc_u32 s%d, s97, 0\ns_mov_b32 s%d, 4096\ns_mov_b32 s%d, 0x20000" % (SRD_WQ, S_T0, SRD_WQ+1, SRD_WQ+2, SRD_WQ+3))
        e("s_mov_b32 s%d, 0\ns_mov_b32 s%d, 0" % (S_Q, S_1))
    if pf3 == 2:
        for j in range(8):
            e("s_mov_b32 s%d, %d" % (S_1, j*1024))
            e("buffer_store_dwordx4 v[0:3], v%d, s[%d:%d], s%d offen" % (V_XO, SRD_W1, SRD_W1+3, S_1))
    stamp1()
    def koff(f): return (f >> 1)*4096 + (f & 1)*1024
    def kread(f, rel=0):
        return "ds_read_b128 a[%d:%d], v%d offset:%d" % (Kf(f//4, f % 4), Kf(f//4, f % 4)+3, V_KV, rel*KV_SLOT + koff(f))
    def vread(dt, rel=0):
        return "ds_read_b128 a[%d:%d], v%d offset:%d" % (Vf(dt), Vf(dt)+3, V_KV, rel*KV_SLOT + 2048 + koff(dt))
    def kgap(f):
        return 4*f + 3 if not (snake & 16) else 4*(2*(f % 4) + f//4) + 3
    def qk_mfmas(par, first):
        out = []
        order = [(kt2, u) for kt2 in range(2) for u in range(4)] if not (snake & 16) else [(kt2, u) for u in range(4) for kt2 in range(2)]
        for kt2, u in order:
            if True:
                for qt in (range(4) if not (((snake & 4) and u & 1) or ((snake & 16) and kt2)) else range(3, -1, -1)):
                    s_ = Sreg(par, kt2, qt)
                    if u == 0: c = "0" if first else "v[%d:%d]" % (negm(qt), negm(qt)+3)
                    else: c = "v[%d:%d]" % (s_, s_+3)
                    out.append(Ins("v_mfma_f32_16x16x32_bf16 v[%d:%d], a[%d:%d], a[%d:%d], %s" % (s_, s_+3, Kf(kt2, u), Kf(kt2, u)+3, Qf(qt, u), Qf(qt, u)+3, c)))
        return out
    def pv_mfmas(par, first, plain=False):
        out = []
        for dt in range(8):
            for qt in (range(4) if not ((snake & 2) and dt & 1 and not plain) else range(3, -1, -1)):
                o = Oacc(dt, qt)
                c = "0" if first else "v[%d:%d]" % (o, o+3)
                out.append(Ins("v_mfma_f32_16x16x32_bf16 v[%d:%d], a[%d:%d], v[%d:%d], %s" % (o, o+3, Vf(dt), Vf(dt)+3, Preg(par, qt), Preg(par, qt)+3, c)))
        for qt in range(4):
            l = Lacc(qt)
            c = "0" if first else "a[%d:%d]" % (l, l+3)
            out.append(Ins("v_mfma_f32_16x16x32_bf16 a[%d:%d], a[%d:%d], v[%d:%d], %s" % (l, l+3, ONES, ONES+3, Preg(par, qt), Preg(par, qt)+3, c)))
        return out
    def softmax_ops(par):
        ops = []
        for qt in range(4):
            for kt2 in range(2):
                s_ = Sreg(par, kt2, qt)
                for h in range(2):
                    ops.append(("exp", "v_exp_f32 v%d, v%d" % (s_+2*h, s_+2*h)))
                    ops.append(("exp", "v_exp_f32 v%d, v%d" % (s_+2*h+1, s_+2*h+1)))
                    ops.append(("cvt", "v_cvt_pk_bf16_f32 v%d, v%d, v%d" % (Preg(par, qt)+2*kt2+h, s_+2*h, s_+2*h+1)))
        return ops
    pfn = [0]
    def pf_load():
        return None
    def step(j, qk, pv, pvfirst, sm, dma, rd_k, rd_v, rel, adj, dmatag=None, pf=None, hs_=None):
        par = j & 1
        mf = []
        kpos = {}; vpos = {}
        if qk:
            mf += qk_mfmas(1-par, False)
            for f in range(8): kpos[f] = kgap(f)
        n0 = len(mf)
        if pv:
            mf += pv_mfmas(1-par, pvfirst)
            for f in range(8): vpos[f] = n0 + 4*f + 3
        n = len(mf)
        sc = Sched(mf)
        lastrd = 0
        if rd_k:
            for f in range(8): lastrd = max(lastrd, sc.put(kread(f, rel), kpos[f], force_gap=kpos[f]))
        if rd_v:
            for f in range(8):
                g = vpos.get(f, None)
                lastrd = max(lastrd, sc.put(vread(f, rel), g if g is not None else 4*f+1, force_gap=g))
        if dma:
            grps, advs = kv_dma()
            pos = 1
            for grp in grps:
                g = sc.put(Ins(grp[-1], tag=tagkv(grp[-1], dmatag)), pos)
                for t in grp[:-1]: sc.scalar(t, g-1)
                pos = g + 12
            for q, t in enumerate(advs): sc.scalar(t, min(n-1, pos - 10 + 2*q))
        if pf is not None:
            for q, (srd_, sreg) in enumerate(pf):
                g = sc.put(Ins("buffer_load_dwordx4 a[148:151], v%d, s[%d:%d], s%d offen%s" % (V_XO, srd_, srd_+3, sreg, " nt" if pfnt else ""), tag="pf"), 8 + 30*q)
                if (srd_, sreg) != (SRD_WQ, S_Q) or pf3: sc.scalar("s_add_u32 s%d, s%d, 1024" % (sreg, sreg), g)
        if hs_ is not None:
            for q, h_ in enumerate(hs_ if isinstance(hs_[0], list) else [hs_]):
                g = sc.put(Ins(h_[1]), 20 + 26*q)
                sc.scalar(h_[0], g-1)
        if adj:
            g = sc.put("v_add_u32 v%d, %d, v%d" % (V_KV, 2*KV_SLOT, V_KV), lastrd+1)
            sc.put("v_and_b32 v%d, 0x1ffff, v%d" % (V_KV, V_KV), g+1)
        if sm:
            pos = 0
            for kind, t in softmax_ops(par):
                g = sc.put(t, pos)
                pos = g if kind == "cvt" else g + (0 if False else 0)
                pos = g + 1 if kind == "exp" else g
        sc.emit(p)
    e("v_mov_b32 v%d, v%d" % (V_KV, V_XO))
    e("v_mov_b32 v%d, 0x3f803f80" % V_T0)
    for r in range(4): e("v_accvgpr_write_b32 a%d, v%d" % (ONES+r, V_T0))
    p.waitvm(("kv", 2)); p.waitvm(("kv", 1)); p.waitvm(("kv", 0))
    e("s_barrier")
    for f in range(8): e(kread(f, 0))
    for t in late[:24]: e(t)
    sc = Sched(qk_mfmas(0, True))
    for f in range(8): sc.put(kread(f, 1), kgap(f), force_gap=kgap(f))
    for q, t in enumerate(late[24:]): sc.put(t, 0, force_gap=(q*32)//max(1, len(late) - 24))
    sc.emit(p)
    e("v_add_u32 v%d, %d, v%d" % (V_KV, 2*KV_SLOT, V_KV))
    def rowmax(qt, t0, t1):
        a, b = Sreg(0, 0, qt), Sreg(0, 1, qt)
        e("v_max3_f32 v%d, v%d, v%d, v%d" % (t0, a, a+1, a+2))
        e("v_max3_f32 v%d, v%d, v%d, v%d" % (t1, a+3, b, b+1))
        e("v_max3_f32 v%d, v%d, v%d, v%d" % (t0, t0, b+2, b+3))
        e("v_max_f32 v%d, v%d, v%d" % (t0, t0, t1))
    tm = [V_T0, V_T1, V_T2, V_T3]; tn = [251, 252, 253, 254]
    for qt in range(4): rowmax(qt, tm[qt], tn[qt])
    for qt in range(4): e("v_mov_b32 v%d, v%d" % (tn[qt], tm[qt]))
    for qt in range(4): e("v_permlane32_swap_b32 v%d, v%d" % (tm[qt], tn[qt]))
    for qt in range(4): e("v_max_f32 v%d, v%d, v%d" % (tm[qt], tm[qt], tn[qt]))
    for qt in range(4): e("v_mov_b32 v%d, v%d" % (tn[qt], tm[qt]))
    for qt in range(4): e("v_permlane16_swap_b32 v%d, v%d" % (tm[qt], tn[qt]))
    for qt in range(4): e("v_max_f32 v%d, v%d, v%d" % (tm[qt], tm[qt], tn[qt]))
    for qt in range(4):
        for r in range(4): e("v_sub_f32 v%d, 0, v%d" % (negm(qt)+r, tm[qt]))
    for qt in range(4):
        a, b = Sreg(0, 0, qt), Sreg(0, 1, qt)
        for r in range(4):
            e("v_sub_f32 v%d, v%d, v%d" % (a+r, a+r, tm[qt]))
            e("v_sub_f32 v%d, v%d, v%d" % (b+r, b+r, tm[qt]))
    stamp1()
    PO, P2 = [(SRD_PO, S_PF0)], [(SRD_P2, S_PF1)]
    if pf3 == 1: PO.append((SRD_W1, S_1)); P2.append((SRD_WQ, S_Q))
    pfs = lambda x: x if (pf2 and not pfg) else ([y for y in x if y not in PO[:1] + P2[:1]] or None)
    NPF = (2 if pf3 == 1 else 1) if (pf2 and not pfg) else 0
    if codepf & 4: code_srd(p, SRD_WQ, S_Q, START)
    CP = [(SRD_WQ, S_Q)] if codepf & 4 else []
    NH = 1 if hspread else 0
    NV = 4 + NPF + NH
    H = (lambda j: hstores[j]) if hspread else (lambda j: None)
    nh = [NH]*16
    if gearly:
        assert hspread and one
        nh = [2]*8 + [0]*8
        first = [sum(nh[:j]) for j in range(17)]
        H = lambda j: ([hstores[i] for i in range(first[j], first[j+1])] or None)
    nv = [(4 if j <= 13 else 0) + (NPF if j <= 14 else 0) + nh[j] for j in range(16)]
    step(0, True, False, False, True, True, True, True, 0, False, dmatag=7, pf=pfs(PO), hs_=H(0))
    p.waitvm(("kv", 4)); p.waitvm(("kv", 3))
    e("s_barrier")
    step(1, True, True, True, True, True, True, True, 1, True, dmatag=8, pf=pfs(P2), hs_=H(1))
    if not hspread:
        e("s_mov_b32 s%d, 6" % S_CNT)
        p.loop_begin("at")
        e("%s_at:" % name)
        step(2, True, True, False, True, True, True, True, 0, False, pf=pfs(PO))
        e("s_waitcnt vmcnt(%d)" % (3*NV))
        e("s_barrier")
        step(3, True, True, False, True, True, True, True, 1, True, pf=pfs(P2))
        e("s_sub_u32 s%d, s%d, 1" % (S_CNT, S_CNT))
        e("s_cmp_lg_u32 s%d, 0" % S_CNT)
        e("s_cbranch_scc1 %s_at" % name)
        p.loop_end()
    else:
        for j in range(2, 14, 2):
            step(j, True, True, False, True, True, True, True, 0, False, pf=pfs(PO + (CP if j in (4, 10) else [])), hs_=H(j))
            e("s_waitcnt vmcnt(%d)" % (nv[j] + nv[j-1] + nv[j-2]))
            e("s_barrier")
            if gearly and j == 10:
                e("s_cmp_lg_u32 s%d, 0" % S_WAVE)
                e("s_cbranch_scc1 %s_fh" % name)
                e("s_add_u32 s%d, s101, 0x%x" % (S_T0, (WS_FDW - WS_FD) & 0xffffffff))
                e("v_mov_b32 v%d, 0\nv_mov_b32 v%d, s100" % (V_T1, V_T2))
                e("s_mov_b64 exec, 1")
                e("buffer_store_dword v%d, v%d, s[%d:%d], s%d offen sc1" % (V_T2, V_T1, SRD_WS, SRD_WS+3, S_T0), tag="optional")
                e("s_mov_b64 exec, -1")
                e("%s_fh:" % name)
            step(j+1, True, True, False, True, True, True, True, 1, True, pf=pfs(P2), hs_=H(j+1))
    step(14, True, True, False, True, False, False, True, 0, False, pf=pfs(PO), hs_=H(14))
    e("s_waitcnt vmcnt(%d)" % ((nv[14] + nv[13] + nv[12] + nv[11]) if hspread else (3*NV + NPF + NH)))
    e("s_barrier")
    step(15, False, True, False, True, False, False, True, 1, False, hs_=H(15))
    if gearly:
        e("s_cmp_lg_u32 s%d, 0" % S_WAVE)
        e("s_cbranch_scc1 %s_fc" % name)
        if cmap2 == 2:
            e("s_lshr_b32 s%d, s2, 5\ns_lshl_b32 s%d, s%d, 12" % (S_T0, S_T0, S_T0))
            e("s_and_b32 s%d, s2, 1\ns_lshl_b32 s%d, s%d, 11\ns_add_u32 s%d, s%d, s%d\ns_add_u32 s%d, s%d, 0x%x" % (S_T1, S_T1, S_T1, S_T0, S_T0, S_T1, S_T0, S_T0, WS_FDW))
        else:
            e("s_and_b32 s%d, s2, 3\ns_lshl_b32 s%d, s%d, 1\ns_bfe_u32 s%d, s2, 0x10003\ns_add_u32 s%d, s%d, s%d\ns_lshl_b32 s%d, s%d, 12" % (S_T0, S_T0, S_T0, S_T1, S_T0, S_T0, S_T1, S_T0, S_T0))
            e("s_lshr_b32 s%d, s2, 7\ns_lshl_b32 s%d, s%d, 11\ns_add_u32 s%d, s%d, s%d\ns_add_u32 s%d, s%d, 0x%x" % (S_T1, S_T1, S_T1, S_T0, S_T0, S_T1, S_T0, S_T0, WS_FDW))
        e("v_lshlrev_b32 v%d, 7, v%d" % (V_T3, V_TID))
        e("s_mov_b64 exec, 0xffff")
        e("buffer_load_dword v252, v%d, s[%d:%d], s%d offen sc1" % (V_T3, SRD_WS, SRD_WS+3, S_T0), tag="optional")
        e("s_mov_b64 exec, -1")
        e("%s_fc:" % name)
    def check_list():
        c = ["v_accvgpr_read_b32 v%d, a%d" % (negm(qt), Lacc(qt)) for qt in range(4)]
        c += ["s_mov_b32 s%d, 0x%x" % (S_T0, f2u(2.0**thr_log2) if not force_slow else 0),
              "v_max3_f32 v%d, v%d, v%d, v%d" % (V_T0, negm(0), negm(1), negm(2)),
              "v_cmp_gt_f32 vcc, s%d, v%d" % (S_T0, V_T0),
              "v_cmp_gt_f32 s[62:63], s%d, v%d" % (S_T0, negm(3)),
              "s_and_b64 vcc, vcc, s[62:63]",
              "v_cmp_o_f32 s[62:63], v%d, v%d" % (negm(0), negm(1)),
              "s_and_b64 vcc, vcc, s[62:63]",
              "v_cmp_o_f32 s[62:63], v%d, v%d" % (negm(2), negm(3)),
              "s_and_b64 vcc, vcc, s[62:63]",
              "s_cmp_eq_u64 vcc, -1",
              "s_cbranch_scc0 %s_slow" % name]
        return c
    def rcp_list():
        c = ["v_rcp_f32 v%d, v%d" % (negm(qt)+2, negm(qt)) for qt in range(4)]
        for qt in range(4):
            c += ["v_fma_f32 v%d, -v%d, v%d, 2.0" % (negm(qt)+1, negm(qt), negm(qt)+2), "v_mul_f32 v%d, v%d, v%d" % (negm(qt)+2, negm(qt)+1, negm(qt)+2),
                  "v_mov_b32 v%d, v%d" % (negm(qt)+3, negm(qt)+2)]
        return c
    def oepi_list(qt, tag="ost"):
        c = []
        iv = negm(qt)+2
        for u in range(4):
            a_, b_ = Oacc(2*u, qt), Oacc(2*u+1, qt)
            for h in range(2):
                c.append("v_pk_mul_f32 v[%d:%d], v[%d:%d], v[%d:%d]" % (a_+2*h, a_+2*h+1, a_+2*h, a_+2*h+1, iv, iv+1))
                c.append("v_pk_mul_f32 v[%d:%d], v[%d:%d], v[%d:%d]" % (b_+2*h, b_+2*h+1, b_+2*h, b_+2*h+1, iv, iv+1))
            c += ["v_cvt_pk_bf16_f32 v%d, v%d, v%d" % (a_, a_, a_+1), "v_cvt_pk_bf16_f32 v%d, v%d, v%d" % (a_+1, a_+2, a_+3),
                  "v_cvt_pk_bf16_f32 v%d, v%d, v%d" % (a_+2, b_, b_+1), "v_cvt_pk_bf16_f32 v%d, v%d, v%d" % (a_+3, b_+2, b_+3)]
            off = (qt >> 1)*OF_RP + (qt & 1)*1024 + u*2048
            c.append("s_add_u32 s%d, s%d, %d" % (S_T0, S_OB, off))
            c.append(Ins("buffer_store_dwordx4 v[%d:%d], v%d, s[%d:%d], s%d offen%s" % (a_, a_+3, V_XO, SRD_WS, SRD_WS+3, S_T0, SCO), tag=tag))
        return c
    def emit_list(c):
        for t in c:
            if isinstance(t, Ins): p.add(t)
            else: e(t)
    if oint:
        pv = pv_mfmas(1, False, plain=True)
        for ins in pv[32:]: p.add(ins)
        def mix(mf, fill):
            per = -(-len(fill)//len(mf))
            for i_, m_ in enumerate(mf):
                p.add(m_); emit_list(fill[i_*per:(i_+1)*per])
        tile = lambda qt: [pv[4*dt + qt] for dt in range(8)]
        for m_ in tile(0)[:3]: p.add(m_)
        st.stamp()
        mix(tile(0)[3:], check_list() + rcp_list())
        for qt in range(3): mix(tile(qt+1), oepi_list(qt))
        emit_list(oepi_list(3))
        e("%s_oend:" % name)
    else:
        step(16, False, True, False, False, False, False, False, 0, False)
        st.stamp()
        emit_list(check_list())
        e("%s_oepi:" % name)
        emit_list(rcp_list())
        for qt in range(4): emit_list(oepi_list(qt))
    if diag0: st.on = True
    if one:
        p.waitvm(("kv", None))
        tail(p, st)
    else:
        st.stamp()
        if tl: tl_end(p)
        if stamps:
            e("s_waitcnt vmcnt(0)")
            st.stamp(); st.stamp(True)
            st.dump(SRD_WS, V_T0, 1)
    e("s_endpgm")
    e("%s_slow:" % name)
    e("s_nop 15")
    e("s_waitcnt vmcnt(0) lgkmcnt(0)")
    for i in range(128): e("v_mov_b32 v%d, 0" % i)
    e("v_mov_b32 v%d, 0" % V_T0)
    for qt in range(4):
        for r in range(4): e("v_accvgpr_write_b32 a%d, v%d" % (Lacc(qt)+r, V_T0))
    M = [232, 233, 234, 235]
    for qt in range(4): e("v_mov_b32 v%d, 0xff7fffff" % M[qt])
    e("s_add_u32 s%d, s%d, %d" % (S_KS, S_KVR, WS_KP))
    e("s_add_u32 s%d, s%d, %d" % (S_RP, S_KVR, WS_VP))
    e("s_mov_b32 s%d, 16" % S_CNT)
    e("%s_sl:" % name)
    for f in range(8):
        e("s_add_u32 s%d, s%d, %d" % (S_T0, S_KS, f*1024))
        e("buffer_load_dwordx4 a[%d:%d], v%d, s[%d:%d], s%d offen" % (Kf(f//4, f % 4), Kf(f//4, f % 4)+3, V_XO, SRD_WS, SRD_WS+3, S_T0) + SC)
    for f in range(8):
        e("s_add_u32 s%d, s%d, %d" % (S_T0, S_RP, f*1024))
        e("buffer_load_dwordx4 a[%d:%d], v%d, s[%d:%d], s%d offen" % (Vf(f), Vf(f)+3, V_XO, SRD_WS, SRD_WS+3, S_T0) + SC)
    e("s_waitcnt vmcnt(0)")
    for ins in qk_mfmas(0, True): p.add(ins)
    e("s_nop 15")
    for qt in range(4):
        t0, t1, al = V_T0, V_T1, V_T2
        rowmax(qt, t0, t1)
        e("v_mov_b32 v%d, v%d" % (t1, t0))
        e("v_permlane32_swap_b32 v%d, v%d" % (t0, t1))
        e("v_max_f32 v%d, v%d, v%d" % (t0, t0, t1))
        e("v_mov_b32 v%d, v%d" % (t1, t0))
        e("v_permlane16_swap_b32 v%d, v%d" % (t0, t1))
        e("v_max3_f32 v%d, v%d, v%d, v%d" % (t0, t0, t1, M[qt]))
        e("v_sub_f32 v%d, v%d, v%d" % (al, M[qt], t0))
        e("v_exp_f32 v%d, v%d" % (al, al))
        e("v_mov_b32 v%d, v%d" % (M[qt], t0))
        a, b = Sreg(0, 0, qt), Sreg(0, 1, qt)
        for r in range(4):
            e("v_sub_f32 v%d, v%d, v%d" % (a+r, a+r, t0)); e("v_sub_f32 v%d, v%d, v%d" % (b+r, b+r, t0))
        for r in range(4):
            e("v_exp_f32 v%d, v%d" % (a+r, a+r)); e("v_exp_f32 v%d, v%d" % (b+r, b+r))
        e("v_cvt_pk_bf16_f32 v%d, v%d, v%d" % (Preg(0, qt), a, a+1))
        e("v_cvt_pk_bf16_f32 v%d, v%d, v%d" % (Preg(0, qt)+1, a+2, a+3))
        e("v_cvt_pk_bf16_f32 v%d, v%d, v%d" % (Preg(0, qt)+2, b, b+1))
        e("v_cvt_pk_bf16_f32 v%d, v%d, v%d" % (Preg(0, qt)+3, b+2, b+3))
        for dt in range(8):
            for r in range(4): e("v_mul_f32 v%d, v%d, v%d" % (Oacc(dt, qt)+r, Oacc(dt, qt)+r, al))
        e("v_accvgpr_read_b32 v%d, a%d" % (t1, Lacc(qt)))
        e("v_mul_f32 v%d, v%d, v%d" % (t1, t1, al))
        e("v_accvgpr_write_b32 a%d, v%d" % (Lacc(qt), t1))
    e("s_nop 3")
    for ins in pv_mfmas(0, False): p.add(ins)
    e("s_nop 15")
    e("s_add_u32 s%d, s%d, 8192" % (S_KS, S_KS))
    e("s_add_u32 s%d, s%d, 8192" % (S_RP, S_RP))
    e("s_sub_u32 s%d, s%d, 1" % (S_CNT, S_CNT))
    e("s_cmp_lg_u32 s%d, 0" % S_CNT)
    e("s_cbranch_scc1 %s_sl" % name)
    for qt in range(4):
        e("v_accvgpr_read_b32 v%d, a%d" % (negm(qt), Lacc(qt)))
    if oint:
        emit_list(rcp_list())
        for qt in range(4): emit_list(oepi_list(qt, tag=None))
        e("s_branch %s_oend" % name)
    else:
        e("s_branch %s_oepi" % name)
    e("%s_done:" % name)
    e("s_endpgm")
    return p
```

```python
import sys
from asmgen import *
from kern import *

IMG = 8448
def k2(name, DW=6, DA=3, BAR=2, stamps=False, slack=6, xnt=True, noact=False, now=False, tl=False, force_far=False, cmap=0, diag=0, exld=' sc1', exst='', PT=0, xlate=0, p=None, st=None, psleep=2, codepf=0, start=None, skew=0, ep2=0, wflag=0, osc='', dg=0, small=0, gpk=0, half16=0, spr=0, gearly=0, lds_word=0, snake=0, ring16=0, wearly=None):
    one = p is not None
    if not one:
        p = Prog(); st = Stamps(p, stamps)
    else: stamps = st.on
    e = p.e
    SCA = " sc1" if one else ""
    p.lg_slack = slack
    U = 8
    if ring16: assert (DW, BAR) == (8, 4) and skew and not dg
    else: assert BAR < DW <= U - BAR or (now and noact)
    V_TRN, S_MBN = 226, 46
    def acc(nt, i): return 16*nt + 4*i
    V_PRE = 192
    R = 128
    V_TID, V_TR0, V_SP, V_DW, V_XA, V_XO, V_T0, V_T1, V_T2, V_T3, V_RM, V_DW2, V_FLAG, V_G8, V_LW, V_LR, V_Z = range(224, 241)
    V_PX = 242
    V_B2 = 246 if xlate == 2 else V_PRE
    S_TAG = 100
    def wfrag(nt): return 4*nt
    def afrag(ss, i): return 32 + 16*(ss % U) + 4*i
    S_WAVE = 3
    SRD_W, SRD_WS, SRD_X, SRD_OUT, SRD_A0, SRD_A1 = 8, 12, 16, 20, 56, 96
    S_A, S_W, S_MB, S_T0, S_T1, S_ROLE, S_RT, S_CT, S_CNT, S_KH, S_G, S_PAIR, S_XB, S_EXO, S_AB, S_FG, S_FP, S_FPP = 28, 29, 30, 31, 32, 33, 34, 35, 36, 37, 38, 39, 50, 51, 55, 60, 61, 62
    S_COL, S_EXI, S_FXP, S_XCC, S_NU, S_PT, S_4K = 90, 88, 89, 91, 92, 93, 94
    SRD_EX = 24
    A_PF = 192
    if not one:
        e("s_cmp_ge_u32 s2, 256")
        e("s_cbranch_scc1 %s_done" % name)
        st.stamp(True); st.stamp()
        if tl: tl_start(p)
        e("s_mov_b32 s%d, 1" % S_TAG)
    else:
        st.stamp()
    e("s_load_dwordx2 s[4:5], s[0:1], %d" % KA['wo'])
    e("s_load_dwordx4 s[40:43], s[0:1], %d" % KA['w2'])
    e("s_load_dwordx2 s[44:45], s[0:1], %d" % KA['out'])
    e("s_load_dwordx2 s[6:7], s[0:1], %d" % KA['ws'])
    e("s_load_dwordx2 s[48:49], s[0:1], %d" % KA['x'])
    e("s_getreg_b32 s%d, hwreg(HW_REG_XCC_ID, 0, 4)" % S_XCC)
    if not one:
        e("v_lshrrev_b32 v%d, 6, v0" % V_T0)
        e("v_and_b32 v%d, 63, v0" % V_TID)
        e("v_readfirstlane_b32 s%d, v%d" % (S_WAVE, V_T0))
    else:
        e("v_mov_b32 v%d, v240" % V_TID)
    e("s_bfe_u32 s%d, s2, 0x10002" % S_ROLE)
    e("s_and_b32 s%d, s2, 3" % S_T0)
    e("s_lshr_b32 s%d, s2, 3" % S_T1)
    PX = 1 if cmap == 2 else 128
    e("s_lshr_b32 s%d, s2, 7" % S_KH)
    if cmap == 2:
        e("s_and_b32 s%d, s2, 1" % S_KH)
        e("s_lshr_b32 s%d, s2, 5" % S_RT)
        e("s_bfe_u32 s%d, s2, 0x10001\ns_lshl_b32 s%d, s%d, 2" % (S_CT, S_CT, S_CT))
        e("s_and_b32 s%d, s%d, 3\ns_add_u32 s%d, s%d, s%d" % (S_T0, S_T1, S_CT, S_CT, S_T0))
    elif cmap == 0:
        e("s_lshl_b32 s%d, s%d, 1" % (S_RT, S_T0))
        e("s_and_b32 s%d, s%d, 1" % (S_CT, S_T1))
        e("s_add_u32 s%d, s%d, s%d" % (S_RT, S_RT, S_CT))
        e("s_bfe_u32 s%d, s%d, 0x30001" % (S_CT, S_T1))
    else:
        e("s_lshr_b32 s%d, s%d, 1" % (S_RT, S_T0))
        e("s_lshl_b32 s%d, s%d, 2" % (S_RT, S_RT))
        e("s_and_b32 s%d, s%d, 3" % (S_CT, S_T1))
        e("s_add_u32 s%d, s%d, s%d" % (S_RT, S_RT, S_CT))
        e("s_and_b32 s%d, s%d, 1" % (S_CT, S_T0))
        e("s_lshl_b32 s%d, s%d, 2" % (S_CT, S_CT))
        e("s_bfe_u32 s%d, s%d, 0x20002" % (S_T0, S_T1))
        e("s_add_u32 s%d, s%d, s%d" % (S_CT, S_CT, S_T0))
    e("s_lshl_b32 s%d, s%d, 3" % (S_PAIR, S_RT))
    e("s_add_u32 s%d, s%d, s%d" % (S_PAIR, S_PAIR, S_CT))
    e("s_lshl_b32 s%d, s%d, 1" % (S_PAIR, S_PAIR))
    e("s_add_u32 s%d, s%d, s%d" % (S_PAIR, S_PAIR, S_KH))
    e("v_lshrrev_b32 v%d, 4, v%d" % (V_T0, V_TID))
    e("v_and_b32 v%d, 15, v%d" % (V_T1, V_TID))
    e("v_lshlrev_b32 v%d, 14, v%d" % (V_DW, V_T0))
    e("s_lshl_b32 s%d, s%d, 3" % (S_T0, S_KH))
    e("v_xor_b32 v%d, s%d, v%d" % (V_T2, S_T0, V_T1))
    e("v_lshl_add_u32 v%d, v%d, 4, v%d" % (V_DW, V_T2, V_DW))
    e("v_and_b32 v%d, 1, v%d" % (V_T2, V_T0))
    e("v_lshlrev_b32 v%d, 2, v%d" % (V_T2, V_T2))
    e("v_bfe_u32 v%d, v%d, 2, 2" % (V_T3, V_TID))
    e("v_add_u32 v%d, v%d, v%d" % (V_T2, V_T2, V_T3))
    e("v_mul_u32_u24 v%d, 1056, v%d" % (V_TR0, V_T2))
    e("v_lshrrev_b32 v%d, 1, v%d" % (V_T2, V_T0))
    e("v_lshl_add_u32 v%d, v%d, 8, v%d" % (V_TR0, V_T2, V_TR0))
    e("v_and_b32 v%d, 3, v%d" % (V_T2, V_TID))
    e("v_lshl_add_u32 v%d, v%d, 3, v%d" % (V_TR0, V_T2, V_TR0))
    e("v_add_u32 v%d, %d, v%d" % (V_DW2, 2048-1056, V_DW))
    e("v_lshlrev_b32 v%d, 4, v%d" % (V_XO, V_TID))
    e("v_lshlrev_b32 v%d, 3, v%d" % (V_G8, V_T0))
    e("v_mov_b32 v%d, 0" % V_Z)
    e("v_mov_b32 v%d, 0" % V_FLAG)
    e("v_mov_b32 v%d, 0" % V_PX)
    e("s_waitcnt lgkmcnt(0)")
    if gearly:
        assert one and skew and xlate == 2 and not (wflag & 1) and cmap in (0, 2)
        e("s_cmp_lg_u32 s%d, 0" % S_WAVE)
        e("s_cbranch_scc1 %s_dec" % name)
        p.add(RawWait("s_waitcnt vmcnt(16)"))
        e("s_mov_b64 exec, 0xffff")
        e("v_cmp_ne_u32 vcc, s%d, v252" % S_TAG)
        e("s_mov_b64 exec, -1")
        e("s_cmp_eq_u64 vcc, 0")
        e("s_cselect_b32 s63, 1, 0")
        e("s_cmp_eq_u32 s%d, 0" % S_ROLE)
        e("s_cselect_b32 s63, s63, 0")
        e("v_mov_b32 v%d, s63" % V_T2)
        e("v_mov_b32 v%d, %d" % (V_T3, lds_word))
        e("ds_write_b32 v%d, v%d" % (V_T3, V_T2))
        e("s_waitcnt lgkmcnt(0)")
        e("%s_dec:" % name)
    if one: e("s_barrier")
    if gearly:
        e("v_mov_b32 v%d, %d" % (V_T3, lds_word))
        e("ds_read_b32 v%d, v%d" % (V_T2, V_T3))
        e("v_readfirstlane_b32 s63, v%d" % V_T2)
    def sel(d, x, y):
        e("s_mov_b32 s%d, 0x%x" % (d, y))
        e("s_cselect_b32 s%d, 0x%x, s%d" % (d, x, d))
    e("s_cmp_eq_u32 s%d, 1" % S_ROLE)
    e("s_cselect_b32 s%d, s4, s40" % SRD_W)
    e("s_cselect_b32 s%d, s5, s41" % (SRD_W+1))
    sel(SRD_W+2, 8 << 20, 7 << 20)
    e("s_mov_b32 s%d, 0x20000" % (SRD_W+3))
    sel(S_NU, 64*2048, 56*2048)
    sel(S_T1, OF_RP, HF_RP)
    sel(S_AB, WS_OF, WS_HF)
    e("s_cselect_b32 s%d, %d, %d" % (S_CNT, 8 - skew, 7 - skew))
    e("s_cselect_b32 s%d, s48, s42" % SRD_X)
    e("s_cselect_b32 s%d, s49, s43" % (SRD_X+1))
    sel(SRD_X+2, 4 << 20, 2048)
    e("s_mov_b32 s%d, 0x20000" % (SRD_X+3))
    e("s_lshl_b32 s%d, s%d, 2" % (S_T0, S_RT))
    e("s_add_u32 s%d, s%d, s%d" % (S_T0, S_T0, S_WAVE))
    e("s_lshl_b32 s%d, s%d, 1" % (S_T0, S_T0))
    e("s_mul_i32 s%d, s%d, s%d" % (S_A, S_T0, S_T1))
    e("s_add_u32 s%d, s%d, s%d" % (S_A, S_A, S_AB))
    e("s_mul_i32 s%d, s%d, s%d" % (S_T0, S_KH, S_NU))
    e("s_add_u32 s%d, s%d, s%d" % (S_A, S_A, S_T0))
    e("s_add_u32 s%d, s6, s%d" % (SRD_A0, S_A))
    e("s_addc_u32 s%d, s7, 0" % (SRD_A0+1))
    e("s_mov_b32 s%d, s%d" % (SRD_A0+2, S_NU))
    e("s_mov_b32 s%d, 0x20000" % (SRD_A0+3))
    e("s_add_u32 s%d, s%d, s%d" % (SRD_A1, SRD_A0, S_T1))
    e("s_addc_u32 s%d, s%d, 0" % (SRD_A1+1, SRD_A0+1))
    e("s_mov_b32 s%d, s%d" % (SRD_A1+2, S_NU))
    e("s_mov_b32 s%d, 0x20000" % (SRD_A1+3))
    e("s_mov_b32 s%d, 0" % S_A)
    e("s_lshl_b32 s%d, s%d, 5" % (S_T0, S_NU))
    e("s_mul_i32 s%d, s%d, s%d" % (S_T1, S_T0, S_KH))
    e("s_add_u32 s%d, s%d, s%d" % (SRD_W, SRD_W, S_T1))
    e("s_addc_u32 s%d, s%d, 0" % (SRD_W+1, SRD_W+1))
    e("s_mov_b32 s%d, s%d" % (SRD_W+2, S_T0))
    e("s_lshl_b32 s%d, s%d, 8" % (S_W, S_CT))
    e("s_lshl_b32 s%d, s%d, 7" % (S_T0, S_KH))
    e("s_add_u32 s%d, s%d, s%d" % (S_COL, S_W, S_T0))
    e("s_lshl_b32 s%d, s%d, 12" % (S_T0, S_WAVE))
    e("s_add_u32 s%d, s%d, s%d" % (S_W, S_W, S_T0))
    e("s_mul_i32 s%d, s%d, %d" % (S_MB, S_WAVE, 2*1056))
    if ring16:
        e("s_add_u32 s%d, s%d, %d" % (S_MBN, S_MB, 8*IMG))
        e("v_add_u32 v%d, %d, v%d" % (V_TRN, 8*IMG, V_TR0))
    def dma_step(slot, mb=S_MB):
        b = slot*IMG
        return [["s_add_u32 m0, s%d, %d" % (mb, b), "buffer_load_dwordx4 v%d, s[%d:%d], s%d offen lds" % (V_DW, SRD_W, SRD_W+3, S_W)],
                ["buffer_load_dwordx4 v%d, s[%d:%d], s%d offen offset:1056 lds" % (V_DW2, SRD_W, SRD_W+3, S_W)]]
    adv_w = "s_add_u32 s%d, s%d, %d" % (S_W, S_W, 32*2048)
    def a_loads(ss, so=S_A):
        return ["buffer_load_dwordx4 a[%d:%d], v%d, s[%d:%d], s%d offen offset:%d" % (afrag(ss, i), afrag(ss, i)+3, V_XO, SRD_A0 if i < 2 else SRD_A1, (SRD_A0 if i < 2 else SRD_A1)+3, so, (i & 1)*1024) + SCA for i in range(4)]
    adv_a = "s_add_u32 s%d, s%d, 2048" % (S_A, S_A)
    def tr_reads(ss, nt):
        return ["ds_read_b64_tr_b16 a[%d:%d], v%d offset:%d" % (wfrag(nt)+2*t, wfrag(nt)+2*t+1, V_TRN if (ring16 and ss >= U) else V_TR0, (ss % U)*IMG + nt*32 + t*512) for t in range(2)]
    setup = []
    setup += ["s_mov_b32 s%d, s6" % SRD_WS, "s_mov_b32 s%d, s7" % (SRD_WS+1), "s_mov_b32 s%d, 0x%x" % (SRD_WS+2, WS_SIZE), "s_mov_b32 s%d, 0x20000" % (SRD_WS+3)]
    setup += ["s_mov_b32 s%d, s44" % SRD_OUT, "s_mov_b32 s%d, s45" % (SRD_OUT+1), "s_mov_b32 s%d, 0x400000" % (SRD_OUT+2), "s_mov_b32 s%d, 0x20000" % (SRD_OUT+3)]
    setup += ["s_lshl_b32 s%d, s%d, 15" % (S_G, S_PAIR), "s_lshl_b32 s%d, s%d, 13" % (S_T0, S_WAVE), "s_add_u32 s%d, s%d, s%d" % (S_G, S_G, S_T0), "s_add_u32 s%d, s%d, 0x%x" % (S_G, S_G, WS_G)]
    setup += ["s_lshl_b32 s%d, s%d, 19" % (S_XB, S_RT), "s_lshl_b32 s%d, s%d, 17" % (S_T0, S_WAVE), "s_add_u32 s%d, s%d, s%d" % (S_XB, S_XB, S_T0),
              "s_add_u32 s%d, s%d, s%d" % (S_XB, S_XB, S_COL)]
    if wflag & 2:
        setup += ["s_lshl_b32 s%d, s%d, 2" % (S_FG, S_PAIR), "s_add_u32 s%d, s%d, s%d" % (S_FG, S_FG, S_WAVE)]
    else:
        setup += ["s_mov_b32 s%d, s%d" % (S_FG, S_PAIR)]
    setup += ["s_lshl_b32 s%d, s%d, 7" % (S_FG, S_FG), "s_add_u32 s%d, s%d, 0x%x" % (S_FG, S_FG, WS_F2 + 5*F2_STRIDE),
              "s_lshl_b32 s%d, s2, 7" % S_FP, "s_xor_b32 s%d, s%d, %d" % (S_FPP, S_FP, PX << 7),
              "s_add_u32 s%d, s%d, 0x%x" % (S_FXP, S_FPP, WS_F2), "s_add_u32 s%d, s%d, 0x%x" % (S_T1, S_FP, WS_F2),
              "s_mul_i32 s%d, s%d, %d" % (S_T0, S_WAVE, F2_STRIDE), "s_add_u32 s%d, s%d, 0x%x" % (S_T0, S_T0, WS_F2 + F2_STRIDE),
              "s_add_u32 s%d, s%d, s%d" % (S_FP, S_FP, S_T0), "s_add_u32 s%d, s%d, s%d" % (S_FPP, S_FPP, S_T0),
              "v_mov_b32 v%d, s%d" % (V_PX+2, S_TAG), "v_mov_b32 v%d, s%d" % (V_PX+3, S_XCC)]
    setup += ["s_mul_i32 s%d, s2, %d" % (S_EXO, EX_STRIDE), "s_xor_b32 s%d, s2, %d" % (S_EXI, PX), "s_mul_i32 s%d, s%d, %d" % (S_EXI, S_EXI, EX_STRIDE),
              "s_lshl_b32 s%d, s%d, 13" % (S_T0, S_WAVE), "s_add_u32 s%d, s%d, 0x%x" % (S_T0, S_T0, WS_EX),
              "s_add_u32 s%d, s%d, s%d" % (S_EXO, S_EXO, S_T0), "s_add_u32 s%d, s%d, s%d" % (S_EXI, S_EXI, S_T0),
              "s_add_u32 s%d, s6, s%d" % (SRD_EX, S_EXO), "s_addc_u32 s%d, s7, 0" % (SRD_EX+1), "s_mov_b32 s%d, 8192" % (SRD_EX+2), "s_mov_b32 s%d, 0x20000" % (SRD_EX+3),
              "s_lshl_b32 s%d, s%d, 13" % (S_PT, S_CNT), "s_sub_u32 s%d, %d, s%d" % (S_PT, PT*1024, S_PT), "s_mov_b32 s%d, 4096" % S_4K]
    setup += ["v_lshlrev_b32 v%d, 11, v%d" % (V_RM, V_T1), "v_and_b32 v%d, 1, v%d" % (V_T2, V_T0), "v_lshl_add_u32 v%d, v%d, 5, v%d" % (V_RM, V_T2, V_RM),
              "v_lshrrev_b32 v%d, 1, v%d" % (V_T2, V_T0), "v_lshl_add_u32 v%d, v%d, 4, v%d" % (V_RM, V_T2, V_RM)]
    setup += ["v_mov_b32 v%d, 0" % i for i in range(128)]
    NP = max(DW, DA)
    if wearly is None or not one: wearly = DW
    seqs = []
    for ss in range(NP):
        if ss < wearly:
            for grp in dma_step(ss): seqs.append([(t, ("w", ss) if t.startswith("buffer") else None) for t in grp])
            seqs[-1].append((adv_w, None))
        if ss < DA and not one:
            for t in a_loads(ss): seqs.append([(t, None)])
            seqs[-1].append((adv_a, None))
    per = -(-len(setup)//(len(seqs)-1)); ii = 0
    for grp in seqs:
        for t, tg in grp: e(t, tag=tg)
        for t in setup[ii:ii+per]: e(t)
        ii += per
    for t in setup[ii:]: e(t)
    if one and (wflag & 1):
        p.waitvm("ost")
        e("s_lshl_b32 s52, s%d, 15" % S_WAVE)
        e("s_add_u32 s53, s101, s52")
        e("s_mov_b64 exec, 1")
        e("buffer_store_dword v%d, v%d, s[%d:%d], s53 offen sc1" % (V_PX+2, V_Z, SRD_WS, SRD_WS+3))
        e("s_mov_b64 exec, 0xffff")
        e("v_lshlrev_b32 v%d, 7, v%d" % (V_T3, V_TID))
        e("s_lshl_b32 s53, s%d, 12" % S_RT)
        e("s_add_u32 s52, s52, s53")
        e("s_lshl_b32 s53, s%d, 11" % S_KH)
        e("s_add_u32 s52, s52, s53")
        e("s_add_u32 s52, s52, 0x%x" % WS_FDW)
        e("s_mov_b32 s53, 0x80000")
        e("%s_fdp:" % name)
        e("buffer_load_dword v%d, v%d, s[%d:%d], s52 offen sc1" % (V_T2, V_T3, SRD_WS, SRD_WS+3))
        e("s_waitcnt vmcnt(0)")
        e("v_cmp_ne_u32 vcc, s%d, v%d" % (S_TAG, V_T2))
        e("s_cbranch_vccz %s_fdq" % name)
        if psleep: e("s_sleep %d" % psleep)
        e("s_sub_u32 s53, s53, 1")
        e("s_cmp_lg_u32 s53, 0")
        e("s_cbranch_scc1 %s_fdp" % name)
        e("%s_fdq:" % name)
        e("s_mov_b64 exec, -1")
        st.stamp()
        for ss in range(DA):
            for t in a_loads(ss): e(t)
            e(adv_a)
        e("s_barrier")
    else:
        if gearly:
            e("s_cmp_lg_u32 s63, 0")
            e("s_cselect_b32 s52, 0, 0x7f000000")
            e("s_cselect_b32 s%d, %d, 0" % (S_A, DA*2048))
            for ss in range(DA):
                for t in a_loads(ss, 52): e(t)
                e("s_add_u32 s52, s52, 2048")
        if one:
            p.waitvm("ost")
            e("s_barrier")
        e("s_cmp_lg_u32 s%d, 0" % S_WAVE)
        e("s_cbranch_scc1 %s_xpub" % name)
        e("s_mov_b64 exec, 1")
        if one:
            e("buffer_store_dword v%d, v%d, s[%d:%d], s101 offen sc1" % (V_PX+2, V_Z, SRD_WS, SRD_WS+3), tag="optional")
        if not skew: e("buffer_store_dwordx2 v[%d:%d], v%d, s[%d:%d], s%d offen sc1" % (V_PX+2, V_PX+3, V_Z, SRD_WS, SRD_WS+3, S_T1), tag="optional")
        e("s_mov_b64 exec, -1")
        e("%s_xpub:" % name)
        if one:
            p.waitvm(("w", 1))
            if gearly:
                e("s_cmp_lg_u32 s63, 0")
                e("s_cbranch_scc1 %s_fdr" % name)
            e("s_cmp_lg_u32 s%d, 0" % S_WAVE)
            e("s_cbranch_scc1 %s_fdr" % name)
            e("s_mov_b64 exec, 0xffffffff" if not half16 else "s_mov_b64 exec, 0xffff")
            e("v_lshlrev_b32 v%d, 7, v%d" % (V_T3, V_TID))
            e("s_lshl_b32 s52, s%d, 12" % S_RT)
            e("s_add_u32 s52, s52, 0x%x" % WS_FD)
            if half16: e("s_lshl_b32 s53, s%d, 11\ns_add_u32 s52, s52, s53" % S_KH)
            e("s_mov_b32 s53, 0x80000")
            e("%s_fdp:" % name)
            e("buffer_load_dword v%d, v%d, s[%d:%d], s52 offen sc1" % (V_T2, V_T3, SRD_WS, SRD_WS+3), tag="optional")
            e("s_waitcnt vmcnt(0)", tag=None) if False else p.add(RawWait("s_waitcnt vmcnt(0)"))
            e("v_cmp_ne_u32 vcc, s%d, v%d" % (S_TAG, V_T2))
            e("s_cbranch_vccz %s_fdq" % name)
            if psleep: e("s_sleep %d" % psleep)
            e("s_sub_u32 s53, s53, 1")
            e("s_cmp_lg_u32 s53, 0")
            e("s_cbranch_scc1 %s_fdp" % name)
            e("%s_fdq:" % name)
            e("s_mov_b64 exec, -1")
            e("%s_fdr:" % name)
            e("s_barrier")
            st.stamp()
            if gearly:
                e("s_cmp_lg_u32 s63, 0")
                e("s_cbranch_scc1 %s_have" % name)
                for ss in range(DA):
                    for t in a_loads(ss): p.add(RawWait(t))
                    e(adv_a)
                e("%s_have:" % name)
            else:
                for ss in range(DA):
                    for t in a_loads(ss): e(t)
                    e(adv_a)
    for ss in range(wearly, DW):
        for grp in dma_step(ss):
            for t in grp: e(t, tag=("w", ss) if t.startswith("buffer") else None)
        e(adv_w)
    def preload(lab):
        e("s_cmp_eq_u32 s%d, 1" % S_ROLE)
        e("s_cbranch_scc0 %s_preg%s" % (name, lab))
        for i in range(4):
            e("s_add_u32 s%d, s%d, %d" % (S_T0, S_XB, i*16*2048))
            for u in range(2):
                d = V_PRE + 4*(4*u+i)
                e("buffer_load_dwordx4 v[%d:%d], v%d, s[%d:%d], s%d offen offset:%d%s" % (d, d+3, V_RM, SRD_X, SRD_X+3, S_T0, u*64, " nt" if xnt else ""), tag="optional")
        e("s_branch %s_prej%s" % (name, lab))
        e("%s_preg%s:" % (name, lab))
        for nt in range(4):
            e("buffer_load_dwordx2 v[%d:%d], v%d, s[%d:%d], s%d offen offset:%d" % (V_PRE+2*nt, V_PRE+2*nt+1, V_G8, SRD_X, SRD_X+3, S_COL, nt*32), tag="optional")
        e("%s_prej%s:" % (name, lab))
    if not xlate: preload("a")
    if xlate == 2:
        for nt in range(4):
            e("buffer_load_dwordx2 v[%d:%d], v%d, s[%d:%d], s%d offen offset:%d" % (V_B2+2*nt, V_B2+2*nt+1, V_G8, SRD_X, SRD_X+3, S_COL, nt*32))
    if not one:
        if not diag: st.stamp()
        p.waitvm(("w", 0))
        e("s_barrier")
    for nt in range(8):
        for t in tr_reads(0, nt): e(t)
    if codepf & 8: code_srd(p, 40, 44, start)
    if not diag: st.stamp()
    p.loop_begin("g2")
    e("%s_g2:" % name)
    for ss in range(U):
        if ss % BAR == 0:
            p.waitvm(("w", (ss+BAR) % U))
            e("s_barrier")
        if ss == 6 and not skew:
            e("s_cmp_lg_u32 s%d, 1" % S_CNT)
            e("s_cbranch_scc1 %s_nofl" % name)
            e("buffer_load_dword v%d, v%d, s[%d:%d], s%d offen sc1" % (V_FLAG, V_Z, SRD_WS, SRD_WS+3, S_FG), tag="optional")
            e("buffer_load_dwordx2 v[%d:%d], v%d, s[%d:%d], s%d offen sc1" % (V_PX, V_PX+1, V_Z, SRD_WS, SRD_WS+3, S_FXP), tag="optional")
            e("%s_nofl:" % name)
        mf = []
        order = [(nt, i) for nt in range(8) for i in (range(4) if not ((snake & 1) and nt & 1) else range(3, -1, -1))]
        if snake & 8:
            order = []
            for n in range(0, 8, 2):
                for i in (range(4) if not (n & 2) else range(3, -1, -1)):
                    order += [(n, i), (n+1, i)] if (len(order)//2) % 2 == 0 else [(n+1, i), (n, i)]
        lastuse = {}
        for k_, (nt, i) in enumerate(order):
            lastuse[nt] = k_
            a = acc(nt, i)
            mf.append(Ins("v_mfma_f32_16x16x32_bf16 v[%d:%d], a[%d:%d], a[%d:%d], v[%d:%d]" % (a, a+3, wfrag(nt), wfrag(nt)+3, afrag(ss, i), afrag(ss, i)+3, a, a+3)))
        sc = Sched(mf)
        if dg: sc.put(tr_reads(ss, 7)[1], spr)
        for nt in range(8):
            r = tr_reads(ss+1, nt)
            g = sc.put(r[0], min(lastuse[nt], 31))
            if not (dg and nt == 7): sc.put(r[1], min(g+1+spr, 31))
        pos = 1
        slot = (ss + DW) % U
        for grp in dma_step(slot, S_MBN if ring16 else S_MB):
            if now: continue
            g = sc.put(Ins(grp[-1], tag=("w", slot)), pos)
            for t in grp[:-1]: sc.scalar(t, g-1)
            pos = g + 3
        sc.scalar(adv_w, pos - 2)
        pos = 9
        for t in a_loads(ss + DA):
            if noact: continue
            g = sc.put(t, pos); pos = g + 4
        sc.scalar(adv_a, 30)
        if (codepf & 8) and ss == 3:
            sc.put(Ins("buffer_load_dwordx4 a[%d:%d], v%d, s[40:43], s44 offen" % (A_PF, A_PF+3, V_XO), tag="pf"), 26)
        if PT:
            g = sc.put(Ins("buffer_load_dwordx4 a[%d:%d], v%d, s[%d:%d], s%d offen" % (A_PF, A_PF+3, V_XO, SRD_EX, SRD_EX+3, S_PT), tag="pf"), 26)
            sc.scalar("s_add_u32 s%d, s%d, 1024" % (S_PT, S_PT), g)
        sc.emit(p)
    if ring16:
        e("v_swap_b32 v%d, v%d" % (V_TR0, V_TRN))
        e("s_mov_b32 s47, s%d\ns_mov_b32 s%d, s%d\ns_mov_b32 s%d, s47" % (S_MB, S_MB, S_MBN, S_MBN))
    e("s_sub_u32 s%d, s%d, 1" % (S_CNT, S_CNT))
    e("s_cmp_lg_u32 s%d, 0" % S_CNT)
    e("s_cbranch_scc1 %s_g2" % name)
    p.loop_end()
    if not skew: st.stamp()
    def mfma(nt, w, ss, i):
        a_ = acc(nt, i)
        return Ins("v_mfma_f32_16x16x32_bf16 v[%d:%d], a[%d:%d], a[%d:%d], v[%d:%d]" % (a_, a_+3, w, w+3, afrag(ss, i), afrag(ss, i)+3, a_, a_+3))
    if skew:
        assert (DW, DA, BAR) == ((6, 3, 2) if not ring16 else (8, 3, 4))
        BL = [((4, j), (5, j)) for j in range(2, 8)]
        if small: BL += [((nt, j), (nt, j+1)) for nt in (6, 7) for j in (2, 4, 6)]
        else: BL += [((6, j), (7, j)) for j in range(2, 8)]
        BL += [((0, j), (1, j)) for j in range(2, 8)] + [((2, j), (3, j)) for j in range(2, 8)]
        def bl_reads(b_):
            base = 8*(b_ % 4)
            return ["ds_read_b64_tr_b16 a[%d:%d], v%d offset:%d" % (base+4*q+2*t, base+4*q+2*t+1, V_TR0, j*IMG + nt*32 + t*512) for q, (nt, j) in enumerate(BL[b_]) for t in range(2)]
        def bl_mfmas(b_):
            base = 8*(b_ % 4)
            r = [mfma(nt, base+4*q, j, i) for q, (nt, j) in enumerate(BL[b_]) for i in (range(4) if not ((snake & 1) and q & 1) else range(3, -1, -1))]
            for x in r: x.noslack = True
            return r
        def put_dma(sc, slot, pos):
            for grp in dma_step(slot):
                g = sc.put(Ins(grp[-1], tag=("w", slot)), pos)
                for t in grp[:-1]: sc.scalar(t, g-1)
                pos = g + 1
            sc.scalar(adv_w, pos - 1)
            return pos
        def put_a(sc, ss, pos, step=2):
            for t in a_loads(ss):
                g = sc.put(t, pos); pos = g + step
            sc.scalar(adv_a, pos - step)
            return pos
        p.waitvm(("w", 3))
        e("s_barrier")
        sc = Sched([mfma(nt, wfrag(nt), 0, i) for nt in range(8) for i in range(4)])
        if dg: sc.put(tr_reads(0, 7)[1], 0)
        for nt in range(8):
            r = tr_reads(1, nt)
            g = sc.put(r[0], min(4*nt+3, 31))
            if not (dg and nt == 7): sc.put(r[1], min(g+1, 31))
        if not ring16: pos = put_dma(sc, 6, 1); pos = put_dma(sc, 7, pos)
        pos = put_a(sc, 3, 2, 1); pos = put_a(sc, 4, pos, 1); pos = put_a(sc, 5, pos, 1)
        sc.emit(p)
        sc = Sched([mfma(nt, wfrag(nt), 1, i) for nt in range(8) for i in range(4)])
        if dg: sc.put(tr_reads(1, 7)[1], 0)
        pos = put_a(sc, 6, 0, 1); pos = put_a(sc, 7, pos, 1)
        pos = 9
        for t in bl_reads(0): pos = sc.put(t, pos) + 1
        pos = max(pos, 17)
        for t in bl_reads(1): pos = sc.put(t, pos) + 1
        if xlate == 2:
            pos = 13
            for i in range(4):
                for u in range(2):
                    d = V_PRE + 4*(4*u+i)
                    g = sc.put(Ins("buffer_load_dwordx4 v[%d:%d], v%d, s[%d:%d], s%d offen offset:%d%s" % (d, d+3, V_RM, SRD_X, SRD_X+3, S_EXO, u*64, " nt" if xnt else "")), pos)
                    if u == 0: sc.scalar("s_add_u32 s%d, s%d, %d" % (S_EXO, S_XB, i*16*2048), g-1)
                    pos = g + 1
        sc.emit(p)
        p.waitvm(("w", 5))
        e("s_barrier")
        sc = Sched(bl_mfmas(0) + bl_mfmas(1))
        pos = 0
        for t in bl_reads(2) + bl_reads(3): pos = sc.put(t, pos) + 2
        sc.emit(p)
        p.waitvm(("w", 7))
        e("s_barrier")
        mf = []
        for b_ in range(2, 24): mf += bl_mfmas(b_)
        sc = Sched(mf)
        G0 = lambda b_: 8*(b_ - 2)
        for b_ in range(2, 22):
            for q, t in enumerate(bl_reads(b_ + 2)): sc.put(t, G0(b_) + 2*q)
        def send(k_, pos):
            a_, d = 64 + 8*k_, 64 + 4*k_
            for t in ["v_cvt_pk_bf16_f32 v%d, v%d, v%d" % (d, a_, a_+1), "v_cvt_pk_bf16_f32 v%d, v%d, v%d" % (d+1, a_+2, a_+3),
                      "v_cvt_pk_bf16_f32 v%d, v%d, v%d" % (d+2, a_+4, a_+5), "v_cvt_pk_bf16_f32 v%d, v%d, v%d" % (d+3, a_+6, a_+7)]:
                pos = sc.put(t, pos) + 1
            return sc.put(Ins("buffer_store_dwordx4 v[%d:%d], v%d, s[%d:%d], %s offen offset:%d sc1" % (d, d+3, V_XO, SRD_EX, SRD_EX+3, "0" if k_ < 4 else "s%d" % S_4K, (k_ & 3)*1024), tag="xst"), pos) + 1
        pos = G0(6) + 3
        for k_ in range(4): pos = send(k_, pos)
        if small:
            pos = max(pos, G0(9) + 3)
            for k_ in (4, 5): pos = send(k_, pos)
            pos = max(pos, G0(12) + 3)
            for k_ in (6, 7): pos = send(k_, pos)
        else:
            pos = max(pos, G0(12) + 3)
            for k_ in range(4, 8): pos = send(k_, pos)
        sc.put(Ins("buffer_load_dword v%d, v%d, s[%d:%d], s%d offen sc1" % (V_FLAG, V_Z, SRD_WS, SRD_WS+3, S_FG)), G0(21) + 1)
        sc.emit(p)
        st.stamp()
        e("v_mov_b32 v%d, s%d" % (V_T0, S_TAG))
        p.waitvm("xst")
        e("s_mov_b64 exec, 1")
        e("buffer_store_dword v%d, v%d, s[%d:%d], s%d offen sc1" % (V_T0, V_Z, SRD_WS, SRD_WS+3, S_FP))
        e("s_mov_b64 exec, -1")
        e("v_readfirstlane_b32 s52, v%d" % V_FLAG)
        e("s_cmp_eq_u32 s52, s%d" % S_TAG)
        e("s_cselect_b32 s54, s%d, 0" % S_ROLE)
        e("s_cmp_lg_u32 s54, 0")
        e("s_cselect_b32 s55, s%d, 0x7f000000" % S_G)
        if diag: st.stamp()
        e("s_mov_b32 s53, 0x80000")
        e("%s_pp:" % name)
        e("buffer_load_dword v%d, v%d, s[%d:%d], s%d offen sc1" % (V_PX, V_Z, SRD_WS, SRD_WS+3, S_FPP))
        e("s_waitcnt vmcnt(0)")
        e("v_readfirstlane_b32 s52, v%d" % V_PX)
        e("s_cmp_eq_u32 s52, s%d" % S_TAG)
        e("s_cbranch_scc1 %s_pq" % name)
        e("s_sub_u32 s53, s53, 1")
        e("s_cmp_lg_u32 s53, 0")
        e("s_cbranch_scc1 %s_pp" % name)
        e("%s_pq:" % name)
        if diag: st.stamp()
        for k_ in range(8):
            e("s_add_u32 s%d, s%d, %d" % (S_T0, S_EXI, k_*1024))
            e("buffer_load_dwordx4 v[%d:%d], v%d, s[%d:%d], s%d offen sc1" % (96+4*k_, 96+4*k_+3, V_XO, SRD_WS, SRD_WS+3, S_T0))
        for k_ in range(8):
            e("s_add_u32 s%d, s55, %d" % (S_T0, k_*1024))
            e("buffer_load_dwordx4 v[%d:%d], v%d, s[%d:%d], s%d offen sc1" % (64+4*k_, 64+4*k_+3, V_XO, SRD_WS, SRD_WS+3, S_T0))
        if ep2:
            e("s_cmp_eq_u32 s%d, 1" % S_ROLE)
            e("s_cbranch_scc0 %s_wg" % name)
            for k_ in range(8):
                xr = V_PRE + 4*k_
                e("v_permlane16_swap_b32 v%d, v%d" % (xr, xr+2))
                e("v_permlane16_swap_b32 v%d, v%d" % (xr+1, xr+3))
            for j in range(32):
                e("v_lshlrev_b32 v%d, 16, v%d" % (128+2*j, V_PRE+j)); e("v_and_b32 v%d, 0xffff0000, v%d" % (129+2*j, V_PRE+j))
            e("s_branch %s_wj" % name)
            e("%s_wg:" % name)
            for ntl in range(4):
                b = V_B2 + 2*ntl
                e("v_lshlrev_b32 v%d, 16, v%d\nv_and_b32 v%d, 0xffff0000, v%d\nv_lshlrev_b32 v%d, 16, v%d\nv_and_b32 v%d, 0xffff0000, v%d" % (128+4*ntl, b, 129+4*ntl, b, 130+4*ntl, b+1, 131+4*ntl, b+1))
            for ntl in range(4):
                for i in range(4):
                    a_ = acc(ntl, i)
                    for h in range(2): e("v_pk_add_f32 v[%d:%d], v[%d:%d], v[%d:%d]" % (a_+2*h, a_+2*h+1, a_+2*h, a_+2*h+1, 128+4*ntl+2*h, 128+4*ntl+2*h+1))
            e("%s_wj:" % name)
            for j in range(32):
                t_ = V_PRE + 2*(j % 8)
                e("v_lshlrev_b32 v%d, 16, v%d" % (t_, 96+j)); e("v_and_b32 v%d, 0xffff0000, v%d" % (t_+1, 96+j))
                e("v_pk_add_f32 v[%d:%d], v[%d:%d], v[%d:%d]" % (2*j, 2*j+1, 2*j, 2*j+1, t_, t_+1))
        else:
            for j in range(32):
                e("v_lshlrev_b32 v%d, 16, v%d" % (R+2*j, 96+j)); e("v_and_b32 v%d, 0xffff0000, v%d" % (R+2*j+1, 96+j))
                e("v_pk_add_f32 v[%d:%d], v[%d:%d], v[%d:%d]" % (R+2*j, R+2*j+1, R+2*j, R+2*j+1, 2*j, 2*j+1))
        st.stamp()
        def gloads():
            for k_ in range(8):
                e("s_add_u32 s%d, s%d, %d" % (S_T0, S_G, k_*1024))
                e("buffer_load_dwordx4 v[%d:%d], v%d, s[%d:%d], s%d offen sc1" % (64+4*k_, 64+4*k_+3, V_XO, SRD_WS, SRD_WS+3, S_T0), tag="optional")
    else:
        A_G = 160
        e("s_waitcnt vmcnt(0) lgkmcnt(0)")
        if xlate == 1: preload("b")
        e("s_mov_b32 s53, 0x80000")
        e("%s_xp:" % name)
        e("v_readfirstlane_b32 s54, v%d" % V_PX)
        e("s_cmp_eq_u32 s54, s%d" % S_TAG)
        e("s_cbranch_scc1 %s_xq" % name)
        e("s_sleep 1")
        e("buffer_load_dwordx2 v[%d:%d], v%d, s[%d:%d], s%d offen sc1" % (V_PX, V_PX+1, V_Z, SRD_WS, SRD_WS+3, S_FXP))
        e("s_waitcnt vmcnt(0)")
        e("s_sub_u32 s53, s53, 1")
        e("s_cmp_lg_u32 s53, 0")
        e("s_cbranch_scc1 %s_xp" % name)
        e("%s_xq:" % name)
        e("v_readfirstlane_b32 s54, v%d" % (V_PX+1))
        if force_far: e("s_mov_b32 s54, 99")
        e("v_mov_b32 v%d, s%d" % (V_T0, S_TAG))
        e("s_cmp_eq_u32 s54, s%d" % S_XCC)
        e("s_cbranch_scc0 %s_far" % name)
        for far in range(2):
            if far: e("%s_far:" % name)
            for k_ in range(8):
                a_, d = 64 + 8*k_, 64 + 4*k_
                e("v_cvt_pk_bf16_f32 v%d, v%d, v%d" % (d, a_, a_+1)); e("v_cvt_pk_bf16_f32 v%d, v%d, v%d" % (d+1, a_+2, a_+3))
                e("v_cvt_pk_bf16_f32 v%d, v%d, v%d" % (d+2, a_+4, a_+5)); e("v_cvt_pk_bf16_f32 v%d, v%d, v%d" % (d+3, a_+6, a_+7))
                e("buffer_store_dwordx4 v[%d:%d], v%d, s[%d:%d], %s offen offset:%d%s" % (d, d+3, V_XO, SRD_EX, SRD_EX+3, "0" if k_ < 4 else "s%d" % S_4K, (k_ & 3)*1024, " sc1" if far else exst))
            e("s_waitcnt vmcnt(0)")
            if diag and far == 0: st.stamp()
            if diag and far == 1:
                st.n -= 1; st.stamp()
            e("s_mov_b64 exec, 1")
            e("buffer_store_dword v%d, v%d, s[%d:%d], s%d offen%s" % (V_T0, V_Z, SRD_WS, SRD_WS+3, S_FP, " sc1" if far else ""), tag="optional")
            e("s_mov_b64 exec, -1")
            if not far: e("s_branch %s_sent" % name)
        e("%s_sent:" % name)
        if not diag and not one: st.stamp()
        e("s_mov_b32 s54, 0")
        e("s_cmp_eq_u32 s%d, 1" % S_ROLE)
        e("s_cbranch_scc0 %s_nog" % name)
        e("v_readfirstlane_b32 s52, v%d" % V_FLAG)
        e("s_cmp_eq_u32 s52, s%d" % S_TAG)
        e("s_cbranch_scc0 %s_nog" % name)
        e("s_mov_b32 s54, 1")
        def gloads():
            for k_ in range(8):
                e("s_add_u32 s%d, s%d, %d" % (S_T0, S_G, k_*1024))
                e("buffer_load_dwordx4 a[%d:%d], v%d, s[%d:%d], s%d offen sc1" % (A_G+4*k_, A_G+4*k_+3, V_XO, SRD_WS, SRD_WS+3, S_T0), tag="optional")
        gloads()
        e("%s_nog:" % name)
        e("s_mov_b32 s53, 0x80000")
        e("%s_pp:" % name)
        e("buffer_load_dword v%d, v%d, s[%d:%d], s%d offen sc1" % (V_PX, V_Z, SRD_WS, SRD_WS+3, S_FPP))
        e("s_waitcnt vmcnt(0)")
        e("v_readfirstlane_b32 s52, v%d" % V_PX)
        e("s_cmp_eq_u32 s52, s%d" % S_TAG)
        e("s_cbranch_scc1 %s_pq" % name)
        e("s_sub_u32 s53, s53, 1")
        e("s_cmp_lg_u32 s53, 0")
        e("s_cbranch_scc1 %s_pp" % name)
        e("%s_pq:" % name)
        if diag: st.stamp()
        for k_ in range(8):
            e("s_add_u32 s%d, s%d, %d" % (S_T0, S_EXI, k_*1024))
            e("buffer_load_dwordx4 v[%d:%d], v%d, s[%d:%d], s%d offen%s" % (96+4*k_, 96+4*k_+3, V_XO, SRD_WS, SRD_WS+3, S_T0, exld))
        if diag:
            e("s_waitcnt vmcnt(0)")
            st.stamp()
        if ep2:
            e("s_cmp_eq_u32 s%d, 1" % S_ROLE)
            e("s_cbranch_scc0 %s_wg" % name)
            for k_ in range(8):
                xr = V_PRE + 4*k_
                e("v_permlane16_swap_b32 v%d, v%d" % (xr, xr+2))
                e("v_permlane16_swap_b32 v%d, v%d" % (xr+1, xr+3))
            for j in range(32):
                e("v_lshlrev_b32 v%d, 16, v%d" % (128+2*j, V_PRE+j)); e("v_and_b32 v%d, 0xffff0000, v%d" % (129+2*j, V_PRE+j))
            e("s_branch %s_wj" % name)
            e("%s_wg:" % name)
            for ntl in range(4):
                b = V_B2 + 2*ntl
                e("v_lshlrev_b32 v%d, 16, v%d\nv_and_b32 v%d, 0xffff0000, v%d\nv_lshlrev_b32 v%d, 16, v%d\nv_and_b32 v%d, 0xffff0000, v%d" % (128+4*ntl, b, 129+4*ntl, b, 130+4*ntl, b+1, 131+4*ntl, b+1))
            for ntl in range(4):
                for i in range(4):
                    a_ = acc(ntl, i)
                    for h in range(2): e("v_pk_add_f32 v[%d:%d], v[%d:%d], v[%d:%d]" % (a_+2*h, a_+2*h+1, a_+2*h, a_+2*h+1, 128+4*ntl+2*h, 128+4*ntl+2*h+1))
            e("%s_wj:" % name)
            for j in range(32):
                t_ = V_PRE + 2*(j % 8)
                e("v_lshlrev_b32 v%d, 16, v%d" % (t_, 96+j)); e("v_and_b32 v%d, 0xffff0000, v%d" % (t_+1, 96+j))
                e("v_pk_add_f32 v[%d:%d], v[%d:%d], v[%d:%d]" % (2*j, 2*j+1, 2*j, 2*j+1, t_, t_+1))
        else:
            for j in range(32):
                e("v_lshlrev_b32 v%d, 16, v%d" % (R+2*j, 96+j)); e("v_and_b32 v%d, 0xffff0000, v%d" % (R+2*j+1, 96+j))
                e("v_pk_add_f32 v[%d:%d], v[%d:%d], v[%d:%d]" % (R+2*j, R+2*j+1, R+2*j, R+2*j+1, 2*j, 2*j+1))
        st.stamp()
    def res(ntl, i): return (0 if ep2 else R) + 16*ntl + 4*i
    e("s_cmp_eq_u32 s%d, 1" % S_ROLE)
    e("s_cbranch_scc1 %s_epis" % name)
    if skew and not ep2: e("s_waitcnt vmcnt(0)")
    LOG2E = f2u(1.4426950408889634)
    e("s_mov_b32 s52, 0x%x" % (LOG2E ^ 0x80000000))
    if gpk: e("s_mov_b32 s53, s52\ns_mov_b32 s46, 1.0\ns_mov_b32 s47, 1.0")
    for ntl in range(4 if not ep2 else 0):
        b = V_PRE + 2*ntl
        e("v_lshlrev_b32 v%d, 16, v%d\nv_and_b32 v%d, 0xffff0000, v%d\nv_lshlrev_b32 v%d, 16, v%d\nv_and_b32 v%d, 0xffff0000, v%d" % (64+4*ntl, b, 65+4*ntl, b, 66+4*ntl, b+1, 67+4*ntl, b+1))
    for u in range(2):
        for i in range(4):
            d = (96 if ep2 else 0) + 4*(4*u+i)
            T = (V_PRE + 8*(i & 1)) if ep2 else 96
            tiles = [res(2*u, i), res(2*u+1, i)]
            for half in range(2 if not ep2 else 0):
                a = tiles[half]; ntl = 2*u + half
                for h in range(2): e("v_pk_add_f32 v[%d:%d], v[%d:%d], v[%d:%d]" % (a+2*h, a+2*h+1, a+2*h, a+2*h+1, 64+4*ntl+2*h, 64+4*ntl+2*h+1))
            if gpk:
                for half in range(2):
                    for h in range(2): e("v_pk_mul_f32 v[%d:%d], v[%d:%d], s[52:53]" % (T+4*half+2*h, T+4*half+2*h+1, tiles[half]+2*h, tiles[half]+2*h+1))
                for q in range(8): e("v_exp_f32 v%d, v%d" % (T+q, T+q))
                for q in range(4): e("v_pk_add_f32 v[%d:%d], v[%d:%d], s[46:47]" % (T+2*q, T+2*q+1, T+2*q, T+2*q+1))
            else:
                for half in range(2):
                    for r in range(4): e("v_mul_f32 v%d, s52, v%d" % (T+4*half+r, tiles[half]+r))
                for q in range(8): e("v_exp_f32 v%d, v%d" % (T+q, T+q))
                for q in range(8): e("v_add_f32 v%d, 1.0, v%d" % (T+q, T+q))
            for q in range(8): e("v_rcp_f32 v%d, v%d" % (T+q, T+q))
            for half in range(2):
                a = tiles[half]
                for h in range(2): e("v_pk_mul_f32 v[%d:%d], v[%d:%d], v[%d:%d]" % (a+2*h, a+2*h+1, a+2*h, a+2*h+1, T+4*half+2*h, T+4*half+2*h+1))
            for half in range(2):
                a = tiles[half]
                e("v_cvt_pk_bf16_f32 v%d, v%d, v%d" % (d+2*half, a, a+1))
                e("v_cvt_pk_bf16_f32 v%d, v%d, v%d" % (d+2*half+1, a+2, a+3))
            e("s_add_u32 s%d, s%d, %d" % (S_T0, S_G, (4*u+i)*1024))
            e("buffer_store_dwordx4 v[%d:%d], v%d, s[%d:%d], s%d offen sc1" % (d, d+3, V_XO, SRD_WS, SRD_WS+3, S_T0))
    if not one:
        st.stamp()
        st.n -= 1
    e("s_waitcnt vmcnt(0)")
    if not (wflag & 2):
        e("s_barrier")
        e("s_cmp_lg_u32 s%d, 0" % S_WAVE)
        e("s_cbranch_scc1 %s_fin" % name)
    e("s_mov_b64 exec, 1")
    e("v_mov_b32 v%d, s%d" % (V_T0, S_TAG))
    e("buffer_store_dword v%d, v%d, s[%d:%d], s%d offen sc1" % (V_T0, V_Z, SRD_WS, SRD_WS+3, S_FG))
    e("s_waitcnt vmcnt(0)")
    e("s_branch %s_fin" % name)
    e("%s_epis:" % name)
    e("s_cmp_lg_u32 s54, 0")
    e("s_cbranch_scc1 %s_haveg" % name)
    e("s_mov_b32 s53, 0x80000")
    e("%s_poll:" % name)
    e("buffer_load_dword v%d, v%d, s[%d:%d], s%d offen sc1" % (V_FLAG, V_Z, SRD_WS, SRD_WS+3, S_FG))
    e("s_waitcnt vmcnt(0)")
    e("v_readfirstlane_b32 s54, v%d" % V_FLAG)
    e("s_cmp_eq_u32 s54, s%d" % S_TAG)
    e("s_cbranch_scc1 %s_polled" % name)
    e("s_sleep 1")
    e("s_sub_u32 s53, s53, 1")
    e("s_cmp_lg_u32 s53, 0")
    e("s_cbranch_scc1 %s_poll" % name)
    e("%s_polled:" % name)
    gloads()
    e("%s_haveg:" % name)
    for k_ in range(8 if not ep2 else 0):
        xr = V_PRE + 4*k_
        e("v_permlane16_swap_b32 v%d, v%d" % (xr, xr+2))
        e("v_permlane16_swap_b32 v%d, v%d" % (xr+1, xr+3))
    e("s_waitcnt vmcnt(0)")
    if not one: st.stamp()
    if not skew:
        for k_ in range(8):
            for r in range(4): e("v_accvgpr_read_b32 v%d, a%d" % (4*k_+r, A_G+4*k_+r))
    for i in range(4):
        e("s_add_u32 s%d, s%d, %d" % (S_T0, S_XB, i*16*2048))
        for u in range(2):
            k_ = 4*u + i
            gq, xr, o = (64 if skew else 0) + 4*k_, V_PRE + 4*k_, (96 if ep2 else 32) + 4*k_
            TB = (V_PRE + 16*(u & 1)) if ep2 else 96
            for half in range(2):
                T = TB + 8*half
                e("v_lshlrev_b32 v%d, 16, v%d\nv_and_b32 v%d, 0xffff0000, v%d\nv_lshlrev_b32 v%d, 16, v%d\nv_and_b32 v%d, 0xffff0000, v%d" % (T, gq+2*half, T+1, gq+2*half, T+2, gq+2*half+1, T+3, gq+2*half+1))
                if not ep2:
                    e("v_lshlrev_b32 v%d, 16, v%d\nv_and_b32 v%d, 0xffff0000, v%d\nv_lshlrev_b32 v%d, 16, v%d\nv_and_b32 v%d, 0xffff0000, v%d" % (T+4, xr+2*half, T+5, xr+2*half, T+6, xr+2*half+1, T+7, xr+2*half+1))
            for half in range(2):
                a = res(2*u+half, i); T = TB + 8*half
                X = (128 + 8*k_ + 4*half) if ep2 else T + 4
                for h in range(2): e("v_pk_fma_f32 v[%d:%d], v[%d:%d], v[%d:%d], v[%d:%d]" % (a+2*h, a+2*h+1, a+2*h, a+2*h+1, T+2*h, T+2*h+1, X+2*h, X+1+2*h))
            for half in range(2):
                a = res(2*u+half, i)
                e("v_cvt_pk_bf16_f32 v%d, v%d, v%d" % (o+2*half, a, a+1))
                e("v_cvt_pk_bf16_f32 v%d, v%d, v%d" % (o+2*half+1, a+2, a+3))
            e("v_permlane16_swap_b32 v%d, v%d" % (o, o+2))
            e("v_permlane16_swap_b32 v%d, v%d" % (o+1, o+3))
            e("buffer_store_dwordx4 v[%d:%d], v%d, s[%d:%d], s%d offen offset:%d%s" % (o, o+3, V_RM, SRD_OUT, SRD_OUT+3, S_T0, u*64, osc))
    e("%s_fin:" % name)
    if tl:
        e("s_mov_b64 exec, -1")
        tl_end(p, last=True)
    if stamps:
        e("s_waitcnt vmcnt(0)")
        e("s_mov_b64 exec, -1")
        st.stamp(); st.stamp(True)
        st.dump(SRD_WS, V_T0, 2)
    if not one:
        e("%s_done:" % name)
        e("s_endpgm")
    return p
```

```python
import sys
from asmgen import *
from kern import *

IMG = 8448
def k2(name, DW=8, DA=8, BAR=4, stamps=False, same=0, noact=False, now=False, slack=4, xnt=True, notr=False, nomfma=False):
    p = Prog(); e = p.e
    st = Stamps(p, stamps)
    p.lg_slack = slack
    U = 16
    def acc(nt, rt): return 8*nt + 4*rt
    V_PRE = 64
    V_TID, V_TR0, V_TR1, V_TR2, V_DW, V_XO, V_T0, V_T1, V_T2, V_T3, V_RM, V_DW2, V_FLAG, V_G8, V_LW, V_LR = 100, 101, 102, 103, 104, 105, 106, 107, 108, 109, 110, 111, 120, 121, 122, 123
    def wfrag(nt): return 4*nt
    def afrag(step, rt): return 32 + 8*(step % U) + 4*rt
    S_WAVE = 3
    SRD_W, SRD_WS, SRD_X, SRD_OUT, SRD_DBG, SRD_A = 8, 12, 16, 20, 24, 56
    S_A, S_W, S_MB, S_T0, S_T1, S_ROLE, S_RT, S_CT, S_CNT, S_G, S_PAIR, S_XB, S_NU, S_AB, S_FOFF, S_FMASK = 28, 29, 30, 31, 32, 33, 34, 35, 36, 38, 39, 50, 51, 55, 60, 61
    e("s_cmp_ge_u32 s2, 256")
    e("s_cbranch_scc1 %s_done" % name)
    st.stamp(True); st.stamp()
    e("s_load_dwordx2 s[4:5], s[0:1], %d" % KA['wo'])
    e("s_load_dwordx4 s[40:43], s[0:1], %d" % KA['w2'])
    e("s_load_dwordx4 s[44:47], s[0:1], %d" % KA['out'])
    e("s_load_dwordx2 s[6:7], s[0:1], %d" % KA['ws'])
    e("s_load_dwordx2 s[48:49], s[0:1], %d" % KA['x'])
    e("v_lshrrev_b32 v%d, 6, v0" % V_T0)
    e("v_and_b32 v%d, 63, v0" % V_TID)
    e("v_readfirstlane_b32 s%d, v%d" % (S_WAVE, V_T0))
    e("s_bfe_u32 s%d, s2, 0x10002" % S_ROLE)
    e("s_and_b32 s%d, s2, 3" % S_T0)
    e("s_lshr_b32 s%d, s2, 3" % S_T1)
    e("s_lshr_b32 s%d, s%d, 1" % (S_RT, S_T0))
    e("s_lshl_b32 s%d, s%d, 3" % (S_RT, S_RT))
    e("s_lshr_b32 s%d, s%d, 2" % (S_CT, S_T1))
    e("s_add_u32 s%d, s%d, s%d" % (S_RT, S_RT, S_CT))
    e("s_and_b32 s%d, s%d, 1" % (S_CT, S_T0))
    e("s_lshl_b32 s%d, s%d, 2" % (S_CT, S_CT))
    e("s_and_b32 s%d, s%d, 3" % (S_T1, S_T1))
    e("s_add_u32 s%d, s%d, s%d" % (S_CT, S_CT, S_T1))
    e("s_lshl_b32 s%d, s%d, 3" % (S_PAIR, S_RT))
    e("s_add_u32 s%d, s%d, s%d" % (S_PAIR, S_PAIR, S_CT))
    if same & 1: e("s_mov_b32 s%d, 0" % S_RT)
    if same & 2: e("s_mov_b32 s%d, 0" % S_CT)
    e("v_lshrrev_b32 v%d, 4, v%d" % (V_T0, V_TID))
    e("v_and_b32 v%d, 15, v%d" % (V_T1, V_TID))
    e("v_lshlrev_b32 v%d, 14, v%d" % (V_DW, V_T0))
    e("v_lshl_add_u32 v%d, v%d, 4, v%d" % (V_DW, V_T1, V_DW))
    e("v_and_b32 v%d, 1, v%d" % (V_T2, V_T0))
    e("v_lshlrev_b32 v%d, 2, v%d" % (V_T2, V_T2))
    e("v_bfe_u32 v%d, v%d, 2, 2" % (V_T3, V_TID))
    e("v_add_u32 v%d, v%d, v%d" % (V_T2, V_T2, V_T3))
    e("v_mul_u32_u24 v%d, 1056, v%d" % (V_TR0, V_T2))
    e("v_lshrrev_b32 v%d, 1, v%d" % (V_T2, V_T0))
    e("v_lshl_add_u32 v%d, v%d, 8, v%d" % (V_TR0, V_T2, V_TR0))
    e("v_and_b32 v%d, 3, v%d" % (V_T2, V_TID))
    e("v_lshl_add_u32 v%d, v%d, 3, v%d" % (V_TR0, V_T2, V_TR0))
    e("v_add_u32 v%d, %d, v%d" % (V_DW2, 2048-1056, V_DW))
    e("v_add_u32 v%d, %d, v%d" % (V_TR1, 7*IMG, V_TR0))
    e("v_add_u32 v%d, %d, v%d" % (V_TR2, 14*IMG, V_TR0))
    e("v_lshlrev_b32 v%d, 4, v%d" % (V_XO, V_TID))
    e("v_lshlrev_b32 v%d, 11, v%d" % (V_RM, V_T0))
    e("v_lshl_add_u32 v%d, v%d, 4, v%d" % (V_RM, V_T1, V_RM))
    e("v_lshlrev_b32 v%d, 3, v%d" % (V_G8, V_T0))
    e("v_mul_u32_u24 v%d, 272, v%d" % (V_LW, V_T1))
    e("v_add_u32 v%d, v%d, v%d" % (V_LW, V_LW, V_G8))
    e("v_mul_u32_u24 v%d, 272, v%d" % (V_LR, V_T0))
    e("v_lshl_add_u32 v%d, v%d, 4, v%d" % (V_LR, V_T1, V_LR))
    e("s_mul_i32 s%d, s%d, %d" % (S_T0, S_WAVE, 32*272))
    e("v_add_u32 v%d, s%d, v%d" % (V_LW, S_T0, V_LW))
    e("v_add_u32 v%d, s%d, v%d" % (V_LR, S_T0, V_LR))
    e("s_waitcnt lgkmcnt(0)")
    def sel(d, x, y):
        e("s_mov_b32 s%d, 0x%x" % (d, y))
        e("s_cselect_b32 s%d, 0x%x, s%d" % (d, x, d))
    e("s_cmp_eq_u32 s%d, 1" % S_ROLE)
    e("s_cselect_b32 s%d, s4, s40" % SRD_W)
    e("s_cselect_b32 s%d, s5, s41" % (SRD_W+1))
    sel(SRD_W+2, 8 << 20, 7 << 20)
    e("s_mov_b32 s%d, 0x20000" % (SRD_W+3))
    sel(S_NU, 128*2048, 112*2048)
    sel(62, OF_RP, HF_RP)
    sel(S_AB, WS_OF, WS_HF)
    e("s_cselect_b32 s%d, 8, 7" % S_CNT)
    e("s_cselect_b32 s%d, s48, s42" % SRD_X)
    e("s_cselect_b32 s%d, s49, s43" % (SRD_X+1))
    sel(SRD_X+2, 4 << 20, 2048)
    e("s_mov_b32 s%d, 0x20000" % (SRD_X+3))
    e("s_lshl_b32 s%d, s%d, 2" % (S_T0, S_RT))
    e("s_add_u32 s%d, s%d, s%d" % (S_T0, S_T0, S_WAVE))
    e("s_mul_i32 s%d, s%d, s62" % (S_A, S_T0))
    e("s_add_u32 s%d, s%d, s%d" % (S_A, S_A, S_AB))
    e("s_add_u32 s%d, s6, s%d" % (SRD_A, S_A))
    e("s_addc_u32 s%d, s7, 0" % (SRD_A+1))
    e("s_mov_b32 s%d, s%d" % (SRD_A+2, S_NU))
    e("s_mov_b32 s%d, 0x20000" % (SRD_A+3))
    e("s_mov_b32 s%d, 0" % S_A)
    e("s_lshl_b32 s%d, s%d, 8" % (S_W, S_CT))
    e("s_lshl_b32 s%d, s%d, 12" % (S_T0, S_WAVE))
    e("s_add_u32 s%d, s%d, s%d" % (S_W, S_W, S_T0))
    e("s_mul_i32 s%d, s%d, %d" % (S_MB, S_WAVE, 2*1056))
    def dma_step(slot):
        b = slot*IMG
        return [["s_add_u32 m0, s%d, %d" % (S_MB, b), "buffer_load_dwordx4 v%d, s[%d:%d], s%d offen lds" % (V_DW, SRD_W, SRD_W+3, S_W)],
                ["buffer_load_dwordx4 v%d, s[%d:%d], s%d offen offset:1056 lds" % (V_DW2, SRD_W, SRD_W+3, S_W)]]
    adv_w = ["s_add_u32 s%d, s%d, %d" % (S_W, S_W, 32*2048)]
    def a_loads(step):
        return ["buffer_load_dwordx4 a[%d:%d], v%d, s[%d:%d], s%d offen offset:%d" % (afrag(step, rt), afrag(step, rt)+3, V_XO, SRD_A, SRD_A+3, S_A, (step % 2)*2048 + rt*1024) for rt in range(2)]
    adv_a = "s_add_u32 s%d, s%d, 4096" % (S_A, S_A)
    def tr_reads(step, nt):
        slot = step % U
        v, o = (V_TR0, slot) if slot < 7 else (V_TR1, slot-7) if slot < 14 else (V_TR2, slot-14)
        return ["ds_read_b64_tr_b16 a[%d:%d], v%d offset:%d" % (wfrag(nt)+2*t, wfrag(nt)+2*t+1, v, o*IMG + nt*32 + t*512) for t in range(2)]
    DM = max(DW, DA)
    for s in range(DM):
        if s < DW:
            for grp in dma_step(s):
                for t in grp: e(t, tag=("w", s) if t.startswith("buffer") else None)
            for t in adv_w: e(t)
        if s < DA:
            for t in a_loads(s): e(t)
            if s % 2 == 1: e(adv_a)
        if s == 0:
            srd(p, SRD_WS, 6, WS_SIZE)
            srd(p, SRD_OUT, 44, 4 << 20)
            srd(p, SRD_DBG, 46, 256)
            e("s_lshl_b32 s%d, s%d, 15" % (S_G, S_PAIR))
            e("s_lshl_b32 s%d, s%d, 13" % (S_T0, S_WAVE))
            e("s_add_u32 s%d, s%d, s%d" % (S_G, S_G, S_T0))
            e("s_add_u32 s%d, s%d, 0x%x" % (S_G, S_G, WS_G))
            e("s_lshl_b32 s%d, s%d, 18" % (S_XB, S_RT))
            e("s_lshl_b32 s%d, s%d, 16" % (S_T0, S_WAVE))
            e("s_add_u32 s%d, s%d, s%d" % (S_XB, S_XB, S_T0))
            e("s_lshl_b32 s%d, s%d, 8" % (S_T0, S_CT))
            e("s_add_u32 s%d, s%d, s%d" % (S_XB, S_XB, S_T0))
            e("s_lshr_b32 s%d, s%d, 1" % (S_FOFF, S_PAIR))
            e("s_lshl_b32 s%d, s%d, 2" % (S_FOFF, S_FOFF))
            e("s_and_b32 s%d, s%d, 1" % (S_T1, S_PAIR))
            e("s_lshl_b32 s%d, s%d, 4" % (S_T1, S_T1))
            e("s_lshl_b32 s%d, 1, s%d" % (S_FMASK, S_T1))
            e("v_mov_b32 v%d, 0" % V_FLAG)
            e("v_mov_b32 v%d, 0" % V_T3)
        if s == 1:
            for i in range(64): e("v_mov_b32 v%d, 0" % i)
    e("s_cmp_eq_u32 s%d, 1" % S_ROLE)
    e("s_cbranch_scc0 %s_preg" % name)
    for i in range(8):
        e("s_add_u32 s%d, s%d, %d" % (S_T0, S_XB, i*8192))
        e("buffer_load_dwordx4 v[%d:%d], v%d, s[%d:%d], s%d offen%s" % (V_PRE+4*i, V_PRE+4*i+3, V_RM, SRD_X, SRD_X+3, S_T0, " nt" if xnt else ""), tag="optional")
    e("s_branch %s_prej" % name)
    e("%s_preg:" % name)
    e("s_lshl_b32 s%d, s%d, 8" % (S_T0, S_CT))
    for nt in range(8):
        e("buffer_load_dwordx2 v[%d:%d], v%d, s[%d:%d], s%d offen offset:%d" % (V_PRE+2*nt, V_PRE+2*nt+1, V_G8, SRD_X, SRD_X+3, S_T0, nt*32), tag="optional")
    e("%s_prej:" % name)
    st.stamp()
    p.waitvm(("w", 0))
    e("s_barrier")
    for nt in range(8):
        for t in tr_reads(0, nt): e(t)
    st.stamp()
    p.loop_begin("g2")
    e("%s_g2:" % name)
    for s in range(U):
        if s % BAR == 0:
            p.waitvm(("w", (s+BAR) % U))
            e("s_barrier")
        if s == 13:
            e("s_cmp_lg_u32 s%d, 1" % S_CNT)
            e("s_cbranch_scc1 %s_nofl" % name)
            e("buffer_load_dword v%d, v%d, s[%d:%d], s%d offen sc1" % (V_FLAG, V_T3, SRD_DBG, SRD_DBG+3, S_FOFF), tag="optional")
            e("%s_nofl:" % name)
        mf = []
        for nt in range(8):
            for rt in range(2):
                a = acc(nt, rt)
                mf.append(Ins("v_mfma_f32_16x16x32_bf16 v[%d:%d], a[%d:%d], a[%d:%d], v[%d:%d]" % (a, a+3, wfrag(nt), wfrag(nt)+3, afrag(s, rt), afrag(s, rt)+3, a, a+3)))
        fill = []
        for nt in range(8):
            r = tr_reads(s+1, nt)
            if notr: continue
            fill.append((min(2*nt+1, 15), Ins(r[0])))
            fill.append((min(2*nt+2, 15), Ins(r[1])))
        dm = dma_step((s + DW) % U)
        posd = [2, 8]
        for q, grp in enumerate(dm):
            for k_, t in enumerate(grp):
                if now and t.startswith("buffer"): continue
                fill.append((posd[q] - (len(grp)-1-k_), Ins(t, tag=("w", (s+DW) % U) if t.startswith("buffer") else None)))
        for q, t in enumerate(adv_w): fill.append((10+q, Ins(t)))
        for q, t in enumerate(a_loads(s + DA)):
            if not noact: fill.append((4+8*q, Ins(t)))
        if (s + DA) % 2 == 1: fill.append((14, Ins(adv_a)))
        fill.sort(key=lambda x: x[0])
        for ins in weave(mf, fill):
            if nomfma and ins.kind == 'mfma': continue
            p.add(ins)
    e("s_sub_u32 s%d, s%d, 1" % (S_CNT, S_CNT))
    e("s_cmp_lg_u32 s%d, 0" % S_CNT)
    e("s_cbranch_scc1 %s_g2" % name)
    p.loop_end()
    st.stamp()
    e("s_waitcnt vmcnt(0) lgkmcnt(0)")
    e("s_cmp_eq_u32 s%d, 1" % S_ROLE)
    e("s_cbranch_scc1 %s_epis" % name)
    LOG2E = f2u(1.4426950408889634)
    def rnd(a, b, t):
        e("v_cvt_pk_bf16_f32 v%d, v%d, v%d" % (t, a, b))
        e("v_lshlrev_b32 v%d, 16, v%d" % (a, t))
        e("v_and_b32 v%d, 0xffff0000, v%d" % (b, t))
    e("s_mov_b32 s52, 0x%x" % (LOG2E ^ 0x80000000))
    for u in range(4):
        for rt in range(2):
            d = 128 + 4*(2*u+rt)
            for half in range(2):
                nt = 2*u + half
                b = V_PRE + 2*nt
                a = acc(nt, rt)
                T = 112 + 4*half
                e("v_lshlrev_b32 v96, 16, v%d\nv_and_b32 v97, 0xffff0000, v%d\nv_lshlrev_b32 v98, 16, v%d\nv_and_b32 v99, 0xffff0000, v%d" % (b, b, b+1, b+1))
                rnd(a, a+1, V_T0); rnd(a+2, a+3, V_T1)
                for r in range(4): e("v_add_f32 v%d, v%d, v%d" % (a+r, a+r, 96+r))
                rnd(a, a+1, V_T0); rnd(a+2, a+3, V_T1)
                for r in range(4): e("v_mul_f32 v%d, s52, v%d" % (T+r, a+r))
                for r in range(4): e("v_exp_f32 v%d, v%d" % (T+r, T+r))
                for r in range(4): e("v_add_f32 v%d, 1.0, v%d" % (T+r, T+r))
                for r in range(4): e("v_rcp_f32 v%d, v%d" % (T+r, T+r))
                for r in range(4): e("v_mul_f32 v%d, v%d, v%d" % (a+r, a+r, T+r))
                e("v_cvt_pk_bf16_f32 v%d, v%d, v%d" % (d+2*half, a, a+1))
                e("v_cvt_pk_bf16_f32 v%d, v%d, v%d" % (d+2*half+1, a+2, a+3))
            e("s_add_u32 s%d, s%d, %d" % (S_T0, S_G, (2*u+rt)*1024))
            e("buffer_store_dwordx4 v[%d:%d], v%d, s[%d:%d], s%d offen sc1" % (d, d+3, V_XO, SRD_WS, SRD_WS+3, S_T0))
    e("s_waitcnt vmcnt(0)")
    e("s_barrier")
    e("s_cmp_lg_u32 s%d, 0" % S_WAVE)
    e("s_cbranch_scc1 %s_fin" % name)
    e("s_mov_b64 exec, 1")
    e("v_mov_b32 v%d, s%d" % (V_T0, S_FMASK))
    e("buffer_atomic_add v%d, v%d, s[%d:%d], s%d offen sc1" % (V_T0, V_T3, SRD_DBG, SRD_DBG+3, S_FOFF))
    e("s_waitcnt vmcnt(0)")
    e("s_branch %s_fin" % name)
    e("%s_epis:" % name)
    e("s_barrier")
    e("s_mov_b32 s53, 0x400000")
    e("%s_poll:" % name)
    e("v_readfirstlane_b32 s54, v%d" % V_FLAG)
    e("s_and_b32 s54, s54, s%d" % S_FMASK)
    e("s_cbranch_scc1 %s_polled" % name)
    e("s_sleep 1")
    e("buffer_load_dword v%d, v%d, s[%d:%d], s%d offen sc1" % (V_FLAG, V_T3, SRD_DBG, SRD_DBG+3, S_FOFF))
    e("s_waitcnt vmcnt(0)")
    e("s_sub_u32 s53, s53, 1")
    e("s_cmp_lg_u32 s53, 0")
    e("s_cbranch_scc1 %s_poll" % name)
    e("%s_polled:" % name)
    for k_ in range(8):
        e("s_add_u32 s%d, s%d, %d" % (S_T0, S_G, k_*1024))
        e("buffer_load_dwordx4 v[%d:%d], v%d, s[%d:%d], s%d offen sc1" % (128+4*k_, 128+4*k_+3, V_XO, SRD_WS, SRD_WS+3, S_T0))
    for nt in range(8):
        for rt in range(2):
            a = acc(nt, rt)
            rnd(a, a+1, V_T0); rnd(a+2, a+3, V_T1)
    for u in range(4):
        for rt in range(2):
            gq = 128 + 4*(2*u+rt)
            for half in range(2):
                nt = 2*u + half
                a = acc(nt, rt)
                T = 112 + 4*half
                e("v_lshlrev_b32 v%d, 16, v%d\nv_and_b32 v%d, 0xffff0000, v%d\nv_lshlrev_b32 v%d, 16, v%d\nv_and_b32 v%d, 0xffff0000, v%d" % (T, gq+2*half, T+1, gq+2*half, T+2, gq+2*half+1, T+3, gq+2*half+1))
                for r in range(4): e("v_mul_f32 v%d, v%d, v%d" % (a+r, a+r, T+r))
                e("v_cvt_pk_bf16_f32 v%d, v%d, v%d" % (a, a, a+1))
                e("v_cvt_pk_bf16_f32 v%d, v%d, v%d" % (a+1, a+2, a+3))
                e("ds_write_b64 v%d, v[%d:%d] offset:%d" % (V_LW, a, a+1, rt*16*272 + nt*32))
    e("s_waitcnt lgkmcnt(0)")
    for i in range(8):
        e("ds_read_b128 v[%d:%d], v%d offset:%d" % (128+4*i, 128+4*i+3, V_LR, i*4*272))
    for i in range(8):
        pr, xr = 128+4*i, V_PRE+4*i
        for h in range(2):
            T = 112 + 8*0
            for q in range(2):
                di = 2*h + q
                e("v_lshlrev_b32 v%d, 16, v%d" % (112+4*q, pr+di)); e("v_and_b32 v%d, 0xffff0000, v%d" % (113+4*q, pr+di))
                e("v_lshlrev_b32 v%d, 16, v%d" % (114+4*q, xr+di)); e("v_and_b32 v%d, 0xffff0000, v%d" % (115+4*q, xr+di))
            for q in range(2):
                e("v_add_f32 v%d, v%d, v%d" % (112+4*q, 112+4*q, 114+4*q)); e("v_add_f32 v%d, v%d, v%d" % (113+4*q, 113+4*q, 115+4*q))
            for q in range(2):
                e("v_cvt_pk_bf16_f32 v%d, v%d, v%d" % (pr+2*h+q, 112+4*q, 113+4*q))
        e("s_add_u32 s%d, s%d, %d" % (S_T0, S_XB, i*8192))
        e("buffer_store_dwordx4 v[%d:%d], v%d, s[%d:%d], s%d offen" % (pr, pr+3, V_RM, SRD_OUT, SRD_OUT+3, S_T0))
    e("%s_fin:" % name)
    if stamps:
        e("s_waitcnt vmcnt(0)")
        e("s_mov_b64 exec, -1")
        st.stamp(); st.stamp(True)
        st.dump(SRD_WS, V_T0, 2)
    e("%s_done:" % name)
    e("s_endpgm")
    return p

def arg(n, d):
    for a in sys.argv:
        if a.startswith(n + "="): return int(a[len(n)+1:])
    return d
def build_all(fn, stamps=False, k0kw={}, k1kw={}, k2kw={}):
    k0kw = dict(k0kw, sleep=arg("sleep0", 0), prefetch=bool(arg("pf0", 0)))
    if arg("tl", 0):
        k0kw = dict(k0kw, tl=True); k1kw = dict(k1kw, tl=True); k2kw = dict(k2kw, tl=True)
    import kern
    if arg("dstamp", 0):
        kern.DSTAMP[0] = arg("dstamp", 0); kern.DSTAMP.append([2, 3, 4, 6, 8, 9, 11])
    from k1 import k1, STEP_LDS
    import k2b, k2c
    KV = arg('kv', 2)
    fused = bool(arg("fused", 0))
    k1kw = dict(k1kw, fused=fused, diag0=bool(arg("diag0", 0)), psleep=arg("psleep", 1), pf3=arg("pf3", 0), pfnt=bool(arg("pfnt", 0)), xnt0=bool(arg("xnt0", 0)), sch=arg("sch", 0), sco=arg("sco", 0), hspread=bool(arg("hspread", 0)), p0v=arg("p0v", 2), refine=bool(arg("refine", 0)), codepf=arg("codepf1", 13 if arg("one", 0) else 0), cpos=arg("cpos", 1), kvchk=arg("kvchk", 1), wpf=arg("wpf", 0), cmap2=arg("cmap", 0), ln1=arg("ln1", 0), dearly=(arg("dearly", 0) or None), snake=arg("snake", 3), gearly=arg("gearly", 1), nlate=arg("nlate", 1), tint=arg("tint", 0), lnfast=arg("lnfast", 0), oint=arg("oint", 1), rot1=arg("rot1", 0), wpp=arg("wpp", 0), kvnt=arg("kvnt", 1), wpos=arg("wpos", 52), wnt=arg("wnt", 1), cgmap=arg("cgmap", 0), pfg=arg("pfg", 0), wflag=arg("wflag", 2), dg=arg("dg", 0))
    if arg("one", 0):
        KN = "recurrent_scan__sliding_block_cached__dense_activation_squared_relu__prompt_kernel"
        prog = k1("pa", stamps=stamps, tail=lambda p, st: k2c.k2("pb", p=p, st=st, codepf=k1kw["codepf"], start="pa_start", psleep=arg("psleep2", 2), gearly=arg("gearly", 1), lds_word=8*STEP_LDS + 260, **k2kw), **k1kw)
        hdr = open("recurrent_scan__sliding_block_cached__dense_activation_squared_relu__prompt.s.ref").read().split("; Override")[0]
        if arg("plain", 0):
            txt = assemble([(KN, prog, 512, 102, 256)], [], header=hdr + "; @launch grid=(256,1,1) block=(256,1,1) lds=%d" % (8*STEP_LDS + 512 + 4096))
        else:
            txt = assemble([("pa_kernel", prog, 512, 102, 256)], [("pa_kernel", (256,1,1), (256,1,1), 8*STEP_LDS + 512 + 4096)], header=hdr)
        doc = """; One persistent launch, 256 workgroups (one per CU) x 4 waves, generated by my own scheduler scripts.  Phases of a workgroup:
"""
        txt = txt.replace(".amdgcn_target", doc + ".amdgcn_target", 1)
        open(fn + ".s", "w").write(txt)
        import build
        return build.build(fn + ".s")
    ks = [("pa_kernel", k1("pa", stamps=stamps, **k1kw), 512, 102, 256),
          ("pb_kernel", (k2c.k2 if KV == 3 else k2b.k2 if arg("v2", 1) else k2)("pb", stamps=stamps, **k2kw), 512, 102, 256)]
    ls = [("pa_kernel", (256,1,1), (256,1,1), 8*STEP_LDS + (512 + 4096 if fused else 0)), ("pb_kernel", (256,1,1), (256,1,1), 16*IMG if KV != 3 else arg("lds2", 8*IMG))]
    if not fused:
        ks.insert(0, ("prep_kernel", k0("prep", stamps=stamps, codepf=("pa_kernel", "code_end_label") if arg("codepf", 0) else None, **k0kw), 96, 102, 96))
        ls.insert(0, ("prep_kernel", (256,1,1), (512,1,1), 4096))
    hdr = open("recurrent_scan__sliding_block_cached__dense_activation_squared_relu__prompt.s.ref").read().split("; Override")[0]
    open(fn + ".s", "w").write(assemble(ks, ls, header=hdr))
    import build
    return build.build(fn + ".s")
if __name__ == "__main__":
    fn = ([a[3:] for a in sys.argv if a.startswith("fn=")] + ["t2"])[0]
    print(build_all(fn, stamps="stamps" in sys.argv, k1kw=dict(D=arg("D", 3), BAR=arg("BAR1", 1), slack=arg("slack1", 6), pf2=bool(arg("pf2", 1)), force_slow=bool(arg("slow", 0))),
          k2kw=(dict(DW=arg("DW", 8 if arg("ring16", 0) else 6), DA=arg("DA", 3), BAR=arg("BAR2", 4 if arg("ring16", 0) else 2), ring16=arg("ring16", 0), slack=arg("slack", 6), force_far=bool(arg("far", 0)), cmap=arg("cmap", 0), PT=arg("PT", 0), skew=arg("skew", 1), wearly=(arg("wearly", 0) or None), snake=arg("snake", 3), spr=arg("spr", 0), half16=arg("half16", 1), xnt=bool(arg("xnt2", 0)), small=arg("small", 1), gpk=arg("gpk", 1), dg=arg("dg", 0), ep2=arg("ep2", 1), osc=["", " sc1", " nt", " sc0 sc1", " sc1 nt"][arg("osc", 1)], wflag=arg("wflag", 2), xlate=arg("xlate", 2), exld=["", " sc0", " nt", " sc1", " sc0 sc1"][arg("exld", 3)], exst=["", " sc0", " nt"][arg("exst", 0)], diag=arg("diag", 0), noact=bool(arg("noact", 0)), now=bool(arg("now", 0))) if arg("kv", 2) == 3 else dict(DW=arg("DW", 8), DA=arg("DA", 3), mapping=arg("map", 2), split=arg("split", 0), wlin=arg("wlin", 0), rot=arg("rot", 0), exp=arg("exp", 0), slack=arg("slack", 6), noact=bool(arg("noact", 0)), now=bool(arg("now", 0)), same=arg("same", 0)) if arg("v2", 1) else dict())))
```
